```python
import torch

def _softmax(x, axis=-1):
    return torch.softmax(x, dim=axis)
def _gelu(x):
    return torch.nn.functional.gelu(x, approximate="tanh")
def _silu(x):
    return torch.nn.functional.silu(x)
def _sigmoid(x):
    return torch.sigmoid(x)
def _layernorm(x, axis=-1, eps=1e-5):
    m = x.mean(dim=axis, keepdim=True)
    v = x.var(dim=axis, keepdim=True, unbiased=False)
    return (x - m) / torch.sqrt(v + eps)
def _scatter_add(tgt, idx, src, axis=0):
    return tgt.clone().index_add_(axis, idx, src)
def _segment_sum(src, seg, n):
    out = torch.zeros((n,) + src.shape[1:], dtype=src.dtype)
    return out.index_add_(0, seg, src)
def _pad(x, pw):
    flat = tuple(v for pair in reversed(pw) for v in pair)
    return torch.nn.functional.pad(x, flat)

kernel_name = 'recurrent_scan__ssm_conv_h3__mixer_token_mlp__prompt'

def setup_inputs():

    _w = (lambda a: (lambda t: t.to(torch.bfloat16) if t.is_floating_point() else t)(torch.as_tensor(a)))
    def _A_setup():
        B, S, D = 1, 2048, 576
        ks = 4
        return {
            "q": _w((lambda *s: torch.randn(*s, dtype=torch.bfloat16) * 0.05)(B, S, D)),
            "k": _w((lambda *s: torch.randn(*s, dtype=torch.bfloat16) * 0.8)(B, S, D)),
            "v": _w((lambda *s: torch.randn(*s, dtype=torch.bfloat16) * 0.8)(B, S, D)),
            "shift_k": _w((lambda *s: torch.randn(*s, dtype=torch.bfloat16) * 0.8)(D, ks) * 0.5),
            "ssm_k": _w((lambda *s: torch.randn(*s, dtype=torch.bfloat16) * 0.8)(D, S) * (1.0 / S ** 0.5)),
            "ssm_D": _w((lambda *s: torch.randn(*s, dtype=torch.bfloat16) * 0.8)(D)),
        }
    _A_in = _A_setup()

    def _B_setup():
        B, S, D, F = 1, 2048, 576, 4608
        return {
            "x": _w((lambda *s: torch.randn(*s, dtype=torch.bfloat16) * 0.05)(B, S, D)),
            "w1": _w((lambda *s: torch.randn(*s, dtype=torch.bfloat16) * 0.8)(S, F) * (S ** -0.5)),
            "b1": _w((lambda *s: torch.randn(*s, dtype=torch.bfloat16) * 12.8)(F) * 0.02),
            "w2": _w((lambda *s: torch.randn(*s, dtype=torch.bfloat16) * 0.2)(F, S) * (F ** -0.5)),
            "b2": _w((lambda *s: torch.randn(*s, dtype=torch.bfloat16) * 3.2)(S) * 0.02),
        }
    _B_in = _B_setup()

    return {
        "A_q": _A_in["q"],
        "A_k": _A_in["k"],
        "A_v": _A_in["v"],
        "A_shift_k": _A_in["shift_k"],
        "A_ssm_k": _A_in["ssm_k"],
        "A_ssm_D": _A_in["ssm_D"],
        "B_x": _B_in["x"],
        "B_w1": _B_in["w1"],
        "B_b1": _B_in["b1"],
        "B_w2": _B_in["w2"],
        "B_b2": _B_in["b2"],
    }

def reference(A_q, A_k, A_v, A_shift_k, A_ssm_k, A_ssm_D, B_x, B_w1, B_b1, B_w2, B_b2):
    def _A_ref(q, k, v, shift_k, ssm_k, ssm_D):
        B, S, D = q.shape
        ks = shift_k.shape[-1]
        k_pad = _pad(k, ((0, 0), (ks - 1, 0), (0, 0)))
        k_shift = torch.zeros_like(k)
        for t in range(ks):
            k_shift = k_shift + k_pad[:, t:t + S, :] * shift_k[:, ks - 1 - t][None, None, :]
        kv = k_shift * v
        L = 2 * S
        kv_pad = _pad(kv, ((0, 0), (0, S), (0, 0)))
        kf_pad = _pad(ssm_k, ((0, 0), (0, S)))
        kv_f = (lambda x, axes=(-2,-1): torch.fft.rfft2(x.float(), dim=axes))(kv_pad[:, None, :, :], axes=(1, 2))
        kf_f = (lambda x, axes=(-2,-1): torch.fft.rfft2(x.float(), dim=axes))(kf_pad[:, None, :], axes=(1, 2))
        kf_f = (lambda x, *d: x.permute(*d))(kf_f, 1, 2, 0)
        y_f = kv_f * kf_f[None, :, :, :]
        y = (lambda x, s, axes=(-2,-1): torch.fft.irfft2(x, s=s, dim=axes).to(torch.bfloat16))(y_f, (1, L), axes=(1, 2))[:, 0, :S, :]
        y = y + kv * ssm_D[None, None, :]
        return q * y

    def _B_ref(x, w1, b1, w2, b2):
        B, S, D = x.shape
        h = _layernorm(x, axis=-1)
        u = torch.einsum("bsd,sf->bdf", h, w1) + b1
        u = _gelu(u)
        y = torch.einsum("bdf,fs->bds", u, w2) + b2
        return (lambda x, *d: x.permute(*d))(y, 0, 2, 1)

    x = A_q
    xn = _layernorm(x, axis=-1)
    s = _A_ref(xn, A_k, A_v, A_shift_k, A_ssm_k, A_ssm_D)
    g = _silu(_B_ref(xn, B_w1, B_b1, B_w2, B_b2))
    return x + s * g
```

```python
import re

TRANS = ("v_exp_f32","v_log_f32","v_rcp_f32","v_rsq_f32","v_sqrt_f32","v_sin_f32","v_cos_f32","v_rcp_iflag_f32")
REG = re.compile(r"\b([vas])\[(\d+):(\d+)\]|\b([vas])(\d+)\b|\b(vcc|exec|m0|vcc_lo|vcc_hi|scc)\b")

def regs_of(tok):
    out=set()
    for m in REG.finditer(tok):
        if m.group(1):
            for r in range(int(m.group(2)), int(m.group(3))+1): out.add(m.group(1)+str(r))
        elif m.group(4): out.add(m.group(4)+m.group(5))
        else:
            n=m.group(6)
            out.add("vcc" if n.startswith("vcc") else n)
    return out

def split_ops(s):
    ops=[];d=0;cur=""
    for ch in s:
        if ch=="[": d+=1
        if ch=="]": d-=1
        if ch=="," and d==0: ops.append(cur.strip()); cur=""
        else: cur+=ch
    if cur.strip(): ops.append(cur.strip())
    return ops

class Ins:
    __slots__=("text","op","w","r","kind","passes","srcc","srcab","dpp","isnop","states","label","storedata")
    def __init__(self,text):
        self.text=text
        t=text.split(";")[0].strip()
        self.label = t.endswith(":") or t.startswith(".") or t=="" or t.startswith("@W")
        self.w=set();self.r=set();self.kind="other";self.passes=0;self.srcc=set();self.srcab=set();self.dpp=False
        self.states=0 if self.label else 1; self.storedata=set(); self.op=""
        if self.label: return
        p=t.split(None,1); op=p[0]; self.op=op
        ops=split_ops(p[1]) if len(p)>1 else []
        if op=="s_nop": self.states=int(ops[0],0)+1; self.kind="nop"; return
        if op.startswith("v_mfma"):
            self.kind="mfma"; self.passes=8 if "32x32" in op else 4
            self.w=regs_of(ops[0]); self.srcab=regs_of(ops[1])|regs_of(ops[2]); self.srcc=regs_of(ops[3]); self.r=self.srcab|self.srcc
        elif op.startswith("v_"):
            self.kind="valu"
            self.dpp = ("_dpp" in op) or ("row_" in t) or ("quad_perm" in t)
            nd=1
            if op.startswith(("v_add_co","v_sub_co","v_addc_co","v_subb_co","v_div_scale","v_mad_u64")): nd=2
            for o in ops[:nd]: self.w|=regs_of(o)
            for o in ops[nd:]: self.r|=regs_of(o)
            if op.startswith(("v_fmac","v_pk_fmac","v_permlane","v_writelane","v_dot2c")) or "_sdwa" in op or self.dpp: self.r|=regs_of(ops[0])
            if op.startswith("v_permlane") and "swap" in op: self.w|=regs_of(ops[1])
            if op.startswith("v_cmpx"): self.w.add("exec")
        elif op.startswith("ds_"):
            self.kind="ds"
            if op.startswith(("ds_read","ds_bpermute","ds_permute","ds_swizzle")):
                self.w=regs_of(ops[0])
                for o in ops[1:]: self.r|=regs_of(o)
            else:
                for o in ops: self.r|=regs_of(o)
        elif op.startswith(("buffer_","global_")):
            self.kind="vmem"
            islds = bool(re.search(r"\blds\b", t)) or "load_lds" in op
            if "load" in op and not islds:
                self.w=regs_of(ops[0])
                for o in ops[1:]: self.r|=regs_of(o)
            else:
                for o in ops: self.r|=regs_of(o)
                if islds: self.r.add("m0")
                if "store" in op and ("x4" in op or "x3" in op):
                    self.storedata=regs_of(ops[0] if op.startswith("buffer_") else ops[1])
                if "atomic" in op and " sc0" in t: self.w=regs_of(ops[0])
        elif op.startswith("s_"):
            self.kind="salu"
            if op.startswith(("s_cmp","s_cbranch","s_branch","s_waitcnt","s_barrier","s_endpgm","s_sleep","s_setprio","s_setpc","s_bitcmp")):
                for o in ops: self.r|=regs_of(o)
            else:
                if ops: self.w=regs_of(ops[0])
                for o in ops[1:]: self.r|=regs_of(o)
                if "saveexec" in op: self.w.add("exec")

def need(prod, cons):
    n=0
    vw={x for x in prod.w if x[0] in "va" and x!="vcc"}
    sw={x for x in prod.w if x[0]=="s" or x=="vcc"}
    if prod.kind=="valu":
        if cons.kind=="mfma" and vw&cons.r: n=max(n,2)
        if cons.kind=="mfma" and "op_sel:" in prod.text: n=max(n,3)
        if cons.kind=="valu":
            if cons.dpp and vw&cons.r: n=max(n,2)
            if cons.op.startswith("v_permlane") and vw&cons.r: n=max(n,2)
            if cons.op.startswith(("v_readlane","v_readfirstlane")) and vw&cons.r: n=max(n,1)
            if sw&cons.r: n=max(n,4 if cons.op.startswith(("v_readlane","v_writelane","v_div_fmas")) else 2)
            if prod.op.split("_e")[0] in TRANS and vw&cons.r: n=max(n,1)
            if ("_sdwa" in prod.op or "op_sel" in prod.text) and vw&(cons.r|cons.w): n=max(n,1)
            if "exec" in prod.w: n=max(n,5)
        if prod.op.startswith("v_dot") and vw&(cons.r|cons.w):
            t=split_ops(cons.text.split(";")[0].split(None,1)[1])
            if not (cons.op==prod.op and not vw&(regs_of(t[1])|regs_of(t[2]))): n=max(n,3)
        if cons.kind=="vmem" and sw&cons.r: n=max(n,5)
        if cons.kind=="salu" and sw&cons.r: n=max(n,2)
        if cons.kind=="mfma" and "exec" in prod.w: n=max(n,4)
        if prod.op.split("_e")[0] in TRANS and cons.kind in("vmem","ds","mfma") and vw&cons.r: n=max(n,2)
    if prod.kind=="mfma":
        big={4:8,8:12}[prod.passes]
        if cons.kind=="mfma":
            if prod.w&cons.srcab: n=max(n,big)
            if prod.w&cons.srcc and not (prod.w==cons.srcc and prod.passes==cons.passes): n=max(n,big-2)
            if prod.w&cons.w and not prod.w&cons.srcc: n=max(n,big)
        elif cons.kind in("valu","vmem","ds"):
            if prod.w&(cons.r|cons.w): n=max(n,big)
            if cons.kind=="valu" and prod.srcc&cons.w: n=max(n,{4:3,8:7}[prod.passes])
    if prod.kind=="salu" and "m0" in prod.w and "m0" in cons.r and cons.kind in("vmem","ds"): n=max(n,1)
    if prod.storedata and prod.storedata&cons.w: n=max(n,2)
    return n

class Asm:
    def __init__(self): self.L=[]
    def __call__(self, s):
        for line in s.split("\n"):
            line=line.strip()
            if line: self.L.append(Ins(line))
    def extend(self, lst):
        for s in lst: self(s)
    def fix(self):
        out=[]; labels={}
        def pad(hist, cons):
            d=0; n=0
            for p in reversed(hist):
                if d>=20: break
                k=need(p,cons)
                if k>d: n=max(n,k-d)
                d+=p.states
            return n
        for ins in self.L:
            if not ins.label:
                n=pad(out,ins)
                if n: out.append(Ins(f"s_nop {n-1}"))
            else:
                t=ins.text.split(";")[0].strip()
                if t.endswith(":"): labels[t[:-1]]=len(out)
            out.append(ins)
        changed=True
        while changed:
            changed=False
            labels={}
            for i,ins in enumerate(out):
                t=ins.text.split(";")[0].strip()
                if ins.label and t.endswith(":"): labels[t[:-1]]=i
            for i,ins in enumerate(out):
                if ins.op.startswith(("s_cbranch","s_branch")):
                    tgt=ins.text.split(";")[0].split()[1]
                    if tgt not in labels: continue
                    hist=out[max(0,i-24):i+1]; j=labels[tgt]; d=0; worst=0
                    hist=list(hist)
                    base=len(hist)
                    while j<len(out) and d<20:
                        c=out[j]
                        if not c.label:
                            dd=d;
                            for p in reversed(hist[:base]):
                                if dd>=20: break
                                k=need(p,c)
                                if k>dd: worst=max(worst,k-dd)
                                dd+=p.states
                            d+=c.states
                            if c.op.startswith(("s_branch","s_endpgm","s_setpc")): break
                        j+=1
                    if worst:
                        out.insert(i,Ins(f"s_nop {worst-1}")); changed=True; break
        self.L=out
    def text(self):
        return "\n".join(("" if i.label else "    ")+i.text for i in self.L if i.text)+"\n"

def interleave(main, fill, start=0, end=None, per=None):
    end=len(main) if end is None else end
    n=end-start; out=[]; k=0
    for i,m in enumerate(main):
        out.append(m)
        if start<=i<end:
            tgt=((i-start+1)*len(fill)+n-1)//n if per is None else min(len(fill),(i-start+1)*per)
            while k<tgt: out.append(fill[k]); k+=1
    while k<len(fill): out.append(fill[k]); k+=1
    return out

def srd(a, s, lo, nbytes):
    a(f"s_mov_b32 s{s}, s{lo}\ns_and_b32 s{s+1}, s{lo+1}, 0xffff\ns_mov_b32 s{s+2}, {nbytes}\ns_mov_b32 s{s+3}, 0x20000")

def kdesc(name, vgpr, agpr=0, sgpr=102):
    acc=(vgpr+3)//4*4
    tot=acc+agpr if agpr else vgpr
    return (f".p2align 6\n.amdhsa_kernel {name}\n  .amdhsa_next_free_vgpr {tot}\n  .amdhsa_next_free_sgpr {sgpr}\n"
            f"  .amdhsa_accum_offset {acc}\n  .amdhsa_group_segment_fixed_size 0\n  .amdhsa_kernarg_size 112\n"
            f"  .amdhsa_user_sgpr_count 2\n  .amdhsa_user_sgpr_kernarg_segment_ptr 1\n  .amdhsa_system_sgpr_workgroup_id_x 1\n"
            f"  .amdhsa_float_denorm_mode_32 3\n.end_amdhsa_kernel\n")

def resolve_vm(paths):
    best={}
    def cnt(issued, seen, tags, cap):
        n=None
        for tg in tags:
            assert tg in seen, "wait on never-issued tag "+tg
            if tg in issued:
                c=issued[::-1].index(tg)
                n=c if n is None else min(n,c)
        return None if n is None else min(n,cap)
    def mn(a,b): return b if a is None else (a if b is None else min(a,b))
    for path in paths:
        vi=[];li=[];seen=set()
        for seg in path:
            for ins in seg.L:
                t=ins.text
                if t.startswith("@W"):
                    p=t.split()
                    vt=[] if p[1]=="-" else p[1].split(",")
                    lt=p[2] if len(p)>2 else "-"
                    if lt=="lgkmcnt(0)": lt="0"
                    n=cnt(vi,seen,vt,63)
                    m=0 if lt=="0" else cnt(li,seen,[] if lt=="-" else lt.split(","),15)
                    if n is not None: vi=vi[len(vi)-n:] if n else []
                    if m is not None: li=li[len(li)-m:] if m else []
                    k=id(ins)
                    if k in best: n,m=mn(best[k][1],n),mn(best[k][2],m)
                    best[k]=(ins,n,m)
                elif ins.kind in("vmem","ds"):
                    mm=re.search(r";\s*@(\S+)",t); tg=mm.group(1) if mm else "?"
                    if tg!="-":
                        (vi if ins.kind=="vmem" else li).append(tg); seen.add(tg)
                elif ins.op=="s_waitcnt" and "@-" not in t:
                    mm=re.search(r"vmcnt\((\d+)\)",t)
                    if mm: k=int(mm.group(1)); vi=vi[max(0,len(vi)-k):] if k else []
                    mm=re.search(r"lgkmcnt\((\d+)\)",t)
                    if mm: k=int(mm.group(1)); li=li[max(0,len(li)-k):] if k else []
    for ins,n,m in best.values():
        txt=(f" vmcnt({n})" if n is not None else "")+(f" lgkmcnt({m})" if m is not None else "")
        ins.__init__("s_waitcnt"+txt if txt else "")

def cost(item):
    c=0
    for l in item.split("\n"):
        l=l.strip()
        if not l or l.endswith(":"): continue
        if l.startswith("ds_write_b128"): c+=2.5
        elif l.startswith(("buffer_","global_")): c+=1.5
        elif l.startswith("v_pk_") or l.split()[0] in TRANS: c+=2
        elif l.startswith("ds_"): c+=1.2
        else: c+=1
    return c
class Gaps:
    def __init__(self, mf): self.mf=mf; self.g=[[] for _ in mf]; self.pre=[[] for _ in mf]
    def load(self,i):
        return sum(cost(x) for x in self.g[i])+(sum(cost(x) for x in self.pre[i+1]) if i+1<len(self.mf) else 1)
    def put(self, items, start=0, end=None):
        end=len(self.mf) if end is None else end
        n=end-start
        for k,it in enumerate(items): self.g[start+k*n//len(items)].append(it)
    def fit(self, items, start=0, end=None):
        end=len(self.mf) if end is None else end
        n=end-start; m=len(items); base=[self.load(start+i) for i in range(n)]; c=[cost(x) for x in items]
        INF=1e18
        f=[[INF]*(m+1) for _ in range(n+1)]; ch=[[0]*(m+1) for _ in range(n+1)]; f[0][0]=0
        for i in range(n):
            for k in range(m+1):
                if f[i][k]>=INF: continue
                tot=base[i]; dev=0
                for r in range(0,min(4,m-k)+1):
                    if r: tot+=c[k+r-1]; dev+=((k+r-0.5)*n/m-(i+0.5))**2
                    v=f[i][k]+tot*tot+4*max(0,tot-2.2)**2+0.01*dev
                    if v<f[i+1][k+r]: f[i+1][k+r]=v; ch[i+1][k+r]=r
        assert f[n][m]<INF
        k=m
        for i in range(n,0,-1):
            r=ch[i][k]; self.g[start+i-1]+=items[k-r:k]; k-=r
    def before(self, i, item): self.pre[i].append(item)
    def over(self): return sum(max(0,self.load(i)-2.2) for i in range(len(self.mf)))
    def emit(self, a):
        for m,p,f in zip(self.mf,self.pre,self.g):
            a.extend(p); a(m); a.extend(f)

from functools import lru_cache
class It(str):
    def __new__(cls, s, lid=0, skip=0):
        o=str.__new__(cls,s); o.lid=lid; o.skip=skip; return o
def far(s,k=2): return It(s,0,k)
def klass(l):
    op=l.split()[0]
    if l.endswith(":"): return None
    if op.startswith("@W"): return "s" if l.split()[1:] not in (["-"],["-","-"]) else None
    if op.startswith("ds_write"): return "w128" if ("128" in op or "write2_b64" in op) else "w64" if ("b64" in op or "write2" in op) else "w32"
    if op.startswith("ds_"): return "ds"
    if op.startswith(("buffer_","global_")):
        if "store" in op: return "st4" if ("x4" in op or "x3" in op) else "st2" if "x2" in op else "st1"
        return "at" if "atomic" in op else "vm"
    if op.startswith("v_pk_"): return "pk"
    if op.startswith("v_"): return "tr" if op in TRANS else "v"
    if op=="s_cbranch_vccnz" or op=="s_cbranch_vccz": return "bv"
    return "s"
@lru_cache(maxsize=None)
def seqcost(ks):
    t=4; vfree=8; dsf=vmf=0; mmin=16; lastv=-99; extra=0; pk=False; cmp_=False
    for k in ks:
        if k in("s","bv"):
            if k=="bv": extra+=3; t+=24 if cmp_ else 0
            t+=4
        elif k in("v","tr","pk","cmp"):
            x=max(t,vfree); d=8 if k=="tr" else 4
            if k=="pk" and not pk: pk=True; d=20
            t=vfree=x+d; lastv=x; cmp_|=k=="cmp"
        else:
            ds=k in("ds","w32","w64","w128"); x=max(t,lastv+8,dsf if ds else vmf)
            blk,mm,ex={"ds":(4,8,0),"vm":(4,8,2),"at":(4,8,4),"w32":(12,12,0.5),"w64":(17,17,0),"w128":(29,29,0),"st4":(20,36,0),"st2":(12,21,0),"st1":(8,15,0)}[k]
            t=x+blk; vfree=max(vfree,x+8); mmin=max(mmin,x+mm); extra+=ex
            if ds: dsf=x+8
            else: vmf=x+max(8,mm)
    nv=sum(k in("v","tr","cmp") for k in ks)
    return max(t,mmin,16)-16+extra+0.6*nv+0.2*(len(ks)-nv)
@lru_cache(maxsize=None)
def kinds(item): return tuple("cmp" if (k=="v" and l.startswith("v_cmp")) else k for l in (x.strip() for x in item.split("\n")) if l for k in (klass(l),) if k)
def best_order(items, tail=()):
    lists={}
    for it in items: lists.setdefault(getattr(it,"lid",0),[]).append(it)
    L=list(lists.values())
    if len(L)<=1 or len(items)>7: return seqcost(sum((kinds(x) for x in items),())+tail),list(items)
    best=[1e9,None]
    def rec(pos,seq):
        if len(seq)==len(items):
            c=seqcost(sum((kinds(x) for x in seq),())+tail)
            if c<best[0]-1e-9: best[0],best[1]=c,list(seq)
            return
        for j,l in enumerate(L):
            if pos[j]<len(l): pos[j]+=1; seq.append(l[pos[j]-1]); rec(pos,seq); seq.pop(); pos[j]-=1
    rec([0]*len(L),[])
    return best[0],best[1]
class Gaps2(Gaps):
    nl=0
    def tail(self,i): return sum((kinds(x) for x in self.pre[i+1]),()) if i+1<len(self.mf) else ("s",)
    def load(self,i): return best_order(self.g[i],self.tail(i))[0]
    def tag(self,items):
        Gaps2.nl+=1; return [It(x,Gaps2.nl,getattr(x,"skip",0)) for x in items]
    def put(self, items, start=0, end=None): Gaps.put(self,self.tag(items),start,end)
    def fit(self, items, start=0, end=None, spread=0.004):
        end=len(self.mf) if end is None else end
        items=self.tag(items); n=end-start; m=len(items); INF=1e18
        f={(0,2):(0.0,None)}; hist=[]
        for i in range(n):
            g=self.g[start+i]; tl=self.tail(start+i); nf={}; cc={}
            for (k,s_),(v0,_) in f.items():
                dev=0
                for r in range(0,min(5,m-k)+1):
                    if r:
                        it=items[k+r-1]
                        if it.skip>(s_ if r==1 else 0): break
                        dev+=((k+r-0.5)*n/m-(i+0.5))**2
                    if (k,r) not in cc: cc[k,r]=best_order(g+items[k:k+r],tl)[0]
                    key=(k+r,1 if r else min(2,s_+1)); v=v0+cc[k,r]+spread*dev
                    if key not in nf or v<nf[key][0]: nf[key]=(v,(k,s_))
            hist.append(nf); f=nf
        ends=[k for k in f if k[0]==m]; assert ends, ("no fit",items[:2],start,end)
        key=min(ends,key=lambda k:f[k][0])
        for i in range(n-1,-1,-1):
            prev=hist[i][key][1]; self.g[start+i]+=items[prev[0]:key[0]]; key=prev
    def finish(self):
        for i in range(len(self.mf)): self.g[i]=best_order(self.g[i],self.tail(i))[1]
    def over(self): return sum(self.load(i) for i in range(len(self.mf)))
    def emit(self,a): self.finish(); Gaps.emit(self,a)

import subprocess, tempfile, os
def ins_sizes(L):
    txt='.amdgcn_target "amdgcn-amd-amdhsa--gfx950"\n.text\n'+"\n".join(i.text for i in L if i.text and not i.text.startswith(".p2align")) +"\n"
    d=tempfile.mkdtemp(); open(d+"/a.s","w").write(txt)
    r=subprocess.run(["clang","-x","assembler","-target","amdgcn-amd-amdhsa","-mcpu=gfx950","-c",d+"/a.s","-o",d+"/a.o"],capture_output=True,text=True)
    assert r.returncode==0, r.stderr[:2000]
    o=subprocess.run(["llvm-objdump","-d","--mcpu=gfx950",d+"/a.o"],capture_output=True,text=True).stdout
    sz=[4*len(m.group(1).split()) for m in re.finditer(r"// [0-9A-F]{12}: ((?:[0-9A-F]{8} ?)+)",o)]
    out=[];k=0
    for i in L:
        if i.label or not i.text: out.append(0)
        else: out.append(sz[k]); k+=1
    assert k==len(sz),(k,len(sz))
    return out
def page_landings(L, origin, chains, nw=4):
    sz=ins_sizes(L); out=[]; off=None; cur=None; land={c[0]:[] for c in chains}; nextp=0; ez=False
    for ins,n in zip(L,sz):
        t=ins.text.split(";")[0].strip()
        if t==origin+":": off=0
        if t==".p2align 12" and off is not None: off=(off+4095)//4096*4096
        for c in chains:
            if t==c[2]+":" and cur==c[0]: cur=None
        for c in chains:
            if t==c[1]+":":
                cur=c[0]
                if off is not None: nextp=off
        if off is not None and n and off>=nextp and not ez:
            if cur:
                a=Ins(f"L_pl_{cur}_{len(land[cur])}:"); b=Ins("s_nop 0"); land[cur].append(b); out+= [a,b]; off+=4
            nextp=(off//4096+1)*4096
        out.append(ins)
        if "exec" in ins.w or t.startswith("s_mov_b64 exec"): ez = t!="s_mov_b64 exec, -1"
        if off is not None: off+=n
    for name,bs in land.items():
        for k,b in enumerate(bs): b.__init__(f"s_cbranch_execz "+(f"L_pl_{name}_{k+nw}" if k+nw<len(bs) else "L_wret"))
    z=False
    for i in out:
        t=i.text.split(";")[0].strip()
        if t.startswith("s_mov_b64 exec"): z = t!="s_mov_b64 exec, -1"
        assert not (z and t.startswith("s_cbranch_execz")), "landing inside a modified-EXEC window"
    return out,{k:len(v) for k,v in land.items()}

def check_pending(paths, ignore=("v255",)):
    for path in paths:
        q={"vmem":[],"ds":[]}
        for seg in path:
            for ins in seg.L:
                if ins.label or not ins.text: continue
                if ins.op=="s_waitcnt":
                    for k,p in (("vmem",r"vmcnt\((\d+)\)"),("ds",r"lgkmcnt\((\d+)\)")):
                        m=re.search(p,ins.text)
                        if m: n=int(m.group(1)); q[k]=q[k][max(0,len(q[k])-n):] if n else []
                    continue
                for k in q:
                    for w,t in q[k]:
                        bad=w&(ins.r|ins.w)
                        assert not bad or (ins.kind==k and not w&ins.r), f"{ins.text} touches {sorted(bad)} of pending {t}"
                if ins.kind in q and "@-" not in ins.text: q[ins.kind].append((ins.w-set(ignore),ins.text))
```

```python
WS_HT=0
WS_KVT=0x240000
WS_YC=0x480000
WS_U=0x6c0000
WS_STATS=0x6c0000+0x510000
WS_STAMP=WS_STATS+0x4000
WS_FLAGS=WS_STAMP+0x20000
WS_END=WS_FLAGS+0x40000
U2_PL=17*1024; U2_KS=4*U2_PL
WS_U2=WS_END
WS_END=WS_U2+144*U2_KS
WS_XC=WS_END
WS_END=WS_XC+256*20480
WS_XB=WS_END
WS_END=WS_XB+216*24576
WS_F4=WS_END
WS_END=WS_F4+1024*128
WS_F5=WS_END
WS_FU=WS_F5+1024*128
WS_END=WS_FU+2*32768
WS_XT=WS_END
WS_END=WS_XT+864*8192
WS_X4=(WS_END+0xffff)&~0xffff
WS_END=WS_X4+1024*16384
```

```python
import sys, struct, re
from asmlib import *
from layout import *
NAME="recurrent_scan__ssm_conv_h3__mixer_token_mlp__prompt"
KN=NAME+"_kernel"
OPT=dict(stamps=0, nln=4, nkv=0, npost=10, nA=10, rate=100, lat=3, lead1=2, lead2=2, cflag=0, nin=0, spinmax=100000, sleep=0,
         fpl=2, xm=1, w2=9, hrot=1, jp=23, jy=27, ostore="sc1", cvper=2, cvA=0, upad=1, b0=1, b1=1, nrot=18, tstep=0, maxb=8, jxp=29, jxf=25, gxl=0, xbf=1, xfl=1, nrk=3, cpl=5, cpr=0, w1w='3_3_4_6', rate2=100, q0=0, q1=0, bsp=1, jbf=44, jbp=49, jbl=53, jbu=57, nh=6, bursts='16.8_17.12_18.19_19.23', quiet=2, tburst=-1, cvs=0, bn=1, h0=4, iw=1, kvend=60, tlb=0, otouch=0, dx=1, hpat=0, hp2=0, badd=1, hs=0, hs2=0, dfit=0, tep='', tparts=1, tquiet=1, cvt=0, cvts=2, xrot=0, jxl=32, npre=0, gpre=0, npre33=0, nrg=14, jr0=2, jxr=6, n63=1, bch=1, cch=1, dch=2, f0=18, jrs=19, smove=2, je0=0, jen=12, clump=1, ramp=0, cfrac=100, pf=0, pfr=4, pf0=288, pfs=0, pfa=2, pfb=22, rgm=1, w2w='16_2', wd=2, wg=0, xe=0)
def f2h(x): return "0x%08x"%struct.unpack("<I",struct.pack("<f",x))[0]
S_Q,S_K,S_V,S_SK,S_SSM,S_D,S_BX,S_W1,S_B1,S_W2,S_B2,S_OUT,S_DBG,S_WS=16,18,20,22,24,26,28,30,32,34,36,38,40,42
WS="s[44:47]"; RW1="s[48:51]"; RW2="s[52:55]"; RA="s[56:59]"; RB_="s[60:63]"; RC="s[64:67]"
NONCE,N1,M1,N2,M2,LW,LH,TID=68,69,70,71,72,73,74,75
K1,K2,KA=76,84,18
NB_SD=2048*576*2
FLAG1=WS_FLAGS; FLAG2=WS_FLAGS+32768; FLAG3=WS_FLAGS+65536
SLOT=16384; HR=7*SLOT; HS=12288
LN_STR=1216; LN_ST=144896; KV_ST=LN_ST+8*LN_STR
OOB="0x40000000"
def P(r): return f"v[{r}:{r+1}]"
def Q(r,k="v"): return f"{k}[{r}:{r+3}]"
def flat(x): return sum(x,[])

def stamp(a,c,fine=None):
    if OPT.get("probe") is not None:
        if fine is None and c==OPT["probe"]: a("s_memrealtime s[28:29]\ns_waitcnt lgkmcnt(0)")
        return
    if OPT.get("fine") and fine!=OPT["fine"] and c!=14: return
    if fine and not OPT.get("fine"): return
    if OPT["stamps"]:
        a(f"s_memrealtime s[28:29]\ns_memtime s[0:1]\ns_waitcnt lgkmcnt(0)\nv_writelane_b32 v254, s28, {c}\nv_writelane_b32 v254, s0, {16+c}")
def stamps_out(a):
    a(f"s_lshl_b32 s4, s{TID}, 2\ns_add_u32 s4, s4, s3\ns_lshl_b32 s4, s4, 7\ns_add_u32 s4, s4, {WS_STAMP}\nv_lshlrev_b32 v255, 2, v2\ns_mov_b64 exec, 0xffffffff")
    a(f"buffer_store_dword v254, v255, {WS}, s4 offen")

def unpack(dst,src): return [f"v_and_b32 v{dst+1}, 0xffff0000, v{src}", f"v_lshlrev_b32 v{dst}, 16, v{src}"]
def reduce32(r,t):
    L=[f"v_add_f32_dpp v{r}, v{r}, v{r} row_ror:{sh} row_mask:0xf bank_mask:0xf" for sh in (8,4,2,1)]
    return L+[f"v_mov_b32 v{t}, v{r}", f"v_permlane16_swap_b32 v{r}, v{t}", f"v_add_f32 v{r}, v{r}, v{t}"]
def rbf(r): return [f"v_cvt_pk_bf16_f32 v{r}, v{r}, v{r}", f"v_lshlrev_b32 v{r}, 16, v{r}"]
NEG1="op_sel_hi:[1,0] neg_lo:[0,1] neg_hi:[0,1]"
def ln_fused(X,T,M,RS,D,ST):
    L=[f"v_pk_add_f32 {P(T+2*i)}, {P(X+4*i)}, {P(X+4*i+2)}" for i in range(4)]
    L+=[f"v_pk_add_f32 {P(T)}, {P(T)}, {P(T+2)}", f"v_pk_add_f32 {P(T+4)}, {P(T+4)}, {P(T+6)}", f"v_pk_add_f32 {P(T)}, {P(T)}, {P(X+16)}", f"v_pk_add_f32 {P(T)}, {P(T)}, {P(T+4)}"]
    L+=[f"v_add_f32 v{M}, v{T}, v{T+1}"]+reduce32(M,M+1)+[f"v_mul_f32 v{M}, 0x3ae38e39, v{M}"]
    L+=[f"v_pk_add_f32 {P(X+2*j)}, {P(X+2*j)}, {P(M)} {NEG1}" for j in range(9)]
    L+=[f"v_pk_mul_f32 {P(T)}, {P(X)}, {P(X)}", f"v_pk_mul_f32 {P(T+2)}, {P(X+2)}, {P(X+2)}"]
    L+=[f"v_pk_fma_f32 {P(T+2*(j&1))}, {P(X+2*j)}, {P(X+2*j)}, {P(T+2*(j&1))}" for j in range(2,9)]
    L+=[f"v_pk_add_f32 {P(T)}, {P(T)}, {P(T+2)}", f"v_add_f32 v{RS}, v{T}, v{T+1}"]+reduce32(RS,RS+1)
    L+=[f"v_mul_f32 v{RS}, 0x3ae38e39, v{RS}"]
    L+=[f"v_cvt_pk_bf16_f32 v{T}, v{M}, v{RS}", f"v_lshlrev_b32 v{ST}, 16, v{T}", f"v_and_b32 v{T}, 0xffff0000, v{T}",
        f"v_add_f32 v{T}, 0x3727c5ac, v{T}", f"v_sub_f32 v{M}, v{M}, v{ST}"]+rbf(T)+[f"v_sqrt_f32 v{T}, v{T}"]+rbf(T)+[f"v_rcp_f32 v{ST+1}, v{T}"]
    L+=[f"v_mul_f32 v{M}, v{M}, v{ST+1}", f"v_mul_f32 v{RS}, v{RS}, v{ST+1}", f"v_mul_f32 v{RS}, v{RS}, v{ST+1}",
        f"v_cvt_pk_bf16_f32 v{T}, v{M}, v{RS}", f"v_lshlrev_b32 v{T+1}, 16, v{T}", f"v_and_b32 v{T}, 0xffff0000, v{T}",
        f"v_add_f32 v{T}, 0x3727c5ac, v{T}", f"v_sub_f32 v{M}, v{M}, v{T+1}"]+rbf(T)+[f"v_sqrt_f32 v{T}, v{T}"]+rbf(T)+[f"v_rcp_f32 v{T}, v{T}"]
    L+=[f"v_mul_f32 v{RS}, v{ST+1}, v{T}", f"v_mul_f32 v{M}, v{M}, v{T}"]
    L+=[f"v_pk_fma_f32 {P(X+2*j)}, {P(X+2*j)}, {P(RS)}, {P(M)} op_sel_hi:[1,0,0]" for j in range(9)]
    L+=[f"v_cvt_pk_bf16_f32 v{D+j}, v{X+2*j}, v{X+2*j+1}" for j in range(9)]
    return L

VW2,VA,VAM,RB2,XR,ST,PV,B2,XO=4,8,9,10,14,26,28,30,252
ACC2,RT,AF,WV=32,116,140,220
ACC1,HF,BIAS,VW1,RW1B,VH,RH,GT=32,80,144,148,152,156,159,160
NT=18; NREG=15
SIGMA={15:9,16:0,17:1}

def w2reg(t): return ("a",16*t) if t<16 else ("v",WV+16*(t-16))
def w2dma(t,slot):
    L=[f"s_add_u32 m0, s{LW}, {slot*SLOT}\ns_lshl_b32 s14, s{K2+t}, 17"]
    return L+[f"buffer_load_dwordx4 v{VW2+r}, {RW2}, s14 offen offset:{1024*r} lds ; @w2_{t}" for r in range(4)]
def krow(dst): return f"s_and_b32 s{dst}, s{M2}, 1\ns_lshl_b32 s{dst}, s{dst}, 2\ns_add_u32 s{dst}, s{dst}, s3"
class W2R:
    def __init__(self): self.win=0
    def goto(self,w):
        d=(w-self.win)*65536; self.win=w
        return [f"v_add_u32 v{RB2+nt}, {d}, v{RB2+nt}" for nt in range(4)] if d else []
    def reads(self,t,slot):
        kind,r0=w2reg(t); adj=self.goto(slot>>2); L=[]
        for nt in range(4):
            for hf in range(2):
                s=f"ds_read_b64_tr_b16 {kind}[{r0+4*nt+2*hf}:{r0+4*nt+2*hf+1}], v{RB2+nt} offset:{(slot&3)*SLOT+2048*hf} ; @r2_{t}"
                L.append((adj[nt]+"\n" if adj and hf==0 else "")+s)
        return L
def w2setup():
    L=["v_lshrrev_b32 v24, 3, v2","v_and_b32 v25, 7, v2","v_bfe_u32 v31, v2, 4, 2","v_lshlrev_b32 v31, 1, v31","v_xor_b32 v25, v25, v31","v_lshlrev_b32 v24, 12, v24","v_lshl_add_u32 v24, v25, 4, v24",
       krow(7)+f"\ns_mul_i32 s7, s7, {576*4096}\ns_lshl_b32 s8, s{N2}, 7\ns_add_u32 s7, s7, s8\nv_add_u32 v{VW2}, s7, v24"]
    L+=[f"v_add_u32 v{VW2+i}, {32768-1024}, v{VW2+i-1}" for i in range(1,4)]
    L+=["v_lshrrev_b32 v24, 2, v2","v_lshlrev_b32 v24, 7, v24","v_and_b32 v25, 3, v2","v_lshl_add_u32 v24, v25, 3, v24",f"v_add_u32 v24, s{LW}, v24","v_bfe_u32 v31, v2, 3, 2","v_xor_b32 v31, s3, v31"]
    for nt in range(4): L+=[f"v_xor_b32 v25, {nt}, v31", f"v_lshl_add_u32 v{RB2+nt}, v25, 5, v24"]
    return L
def k2table():
    if OPT["w2w"]:
        L=[]; b=0; ws=[int(x) for x in str(OPT["w2w"]).split("_")]; assert sum(ws)==18 and ws[-1]>1
        for W in ws:
            L.append(f"s_mul_i32 s{K2+b}, s{K2+17}, {W}\ns_lshr_b32 s{K2+b}, s{K2+b}, 2\ns_add_u32 s{K2+b}, s{K2+b}, {b}")
            L+=[f"s_add_u32 s{K2+i}, s{K2+i-1}, 1\ns_cmp_eq_u32 s{K2+i}, {b+W}\ns_cselect_b32 s{K2+i}, {b}, s{K2+i}" for i in range(b+1,b+W)]
            b+=W
        return L
    W=OPT["w2"]; NRot=OPT["nrot"]
    L=[f"s_add_u32 s{K2+i}, s{K2+i-1}, 1\ns_cmp_eq_u32 s{K2+i}, {W}\ns_cselect_b32 s{K2+i}, 0, s{K2+i}" for i in range(1,W)]
    return L+[f"s_add_u32 s{K2+i}, s{K2+i-W}, {W}" for i in range(W,NRot)]+[f"s_mov_b32 s{K2+i}, {i}" for i in range(NRot,18)]
def tailtouch(v=1):
    n=(18-OPT["nrot"])*8
    if not n: return []
    k=OPT["tparts"]; m=n//k; assert n%k==0 and m<=64
    L=[krow(15)+f"\ns_mul_i32 s15, s15, 576\ns_lshr_b32 s6, s{M2}, 1\ns_mul_i32 s6, s6, {n}\ns_add_u32 s15, s15, s6\ns_add_u32 s15, s15, {OPT['nrot']*32}\nv_min_u32 v{v}, {m-1}, v2\nv_add_u32 v{v}, s15, v{v}\nv_lshlrev_b32 v{v}, 12, v{v}\ns_lshl_b32 s15, s{N2}, 7"]
    return L+[f"buffer_load_dword v255, v{v}, {RW2}, s15 offen ; @tt"+(f"\ns_add_u32 s15, s15, {m*4096}" if i<k-1 else "") for i in range(k)]
def auxpf(v):
    rp=OPT["pfr"]; f0=OPT["pf0"]; per=-(-(576-f0)//(5*rp)); skip=OPT["pfs"]
    L=[krow(15)+f"\ns_mul_i32 s15, s15, 576\ns_lshr_b32 s6, s2, 3\ns_sub_u32 s6, s6, 27\ns_mul_i32 s6, s6, {rp}\ns_add_u32 s15, s15, s6\ns_add_u32 s15, s15, {f0}\ns_lshl_b32 s15, s15, 12\n"
       f"s_lshr_b32 s6, s{N2}, 3\ns_lshl_b32 s6, s6, 10\ns_add_u32 s15, s15, s6\nv_lshrrev_b32 v{v}, 3, v2\nv_min_u32 v{v}, {rp-1}, v{v}\nv_and_b32 v255, 7, v2\n"
       +("v_cmp_eq_u32 vcc, 3, v255\nv_cndmask_b32 v255, v255, 2, vcc\n" if skip else "")+f"v_lshlrev_b32 v{v}, 12, v{v}\nv_lshl_add_u32 v{v}, v255, 7, v{v}"]
    return L+[f"buffer_load_dword v255, v{v}, {RW2}, s15 offen ; @pf\ns_add_u32 s15, s15, {5*rp*4096}" for i in range(per)]
def eprep():
    return [f"v_and_b32 v24, 15, v2\ns_lshl_b32 s7, s{N2}, 6\ns_lshl_b32 s8, s3, 4\ns_add_u32 s7, s7, s8\nv_add_u32 v24, s7, v24\nv_mul_u32_u24 v25, 1152, v24",
            f"v_lshrrev_b32 v31, 4, v2\nv_lshl_add_u32 v25, v31, 3, v25\ns_mul_i32 s8, s{M2}, 144\nv_add_u32 v25, s8, v25\ns_and_b32 s7, s{M2}, 1\ns_lshl_b32 s8, s7, 4\nv_add_u32 v{XO}, s8, v25",
            f"s_mul_i32 s8, s7, 144\ns_sub_u32 s8, 128, s8\nv_add_u32 v25, s8, v25\nv_lshrrev_b32 v31, 5, v2\nv_cmp_eq_u32 vcc, s7, v31\nv_mov_b32 v31, {OOB}\nv_cndmask_b32 v{XO+1}, v31, v25, vcc",
            f"v_lshlrev_b32 v25, 1, v24\nv_lshlrev_b32 v{ST}, 3, v24\nbuffer_load_ushort v{B2}, v25, {RB_}, 0 offen ; @eb"]

COLD=[]
def flag_prep(idx_sgpr, base, v=1):
    f=OPT["fpl"]
    return [f"s_lshr_b32 s4, s{idx_sgpr}, {f}\ns_lshl_b32 s4, s4, 7\ns_and_b32 s5, s{idx_sgpr}, {(1<<f)-1}\ns_lshl2_add_u32 s4, s5, s4\ns_add_u32 s4, s4, {base}",
            f"v_min_u32 v{v}, 1, v0\nv_lshlrev_b32 v{v}, 30, v{v}\nv_add_u32 v{v}, s4, v{v}"]
def flag_store(a): a(f"v_mov_b32 v3, s{NONCE}\nbuffer_store_dword v3, v1, {WS}, 0 offen sc1 ; @fl")
def pv(tag): return 18 if tag=="p2G" else PV
def poll_addr(first_expr, n, base, v=PV):
    f=OPT["fpl"]
    return [first_expr+f"\nv_min_u32 v{v}, {n-1}, v2", f"v_add_u32 v{v}, s4, v{v}", f"v_and_b32 v{v+1}, {(1<<f)-1}, v{v}", f"v_lshrrev_b32 v{v}, {f}, v{v}",
            f"v_lshlrev_b32 v{v}, 7, v{v}", f"v_lshl_add_u32 v{v}, v{v+1}, 2, v{v}", f"v_add_u32 v{v}, {base}, v{v}"]
def poll_issue(tag): return f"buffer_load_dword v{pv(tag)+1}, v{pv(tag)}, {WS}, 0 offen sc1 ; @{tag}"
def poll_check(tag):
    v=pv(tag); sl=f"s_sleep {OPT['sleep']}\n" if OPT["sleep"] else ""
    if not any(c.startswith(f"L_rs_{tag}:") for c in COLD): COLD.append(f"L_rs_{tag}:\ns_mov_b32 s5, 0\nL_rt_{tag}:\ns_mov_b64 exec, vcc\n{sl}"
            f"buffer_load_dword v{v+1}, v{v}, {WS}, 0 offen sc1\ns_waitcnt vmcnt(0)\nv_cmp_ne_u32 vcc, s{NONCE}, v{v+1}\ns_cbranch_vccz L_rx_{tag}\n"
            f"s_add_u32 s5, s5, 1\ns_cmp_lt_u32 s5, {OPT['spinmax']}\ns_cbranch_scc1 L_rt_{tag}\nL_rx_{tag}:\ns_mov_b64 exec, -1\ns_branch L_ok_{tag}")
    return f"@W {tag}\nv_cmp_ne_u32 vcc, s{NONCE}, v{v+1}\ns_cbranch_vccnz L_rs_{tag}\nL_ok_{tag}:"
def poll1_addr(): return poll_addr("s_lshl_b32 s4, s3, 6",64,FLAG1)
def poll2_addr(v=PV):
    L=poll_addr(krow(4)+f"\ns_mul_i32 s4, s4, 18\ns_lshr_b32 s4, s4, 2\ns_mul_i32 s4, s4, 6\ns_lshr_b32 s5, s{M2}, 1\ns_mul_i32 s5, s5, 3\ns_lshr_b32 s5, s5, 1\ns_add_u32 s4, s4, s5",10,FLAG2,v)
    return L[:1]+[f"v_lshrrev_b32 v{v+1}, 1, v{v}", f"v_lshl_add_u32 v{v}, v{v+1}, 2, v{v}"]+L[1:]

def warm(name):
    if not OPT["iw"]: return []
    return [f"s_mov_b64 exec, 0\ns_call_b64 s[82:83], L_wc_{name}\ns_mov_b64 exec, -1"]

KR,VR,TR=60,82,98
KL=HR; VL=HR+12672
def p0(a):
    a(f".globl {KN}\n.p2align 8\n.type {KN},@function\n{KN}:")
    a("s_cmp_lt_u32 s2, 256\ns_cbranch_scc0 L_exit")
    a("s_load_dwordx2 s[56:57], s[0:1], 0\ns_load_dwordx2 s[48:49], s[0:1], 8\ns_load_dwordx2 s[52:53], s[0:1], 16\ns_load_dwordx2 s[60:61], s[0:1], 24")
    a("s_load_dwordx16 s[16:31], s[0:1], 0\ns_load_dwordx8 s[32:39], s[0:1], 64\ns_load_dwordx4 s[40:43], s[0:1], 96\ns_memrealtime s[12:13]")
    a("v_lshrrev_b32 v1, 6, v0\nv_and_b32 v2, 63, v0")
    nl=OPT["cpl"]; red=OPT["cpr"]
    a(f"s_getpc_b64 s[6:7]\nL_pc:\ns_lshr_b32 s4, s2, 1\ns_and_b32 s4, s4, {(128>>red)-4}\nv_add_u32 v22, s4, v1\nv_lshl_add_u32 v22, v2, {7-red}, v22\nv_lshlrev_b32 v22, 7, v22")
    a(f"v_min_u32 v22, L_end-L_pc-4, v22\ns_mov_b64 exec, {(1<<nl)-1}\nglobal_load_dword v255, v22, s[6:7] ; @code\ns_mov_b64 exec, -1\nv_readfirstlane_b32 s3, v1")
    if OPT["rgm"]: a(f"s_and_b32 s4, s2, 7\ns_lshr_b32 s5, s2, 3\ns_lshl_b32 s4, s4, 5\ns_add_u32 s{NONCE}, s4, s5")
    else: a(f"s_mov_b32 s{NONCE}, s2")
    a(f"v_lshrrev_b32 v3, 5, v0\nv_and_b32 v4, 31, v0\nv_mul_u32_u24 v5, 1152, v3\nv_mad_u32_u24 v5, v4, 12, v5\ns_mul_i32 s15, s{NONCE}, 9216")
    a(f"s_mul_i32 s4, s3, 3072\ns_add_u32 s5, s4, s15\ns_sub_u32 s5, s5, 3456\nv_lshlrev_b32 v6, 4, v2\nv_add_u32 v7, s5, v6\nv_add_u32 v58, 1024, v7")
    a(f"s_add_u32 s4, s4, {KL}\ns_lshl_b32 s5, s3, 11\ns_add_u32 s11, s5, s15\ns_add_u32 s5, s5, {VL}\ns_mov_b32 m0, s4")
    for r,nb in ((56,NB_SD),(48,NB_SD),(52,NB_SD),(60,576*8)): a(f"s_mov_b32 s{r+2}, {nb}\ns_mov_b32 s{r+3}, 0x20000")
    a("v_lshlrev_b32 v59, 3, v0\ns_movk_i32 s10, 4096")
    a("s_waitcnt lgkmcnt(0)")
    stamp(a,1,"P")
    for j in range(3): a(f"buffer_load_dwordx3 v[{8+4*j}:{10+4*j}], v5, {RA}, s15 offen offset:{384*j} ; @x")
    a("buffer_load_dwordx4 v7, s[48:51], 0 offen lds ; @kv\ns_add_u32 m0, s4, 1024\ns_cmp_eq_u32 s3, 3")
    a("buffer_load_dwordx4 v58, s[48:51], 0 offen lds ; @kv\nbuffer_load_dwordx4 v58, s[48:51], 0 offen offset:1024 lds ; @kv\ns_cbranch_scc1 L_xld\nL_nox:\ns_mov_b32 m0, s5")
    COLD.insert(0,"L_xld:\ns_mov_b64 exec, 0xffffff\nbuffer_load_dwordx4 v58, s[48:51], 0 offen offset:2048 lds\ns_mov_b64 exec, -1\ns_mov_b32 m0, s5\nbuffer_load_dwordx4 v6, s[52:55], s11 offen offset:2048 lds\ns_branch L_nox")
    a(f"buffer_load_dwordx2 {P(TR)}, v59, {RB_}, 0 offen ; @kv")
    a("buffer_load_dwordx4 v6, s[52:55], s11 offen lds ; @kv\nbuffer_load_dwordx4 v6, s[52:55], s11 offen offset:1024 lds ; @kv")
    a(f"buffer_load_dwordx2 {P(TR+2)}, v59, {RB_}, 0 offen offset:2048 ; @kv\nbuffer_load_dwordx2 {P(TR+4)}, v59, {RB_}, s10 offen ; @kv")
    srd(a,64,S_DBG,256)
    if OPT["stamps"]: a("v_writelane_b32 v254, s12, 0")
    a(f"s_or_b32 s12, s12, 1\nv_or_b32 v22, s2, v0\nv_lshlrev_b32 v22, 8, v22\nv_mov_b32 v23, s12\nbuffer_store_dword v23, v22, {RC}, 0 offen sc1 ; @pub")
    stamp(a,2,"P")
    srd(a,44,S_WS,WS_END)
    a("s_and_b32 s5, s2, 7\ns_lshr_b32 s6, s2, 3")
    a(f"s_lshr_b32 s7, s6, 2\ns_lshr_b32 s13, s5, 1\ns_cmp_ge_u32 s7, 3\ns_addc_u32 s8, s7, 0\ns_cmp_eq_u32 s7, 7\ns_cselect_b32 s8, 3, s8\ns_lshl3_add_u32 s{N2}, s13, s8")
    a(f"s_and_b32 s7, s6, 3\ns_and_b32 s4, s5, 1\ns_lshl1_add_u32 s{M2}, s7, s4")
    if OPT["xrot"]==1: a("s_add_u32 s7, s7, s13\ns_and_b32 s7, s7, 3")
    if OPT["xrot"]==2: a("s_lshr_b32 s8, s6, 2\ns_add_u32 s7, s7, s8\ns_and_b32 s7, s7, 3")
    if OPT["xrot"]==3: a("s_lshr_b32 s8, s6, 2\ns_and_b32 s8, s8, 1\ns_lshl1_add_u32 s7, s8, s7\ns_and_b32 s7, s7, 3")
    if OPT["w2w"]: a(f"s_mov_b32 s{K2+17}, s7")
    a(f"s_mul_i32 s7, s7, {OPT['w2']}\ns_lshr_b32 s{K2}, s7, 2\ns_lshl_b32 s{LW}, s3, 12")
    srd(a,52,S_W2,4608*4096)
    if OPT["smove"]<2: a.extend(k2table())
    a("s_cmp_lt_u32 s6, 27\ns_cbranch_scc0 L_aux")
    if OPT["iw"]==1: a("s_branch L_org\nL_exit:\ns_endpgm\n.p2align 12\nL_org:")
    else: COLD.append("L_exit:\ns_endpgm")

def phaseA(a, tag, fill_ln, fill_kv, fill_post):
    X,T,M,RS,D=20,38,56,18,8
    L=flat([unpack(X+2*j,8+4*(j//3)+j%3) for j in range(9)])+ln_fused(X,T,M,RS,D,106)
    a(f"s_mov_b32 s9, {LN_ST}\ns_mov_b32 s11, {KL}")
    stamp(a,3,"P")
    if OPT.get("fine")=="P":
        a("s_waitcnt vmcnt(12)"); stamp(a,4,"P")
        a("s_waitcnt vmcnt(9)"); stamp(a,5,"P")
        a("s_waitcnt vmcnt(6)"); stamp(a,6,"P")
        a("s_waitcnt vmcnt(4)"); stamp(a,7,"P")
        a("s_waitcnt vmcnt(1)"); stamp(a,8,"P")
        a("s_waitcnt vmcnt(0)"); stamp(a,9,"P")
    a("@W x"); stamp(a,1)
    a.extend(interleave(L,fill_ln,0,len(L)-4) if fill_ln else L)
    a(f"v_lshrrev_b32 v3, 5, v0\nv_and_b32 v1, 31, v0\nv_mul_u32_u24 v17, {LN_STR}, v3\nv_mad_u32_u24 v17, v1, 12, v17\nv_add_u32 v17, {LN_ST}, v17")
    for j in range(9): a(f"ds_write_b32 v17, v{D+j} offset:{384*(j//3)+4*(j%3)}")
    a(f"v_lshlrev_b32 v3, 3, v3\ns_lshl_b32 s5, s{NONCE}, 6\ns_add_u32 s5, s5, {WS_STATS}\nv_cmp_eq_u32 vcc, 0, v1\nv_mov_b32 v18, {OOB}\nv_cndmask_b32 v3, v18, v3, vcc")
    a(f"buffer_store_dwordx2 v[106:107], v3, {WS}, s5 offen sc1 ; @st")
    a(f"v_lshrrev_b32 v19, 4, v0\nv_and_b32 v17, 3, v2\nv_lshlrev_b32 v17, 3, v17\nv_lshl_add_u32 v19, v19, 5, v17\nv_bfe_u32 v6, v2, 2, 2\nv_mul_u32_u24 v17, {LN_STR}, v6\nv_mul_u32_u24 v6, 1152, v6")
    a(f"v_add3_u32 v17, v17, v19, s9\nv_add3_u32 v6, v6, v19, s11")
    a(f"v_lshlrev_b32 v19, 4, v0\ns_add_u32 s7, s15, 4096\ns_add_u32 s8, s15, 8192\ns_cmp_eq_u32 s3, 0\ns_cselect_b32 s8, s8, {OOB}\nv_add_u32 v18, {WS_KVT}, v19\nv_mov_b32 v44, 0")
    a("@W kv 0\ns_barrier")
    hrd=[[f"ds_read_b64_tr_b16 {P(20+4*i)}, v17 offset:{512*i} ; @ht{i}", f"ds_read_b64_tr_b16 {P(22+4*i)}, v17 offset:{512*i+4*LN_STR} ; @ht{i}"] for i in range(3)]
    so=("s15","s7","s8")
    hst=[f"@W - ht{i}\nbuffer_store_dwordx4 {Q(20+4*i)}, v19, {WS}, {so[i]} offen sc1 ; @st" for i in range(3)]
    krd=[[f"ds_read_b64_tr_b16 {P(KR+10*i+2*q)}, v6 offset:{512*i+1152*(0,4,8,11,15)[q]} ; @kr{i}" for q in range(5)] for i in range(3)]
    a.extend(krd[0]+flat(hrd)+krd[1][:4])
    stamp(a,2)
    def kvc(i):
        K=KR+10*i; V_=K+6; J=108; T=114; RE=116+8*(i&1); VU=132; O=160+4*i
        L=[f"v_alignbit_b32 v{T}, v{TR+2*i+1}, v{TR+2*i+1}, 16", f"v_alignbit_b32 v{T+1}, v{TR+2*i}, v{TR+2*i}, 16", f"@W - kr{i}"]
        L+=[f"v_alignbit_b32 v{J+m}, v{K+m+1}, v{K+m}, 16" for m in range(5)]
        L+=[f"v_dot2_f32_bf16 v{RE+r}, v{(J if r&1 else K)+(r>>1)}, v{T}, 0" for r in range(8)]
        L+=[f"v_dot2_f32_bf16 v{RE+r}, v{(J if r&1 else K)+(r>>1)+1}, v{T+1}, v{RE+r}" for r in range(8)]
        L+=flat([unpack(VU+2*m,V_+m) for m in range(4)])
        L+=[f"v_pk_mul_f32 {P(RE+2*m)}, {P(RE+2*m)}, {P(VU+2*m)}" for m in range(4)]
        L+=[f"v_cvt_pk_bf16_f32 v{O+p}, v{RE+7-2*p}, v{RE+6-2*p}" for p in range(4)]
        return L+[f"buffer_store_dwordx4 {Q(O)}, v18, {WS}, {so[i]} offen sc1 ; @st"]
    c0=kvc(0)
    L=c0[:8]+interleave(c0[8:],krd[1][4:]+krd[2]+hst,0,24)+kvc(1)+kvc(2)
    a.extend(interleave(L,fill_kv,10,OPT['kvend']) if fill_kv else L)
    a(f"buffer_load_dword v45, v44, {RC}, 0 offen sc1 ; @nonce")
    stamp(a,3)
    a.extend(fill_post)
    a(f"s_bfe_u32 s6, s{NONCE}, 0x20001\ns_lshl_b32 s6, s6, 6\ns_lshr_b32 s7, s{NONCE}, 3\ns_lshl_b32 s7, s7, 1\ns_add_u32 s6, s6, s7\ns_and_b32 s7, s{NONCE}, 1\ns_add_u32 s6, s6, s7")
    a.extend(flag_prep(6,FLAG1))
    a(f"@W nonce\nv_readfirstlane_b32 s{NONCE}, v45\ns_cmp_eq_u32 s{NONCE}, 0\ns_cbranch_scc1 L_nw_{tag}\nL_ng_{tag}:\ns_barrier")
    COLD.append(f"L_nw_{tag}:\ns_mov_b32 s5, 0\nL_nl_{tag}:\nbuffer_load_dword v45, v44, {RC}, 0 offen sc1\ns_waitcnt vmcnt(0)\nv_readfirstlane_b32 s{NONCE}, v45\n"
                f"s_cmp_lg_u32 s{NONCE}, 0\ns_cbranch_scc1 L_ng_{tag}\ns_add_u32 s5, s5, 1\ns_cmp_lt_u32 s5, {OPT['spinmax']}\ns_cbranch_scc1 L_nl_{tag}\ns_branch L_ng_{tag}")
    flag_store(a)
    stamp(a,4)

SIGG={}
def private_steps(R, inflight, free, todo, nxt_drain, role="X"):
    steps=[]; free=list(free); todo=list(todo); inflight=dict(inflight)
    nreg=NREG if role=="X" else OPT["nrg"]
    def pick(t):
        if role=="G":
            if t<nreg: return 8 if 8 in free else (free or [None])[0]
            return ([s for s in free if s!=8] or [None])[0]
        if t in SIGMA: return SIGMA[t] if SIGMA[t] in free else None
        nr=[s for s in free if s not in SIGMA.values()]
        left=len([x for x in todo if x<NREG])
        return (nr or (free if left>4 else []) or [None])[0]
    def issue():
        for t in todo:
            s=pick(t)
            if s is not None:
                todo.remove(t); free.remove(s); inflight[t]=s
                if role=="G" and t>=nreg: SIGG[t]=s
                return w2dma(t,s)
            if role=="G" or (t<NREG and len([x for x in todo if x<NREG])>4): break
        return []
    while True:
        d=issue()
        if not d: break
        steps.append(d)
    prev=None
    for t in nxt_drain:
        st=[f"@W w2_{t} "+(f"r2_{prev}" if (prev is not None and todo) else "-")]
        dm=[]
        if prev is not None:
            free.append(inflight.pop(prev)); dm=issue()
        steps.append(st+interleave(R.reads(t,inflight[t]),dm)); prev=t
    if prev is not None:
        free.append(inflight.pop(prev)); steps.append([f"@W - r2_{prev}"]+issue())
    while todo:
        d=issue(); assert d; steps.append(d)
    return steps

def roleG(a):
    a(f"s_mul_i32 s7, s6, 21846\ns_lshr_b32 s7, s7, 16\ns_mul_i32 s8, s7, 3\ns_sub_u32 s12, s6, s8\ns_mul_i32 s8, s13, 9\ns_add_u32 s{N1}, s8, s7\ns_lshl1_add_u32 s{M1}, s12, s4")
    a(f"s_mul_i32 s8, s{N1}, 6\ns_add_u32 s{TID}, s8, s{M1}")
    srd(a,48,S_W1,2048*4608*2)
    if OPT["hrot"]: a("s_add_u32 s12, s12, s7\ns_mul_i32 s8, s12, 21846\ns_lshr_b32 s8, s8, 16\ns_mul_i32 s8, s8, 3\ns_sub_u32 s12, s12, s8")
    KT=list(range(18,28))+list(range(76,82)); b=0
    a(f"s_mul_i32 s4, s4, {16*73728}")
    for W in [int(x) for x in str(OPT["w1w"]).split("_")]:
        a(f"s_mul_i32 s7, s12, {W*21846}\ns_lshr_b32 s7, s7, 16\ns_mul_i32 s7, s7, 73728\ns_add_u32 s5, s4, {b*73728}\ns_add_u32 s{KT[b]}, s7, s5\ns_add_u32 s8, s5, {W*73728}")
        for i in range(b+1,b+W): a(f"s_add_u32 s{KT[i]}, s{KT[i-1]}, 73728\ns_cmp_eq_u32 s{KT[i]}, s8\ns_cselect_b32 s{KT[i]}, s5, s{KT[i]}")
        b+=W
    assert b==16
    NW1=16
    a("v_lshrrev_b32 v24, 4, v2\nv_and_b32 v25, 15, v2\nv_lshlrev_b32 v26, 1, v24\nv_xor_b32 v25, v25, v26\nv_mul_u32_u24 v24, 9216, v24\nv_lshl_add_u32 v24, v25, 4, v24")
    a(f"s_mul_i32 s7, s3, {16*9216}\ns_lshl_b32 s8, s{N1}, 8\ns_add_u32 s7, s7, s8\nv_add_u32 v{VW1}, s7, v24\nv_add_u32 v{VW1+1}, {36864-1024}, v{VW1}")
    a(f"v_xor_b32 v24, 128, v{VW1}\nv_add_u32 v{VW1+2}, {2*(36864-1024)}, v24\nv_add_u32 v{VW1+3}, {36864-1024}, v{VW1+2}")
    def w1dma(q,slot):
        L=[f"s_add_u32 m0, s{LW}, {slot*SLOT}\ns_lshl_b32 s14, s{KT[q]}, 3"]
        return L+[f"buffer_load_dwordx4 v{VW1+r}, {RW1}, s14 offen offset:{1024*r} lds ; @w1_{q}" for r in range(4)]
    def w1reads(q,slot):
        L=[]
        for ks in range(2):
            for ft in range(2):
                for hf in range(2):
                    r0=16*(q&15)+8*ks+4*ft+2*hf
                    L.append(f"ds_read_b64_tr_b16 a[{r0}:{r0+1}], v{RW1B+2*(slot>>2)+ft} offset:{(slot&3)*SLOT+ks*8192+hf*1024} ; @r1_{q}")
        return L
    rb=["v_bfe_u32 v140, v2, 2, 2","v_lshrrev_b32 v141, 4, v2","v_lshl_add_u32 v142, v141, 3, v140","v_lshlrev_b32 v142, 8, v142","v_and_b32 v143, 3, v2","v_lshl_add_u32 v142, v143, 3, v142",
        "v_and_b32 v141, 1, v141","v_lshl_add_u32 v140, v141, 2, v140","s_lshl_b32 s7, s3, 1","v_xor_b32 v140, s7, v140",f"v_lshl_add_u32 v{RW1B}, v140, 5, v142",f"v_xor_b32 v{RW1B+1}, 32, v{RW1B}",
        f"v_add_u32 v{RW1B+2}, 0x10000, v{RW1B}",f"v_add_u32 v{RW1B+3}, 0x10000, v{RW1B+1}"]
    a.extend(rb)
    UA=240; BU=128; ACCF=192; XA=246; RH2=250
    NH=OPT['nh']; NWB=(163840-NH*HS)//SLOT; HB=NWB*SLOT
    a(f"v_and_b32 v24, 15, v2\nv_lshrrev_b32 v25, 4, v2\nv_mul_u32_u24 v26, {U2_PL}, v25\nv_lshl_add_u32 v26, v24, 4, v26")
    a(f"v_mul_u32_u24 v25, 1536, v25\nv_lshl_add_u32 v25, v24, 4, v25\nv_add_u32 v{RH}, {HB}, v25\nv_add_u32 v{RH2}, {3*HS}, v{RH}")
    a(f"s_mul_i32 s7, s3, 18432\ns_xor_b32 s8, s{M1}, 1\ns_mul_i32 s8, s8, 1536\ns_add_u32 s7, s7, s8\nv_lshlrev_b32 v{XA}, 4, v2\nv_add_u32 v{VH}, s7, v{XA}")
    a(f"v_lshrrev_b32 v25, 5, v2\nv_mul_u32_u24 v25, {9216-1536}, v25\nv_add_u32 v{VH+1}, v{VH}, v25\nv_add_u32 v{VH+2}, {9216-1536}, v{VH}\ns_mul_i32 s{LH}, s3, 3072\ns_add_u32 s{LH}, s{LH}, {HB}")
    uset=[f"s_mul_i32 s7, s{M1}, 6\ns_add_u32 s7, s7, {dt}\ns_mul_i32 s8, s7, 7282\ns_lshr_b32 s8, s8, 16\ns_mul_i32 s5, s8, 9\ns_sub_u32 s7, s7, s5\ns_lshl_b32 s7, s7, 2\n"
          f"s_mov_b32 s4, 0xba864320\ns_mov_b32 s5, 12\ns_lshr_b64 s[4:5], s[4:5], s7\ns_and_b32 s4, s4, 15\ns_lshl4_add_u32 s4, s8, s4\nv_lshl_add_u32 v{UA+dt}, s4, 8, v{UA+5}" for dt in range(6)]
    a(f"v_mov_b32 v{UA+5}, v26")
    first=[]
    slot={q:s_ for q,s_ in enumerate(list(range(NWB,7))+list(range(NWB)))}
    for q in range(7):
        d=w1dma(q,slot[q]); first+=[d[0]+"\n"+d[1]]+d[2:]
    nln,nkv,npost=OPT["nln"],OPT["nkv"],OPT["npost"]
    phaseA(a,"G",first[:nln],first[nln:nln+nkv],first[nln+nkv:nln+nkv+npost]+(warm("G") if OPT["wg"]==0 else [])+(warm("D") if OPT["wd"]==1 else []))
    if OPT["iw"]==2: a("s_branch L_org\n.p2align 12\nL_org:")
    a("L_segG:")
    a.extend(first[nln+nkv+npost:])
    if OPT["wg"]==1: a.extend(warm("G"))
    if OPT["wd"]==2: a.extend(warm("D"))
    srd(a,56,S_B1,4608*2); srd(a,60,S_B2,4096)
    p1=poll_addr(f"s_and_b32 s4, s{M1}, 1\ns_lshl1_add_u32 s4, s3, s4\ns_lshl_b32 s4, s4, 5",32,FLAG1)
    setup=p1+[f"v_lshrrev_b32 v24, 4, v2\nv_lshlrev_b32 v25, 3, v24\ns_lshl_b32 s7, s{N1}, 8\ns_lshl_b32 s8, s3, 6\ns_add_u32 s7, s7, s8\n"
           f"buffer_load_dwordx2 {P(BIAS)}, v25, {RA}, s7 offen ; @bias\nbuffer_load_dwordx2 {P(BIAS+2)}, v25, {RA}, s7 offen offset:32 ; @bias"]+eprep()+w2setup()+(tailtouch(251)[:1] if OPT["tep"] else [])
    moved=[]
    if OPT["smove"]: moved=setup[8:]; setup=setup[:8]
    nA=OPT["nA"]; nd=max(2,nA-NWB+1)
    per=max(7,(len(setup)+nd-2)//(nd-1))
    assert nd-OPT["lead1"]>=1 and per*(nd-OPT["lead1"])>=7
    nq=7; freeq=[]
    for d in range(nd):
        if d%2==0: stamp(a,1+d//2,"A")
        if d==nd-OPT["lead1"]: a(poll_issue("p1G"))
        a(f"@W w1_{d} 0\ns_barrier")
        dm=[]
        if freeq and nq<nA: slot[nq]=freeq.pop(0)[0]; dm=w1dma(nq,slot[nq]); nq+=1
        a.extend(interleave(w1reads(d,slot[d]),dm)); a.extend(setup[d*per:(d+1)*per])
        if slot[d]<NWB: freeq.append((slot[d],-1))
    assert nq==nA and nd>7-NWB
    if OPT["lead1"]==0: a(poll_issue("p1G"))
    stamp(a,5)
    a(poll_check("p1G"))
    stamp(a,6); stamp(a,1,"B")
    R=W2R()
    issued_at={q:-9 for q in range(nA)}
    nxt_issue,nxt_drain,acc=nA,nd,OPT.get("acc0",50)
    ep_dma={};ep_rd={};ep_wait={};ep_h={}
    bl=[[int(y) for y in x.split(".")] for x in str(OPT["bursts"]).split("_") if "." in x]
    bursts={x[0]:x[1] for x in bl}; bnn={x[0]:(x[2] if len(x)>2 else OPT["bn"]) for x in bl}
    quiet=-1; qfrom=-1; nh=OPT['h0']; lim=NW1+min(OPT['nrg'],OPT['maxb'])
    tep=[int(x) for x in str(OPT["tep"]).split("_") if x]; tl=tailtouch(251)[1:] if tep else []
    def issue(e):
        nonlocal nxt_issue
        s=freeq.pop(0)[0]; t=nxt_issue; slot[t]=s; issued_at[t]=e; nxt_issue+=1
        ep_dma.setdefault(e,[]).extend(w1dma(t,s) if t<NW1 else w2dma(t-NW1,s))
    for e in range(0,31):
        t=nxt_drain
        if t in issued_at and t<NW1+OPT['nrg'] and issued_at[t]+OPT["lat"]+(OPT["quiet"] if (t in bursts or t-1 in bursts) else 0)<=e and (t<NW1 or t<e):
            ep_rd[e]=w1reads(t,slot[t]) if t<NW1 else R.reads(t-NW1,slot[t])
            ep_wait[e]=f"w1_{t}" if t<NW1 else f"w2_{t-NW1}"
            assert t>=NW1 or e<=t-2, (t,e)
            freeq.append((slot[t],e+2)); nxt_drain+=1
        if qfrom<e<=quiet: continue
        k=max(0,min(2,min(e+NH-OPT['hs'],31)+1-nh))
        if OPT["hpat"] and k==1 and nh<31 and OPT["hpat"]<=e:
            if not OPT["hp2"]: k=0
            else: ep_h[e]=[]; continue
        ep_h[e]=list(range(nh,nh+k)); nh+=k
        assert not k or ep_h[e][0]>=e+3, (e,ep_h[e])
        if (k==2 and not (OPT["hp2"] and OPT["hpat"]<=e)) or e<=quiet: continue
        if tep and e>=tep[0]:
            tep.pop(0); ep_dma[e]=[tl.pop(0)]; quiet=e+OPT["tquiet"]; qfrom=e; continue
        ok=len([1 for s_,f in freeq if f<=e])
        if nxt_issue in bursts:
            if e>=bursts[nxt_issue] and ok>=bnn[nxt_issue]:
                tt=nxt_issue==OPT["tburst"]
                for _ in range(bnn[nxt_issue]): issue(e)
                quiet=e+OPT["quiet"]+OPT.get("qlag",0); qfrom=e+OPT.get("qlag",0); acc=100
                if tt: ep_dma[e]=tailtouch()[:1]+ep_dma[e]+tailtouch()[1:]
            continue
        acc+=(OPT["rate"] if nxt_issue<NW1 else OPT["rate2"])*(2 if (OPT["hpat"] and OPT["hpat"]<=e and nh<32) else 1)
        if acc>=100 and ok and nxt_issue<lim and not (OPT["q0"]<=e<OPT["q1"]):
            issue(e); acc-=100
        acc=min(acc,150)
    assert nh==32
    assert nxt_drain>=NW1
    print(f"; B schedule: issue epochs {[issued_at[t] for t in range(nA,nxt_issue)]}; w2 issued {nxt_issue-NW1}, drained {nxt_drain-NW1}; h {''.join(str(len(ep_h.get(e,[]))) for e in range(31))}", file=sys.stderr)
    def hdma(p):
        L=[f"s_add_u32 m0, s{LH}, {(p%NH)*HS}"]
        if p==16: L=[f"s_and_b32 s13, s{M1}, 1\ns_mul_i32 s13, s13, 3072", "s_sub_u32 s13, s13, 1536"]+[f"v_add_u32 v{VH+r}, s13, v{VH+r}" for r in range(3)]+L
        return L+[f"buffer_load_dwordx4 v{VH+r}, {WS}, s{KT[p&15]} offen offset:{1024*r} sc1 lds ; @h{p}" for r in range(3)]
    def hreads(j):
        p,ks=divmod(j,2)
        pos=[(3*ks+(i>>1),i&1) for i in range(6)] if OPT["bch"] else [(i,ks) for i in range(6)]
        return [f"ds_read_b128 {Q(HF+24*(j&1)+4*i)}, v{RH if p%NH<3 else RH2} offset:{(p%NH%3 if p%NH<6 else p%NH-3)*HS+k*6144+dt*256}" for i,(dt,k) in enumerate(pos)]
    csteps=private_steps(R,{t-NW1:slot[t] for t in range(nxt_drain,nxt_issue)},list(range(NWB,10))+[s for s,_ in freeq],range(nxt_issue-NW1,NT),range(nxt_drain-NW1,OPT['nrg']),'G')
    for p in range(OPT['h0']): a.extend(hdma(p))
    a("@W h0 0\ns_barrier")
    a.extend(hreads(0))
    xs=[f"s_xor_b32 s7, s{TID}, 1\ns_lshl2_add_u32 s7, s7, s3", f"s_mul_i32 s9, s7, 6144\ns_add_u32 s9, s9, {WS_XB}", f"s_lshl_b32 s7, s7, 7\ns_add_u32 s6, s7, {WS_F4}",
        f"s_lshl2_add_u32 s7, s{TID}, s3\ns_mul_i32 s10, s7, 6144", f"s_add_u32 s10, s10, {WS_XB}\ns_lshl_b32 s7, s7, 7", f"s_add_u32 s7, s7, {WS_F4}\nv_mov_b32 v{PV}, s7",
        f"v_add_u32 v{XA+1}, 3072, v{XA}", "v_cmp_eq_u32 vcc, 0, v2", f"v_mov_b32 v{XA+2}, {OOB}", f"v_cndmask_b32 v{XA+2}, v{XA+2}, 0, vcc", f"v_mov_b32 v{XA+3}, s{NONCE}"]
    snd=[[f"v_cvt_pk_bf16_f32 v{ACCF+8*dt+k}, v{ACCF+8*dt+2*k}, v{ACCF+8*dt+2*k+1}" for k in range(4)]+[f"buffer_store_dwordx4 {Q(ACCF+8*dt)}, v{XA+dt//3}, {WS}, s9 offen offset:{1024*(dt%3)} sc1 ; @bs"] for dt in range(6)]
    RV=160
    rcv=[poll_check("p5")]+[f"buffer_load_dwordx4 {Q(RV+4*dt)}, v{XA+dt//3}, {WS}, s10 offen offset:{1024*(dt%3)} sc1 ; @bl" for dt in range(6)]
    EX={}
    early=flat([x.split("\n") for x in uset])+xs+["@W bias"]+flat([unpack(BU+2*q,BIAS+q) for q in range(4)])
    if OPT["smove"]: early=flat([x.split("\n") for x in moved])+(k2table() if OPT["smove"]>=2 else [])+early
    early+=flat([x.split("\n") for x in flag_prep(TID,FLAG2,17)+poll2_addr(18)+flat(list(dsetup()))])
    e0,ne=OPT["je0"],OPT["jen"]; CL={}
    nc=len(early)*OPT["cfrac"]//100; restl=early[nc:]; early=early[:nc]; nr_=29-e0-ne
    for k in range(nr_): EX[e0+ne+k]=restl[k*len(restl)//nr_:(k+1)*len(restl)//nr_]
    print("; early instrs",nc,len(restl),file=sys.stderr)
    wts=[1+OPT["ramp"]*(ne-1-k)/max(1,ne-1)/10 for k in range(ne)]; cs=[int(round(len(early)*sum(wts[:k])/sum(wts))) for k in range(ne+1)]
    for k in range(ne): (CL if OPT["clump"] else EX)[e0+k]=early[cs[k]:cs[k+1]]
    js,sp=33,OPT["bsp"]
    for dt in range(6): EX[js+dt*sp]=snd[dt]
    EX[OPT["jbf"]]=[f"@W bs\nbuffer_store_dword v{XA+3}, v{XA+2}, {WS}, s6 offen sc1 ; @bf"]
    EX[OPT["jbp"]]=[poll_issue("p5")]
    EX[OPT["jbl"]]=rcv[:4]; EX[OPT["jbl"]+1]=rcv[4:]
    up=["@W bl"]+flat([unpack(ACCF+2*k,RV+k) for k in range(24)])
    ju=OPT["jbu"]
    ADD={}
    if OPT["badd"]:
        EX[ju]=["@W bl"]
        nk=63-ju;
        for q in range(12):
            assert nk>=6; jj=ju+1+q%6; A=ACC1+4*q; t=ACCF+4*(q//6)
            ADD.setdefault(jj,[]).append((q,unpack(t,RV+2*q)+unpack(t+2,RV+2*q+1),[f"v_add_f32 v{A+r}, v{A+r}, v{t+r}" for r in range(4)]))
    else:
        for k in range(64-ju): EX[ju+k]=up[k*len(up)//(64-ju):(k+1)*len(up)//(64-ju)]
    for j in range(64):
        p,ks=divmod(j,2); e=(j-1)//2; half=(j-1)%2
        mf=[]
        for dt in range(6):
            for ft in range(2):
                acc_=Q((ACCF if j<32 else ACC1)+8*dt+4*ft)
                mf.append(f"v_mfma_f32_16x16x32_bf16 {acc_}, {Q(16*(p&15)+8*ks+4*ft,'a')}, {Q(HF+24*(j&1)+4*dt)}, "+("0" if j==0 else Q(BU+4*ft) if j==32 else acc_))
        if OPT["bch"]:
            mf=[]
            for d in range(3):
                dt=3*ks+d
                for f in range(2):
                    ft=f^(dt&1); acc_=Q((ACCF if j<32 else ACC1)+8*dt+4*ft)
                    for n_,k in enumerate((1,0) if f else (0,1)):
                        mf.append(f"v_mfma_f32_16x16x32_bf16 {acc_}, {Q(16*(p&15)+8*k+4*ft,'a')}, {Q(HF+24*(j&1)+8*d+4*k)}, "+(acc_ if (n_ or p%16) else "0" if p==0 else Q(BU+4*ft)))
        g=Gaps(mf)
        if j%8==0: stamp(a,2+j//8,"B")
        if j%4==0 and j<48: stamp(a,1+j//4,"B1")
        if j%4==0 and j>=16: stamp(a,1+(j-16)//4,"B2")
        if OPT["hs"]: g.before(0,f"@W - H{j}"+("b" if j==63 else "a")); g.before(6,f"@W - H{j}b")
        else: g.before(0,f"@W - H{j}")
        if ks==1:
            tg=([f"h{p+1}"] if p<31 else [])+([ep_wait[e]] if e in ep_wait else [])
            g.put([(f"@W {','.join(tg)}\n" if tg else "")+"s_barrier"],0,1)
        hh=ep_h.get(e,[])
        dm=(hdma(hh[0]) if hh else []) if ks==1 else (hdma(hh[1]) if len(hh)>1 else ep_dma.get(e,[]))
        if len(hh)>1 and e in ep_dma:
            allv=hdma(hh[0])+hdma(hh[1])+ep_dma[e]; dm=allv[:len(allv)//2] if ks==1 else allv[len(allv)//2:]
        if j==63:
            dm=[]
            while len(dm)<5*OPT['n63'] and csteps and not csteps[0][0].startswith("@W") and int(re.search(r"m0, s\d+, (\d+)",csteps[0][0]).group(1))>=NWB*SLOT: dm+=csteps.pop(0)
        if OPT["hs"]:
            if j<63:
                for k,r in enumerate(hreads(j+1)): g.g[(1,3,4,6,8,10)[k]].append(r)
            if e in ep_rd:
                for k,r in enumerate(ep_rd[e][4*half:4*half+4]): g.g[(2,7,9,11)[k] if OPT["hs2"] else (2,5,7,9)[k]].append(r)
            if dm:
                if OPT["dfit"]: g.fit(flat([x.split("\n") for x in dm]),ks,12)
                else: g.put(dm,1 if ks==1 else 0,12)
        else:
            if j<63: g.put(hreads(j+1),1,7)
            if e in ep_rd: g.put(ep_rd[e][4*half:4*half+4],7,11)
            if dm: g.put(dm,1 if ks==1 else 0,12)
        if OPT["bch"] and ADD.get(j):
            dt=3*(1-ks)+(j-58)//2; L_=[]
            for ft in range(2):
                q=2*dt+ft; A=ACC1+4*q; t=ACCF+4*ft
                L_+=unpack(t,RV+2*q)+unpack(t+2,RV+2*q+1)+[f"v_add_f32 v{A+r}, v{A+r}, v{t+r}" for r in range(4)]
            assert ju==57; g.fit(L_,2,11)
        for q,u_,ad in ([] if OPT["bch"] else ADD.get(j,[])):
            c=(q+7)%12
            c=min(max(c,2),10)
            g.put(u_,max(0,c-2),max(c,1)); g.put(ad,c,c+2)
        if EX.get(j): g.fit(EX[j],0,12)
        if CL.get(j):
            c_=OPT["clump"]; n_=len(CL[j])
            for i in range(c_): g.g[(2*i+1)*12//(2*c_)]+=CL[j][i*n_//c_:(i+1)*n_//c_]
        if OPT.get("gnop") and OPT.get("gn0",0)<=j<OPT["gnop"]:
            for i in range(0,12,OPT.get("gns",3)): g.g[i].append("s_nop 7")
        if OPT.get("gcut") and j<OPT.get("gcj",64): g.mf=[m if (i%OPT["gcut"]) else "s_nop 0" for i,m in enumerate(g.mf)]
        g.emit(a)
    stamp(a,7); stamp(a,10,"B"); stamp(a,13,"B2")
    c=0.7978845608028654*2*1.4426950408889634
    BU=HF
    V=[f"v_mov_b32 v{BU+8}, {f2h(-c)}", f"s_mov_b32 s10, {f2h(-c*0.044715)}",
        "v_and_b32 v24, 15, v2","v_lshrrev_b32 v25, 4, v2","v_mul_u32_u24 v25, 9216, v25","v_lshl_add_u32 v24, v24, 4, v25",
        f"s_lshl_b32 s9, s{N1}, 2\ns_add_u32 s9, s9, s3\ns_mul_i32 s9, s9, 36864", f"s_mul_i32 s8, s{M1}, 1536\ns_add_u32 s9, s9, s8\ns_add_u32 s9, s9, {WS_U}"]
    if OPT["upad"]: V=V[:2]+[f"s_lshl_b32 s9, s{N1}, 2\ns_add_u32 s9, s9, s3\ns_mul_i32 s9, s9, {U2_KS}\ns_add_u32 s9, s9, {WS_U2}"]
    for g in range(3):
        A=ACC1+16*g; T=GT; O=HF+16+8*g
        if not OPT["badd"]: V+=[f"v_pk_add_f32 {P(A+2*j)}, {P(A+2*j)}, {P(ACCF+16*g+2*j)}" for j in range(8)]
        V+=[f"v_pk_mul_f32 {P(T+2*j)}, {P(A+2*j)}, {P(A+2*j)}" for j in range(8)]
        V+=[f"v_pk_fma_f32 {P(T+2*j)}, {P(T+2*j)}, s[10:11], {P(BU+8)} op_sel_hi:[1,0,0]" for j in range(8)]
        V+=[f"v_pk_mul_f32 {P(T+2*j)}, {P(T+2*j)}, {P(A+2*j)}" for j in range(8)]
        V+=[f"v_exp_f32 v{T+j}, v{T+j}" for j in range(16)]
        V+=[f"v_pk_add_f32 {P(T+2*j)}, {P(T+2*j)}, 1.0 op_sel_hi:[1,0]" for j in range(8)]
        V+=[f"v_rcp_f32 v{T+j}, v{T+j}" for j in range(16)]
        V+=[f"v_pk_mul_f32 {P(A+2*j)}, {P(A+2*j)}, {P(T+2*j)}" for j in range(8)]
        V+=[f"v_cvt_pk_bf16_f32 v{O+j}, v{A+2*j}, v{A+2*j+1}" for j in range(8)]
        if OPT["upad"]: V+=[f"buffer_store_dwordx4 {Q(O+4*h)}, v{UA+2*g+h}, {WS}, s9 offen sc1 ; @ust" for h in range(2)]
        else: V+=[f"buffer_store_dwordx4 {Q(O+4*h)}, v24, {WS}, s9 offen offset:{256*(2*g+h)} sc1 ; @ust" for h in range(2)]
    a("@W - 0")
    nin=OPT["nin"]
    a.extend(interleave(V,flat(csteps[:nin]),0,len(V)-40))
    stamp(a,8)
    rest=csteps[nin:]
    for s in rest[:OPT["cflag"]]: a.extend(s)
    if OPT["wd"]==0: a.extend(warm("D"))
    a(f"@W ust\ns_barrier\nbuffer_store_dword v{XA+3}, v17, {WS}, 0 offen sc1 ; @fl")
    stamp(a,9)
    rest=rest[OPT["cflag"]:]
    assert OPT["nrot"]==18
    k0=max(0,len(rest)-OPT["lead2"])
    print("; C post steps:", [re.findall(r"lds ; @w2_(\d+)","\n".join(s))[:1] for s in rest], file=sys.stderr)
    for k,s in enumerate(rest):
        if k<13: stamp(a,1+k,"C")
        if k==2 and OPT["wd"]==3: a.extend(warm("D"))
        if k==k0 and OPT["xe"]!=2: a(poll_issue("p2G"))
        if k==OPT["tstep"] and OPT["tburst"]<0 and not OPT["tep"]: a.extend(tailtouch())
        a.extend(s)
    if k0==len(rest) and OPT["xe"]!=2: a(poll_issue("p2G"))
    stamp(a,13,"C")
    return R

CV_IMG=36864; CV_H0=2*CV_IMG; CV_COPY=4160; CV_BUF=2*CV_COPY
def roleX_A(a):
    if OPT["iw"]==1: a(".p2align 12")
    a("L_aux:")
    if OPT["smove"]>=2: a.extend(k2table())
    a(f"s_lshl2_add_u32 s7, s5, s6\ns_add_u32 s7, s7, 188\ns_add_u32 s8, s5, 248\ns_cmp_eq_u32 s6, 27\ns_cselect_b32 s{TID}, s8, s7")
    if OPT["tlb"]:
        sh=OPT["tlb"]
        a(f"v_lshlrev_b32 v242, {sh}, v2")
        for ptr,nb in ((S_OUT,NB_SD),(S_W1,2048*4608*2),(S_B1,9216),(S_B2,4096),(S_SSM,576*4096),(S_D,1152)):
            srd(a,48,ptr,nb); a("buffer_load_dword v255, v242, s[48:51], 0 offen ; @tl")
        a(f"buffer_load_dword v255, v242, {RW2}, 0 offen ; @tl\nbuffer_load_dword v255, v242, {WS}, 0 offen ; @tl")
    srd(a,48,S_SSM,576*4096)
    a(f"v_lshlrev_b32 v240, 4, v2\ns_mul_i32 s{LH}, s3, {2*CV_BUF}\ns_add_u32 s{LH}, s{LH}, {CV_H0}\ns_sub_u32 s{N1}, s{TID}, 216")
    a(f"s_lshl_b32 s{M1}, s{N1}, 4\ns_add_u32 s{M1}, s{M1}, s3\ns_lshl_b32 s12, s{M1}, 12\ns_lshl_b32 s{M1}, s{M1}, 1")
    a(krow(7)+f"\ns_mul_i32 s7, s7, 576\ns_lshr_b32 s8, s{M2}, 1\ns_mul_i32 s8, s8, 144\ns_add_u32 s7, s7, s8\nv_min_u32 v241, 47, v2\nv_add_u32 v241, s7, v241\nv_lshlrev_b32 v241, 12, v241\ns_lshl_b32 s7, s{N2}, 7\nv_add_u32 v241, s7, v241")
    touch=[f"s_mov_b32 s14, {48*4096*i}\nbuffer_load_dword v255, v241, {RW2}, s14 offen ; @tw" for i in range(3)]
    nt=OPT["cvA"]
    a("v_lshrrev_b32 v242, 5, v2\nv_and_b32 v243, 31, v2\nv_lshlrev_b32 v242, 14, v242\nv_lshl_add_u32 v242, v243, 7, v242\ns_add_u32 s13, s12, 32768")
    st=[f"buffer_load_dword v255, v242, {RW1}, s12 offen ; @ts", f"buffer_load_dword v255, v242, {RW1}, s13 offen ; @ts"]
    k=OPT["cvs"]
    phaseA(a,"X",st[:1] if k>=2 else [],[],(st[1:] if k>=2 else [])+warm("X"))
    a.extend(warm("D"))
    a("L_segX:")
    if k==1: a.extend(st)
    a.extend(cv_hdma(0))
    a.extend(touch[:nt])
    if OPT["pf"]: a.extend(auxpf(243)[:1])
    if OPT["cvt"]==0: a.extend(tailtouch())
    else: a.extend(tailtouch(243)[:1])
    srd(a,60,S_B2,4096)
    a.extend(eprep()); a.extend(w2setup())
    a(f"s_cmp_lt_u32 s{TID}, 252\ns_cbranch_scc0 L_idle")
def cv_hdma(c):
    L=[f"s_add_u32 m0, s{LH}, {(c&1)*CV_BUF+32}\ns_add_u32 s13, s12, {16384*c}"]
    return L+[f"buffer_load_dwordx4 v240, {RW1}, s13 offen offset:{1024*i} lds ; @hc{c}" for i in range(4)]
def conv(a):
    ACC=32; S0=64; T=192; U=208; BT=212
    VHD,BA,FX,EB,YO,DR,AB,BB,DV,VK=240,241,242,243,8,9,236,244,248,24
    R=W2R()
    srd(a,56,S_D,576*2)
    def dload(c): return f"v_mov_b32 v{DR}, {8*c}\nbuffer_load_ushort v{DR}, v{DR}, {RA}, s{M1} offen ; @hd{c}"
    a(dload(0))
    def dbuild(): return [f"v_lshl_or_b32 v{DR}, v{DR}, 16, v{DR}"]+[f"v_and_b32 v{DV+k}, v{DR}, v{U+k}" for k in range(4)]
    a(f"v_and_b32 v196, 15, v2\nv_lshrrev_b32 v197, 4, v2\nv_lshlrev_b32 v197, 3, v197\nv_add_u32 v196, v196, v197\nv_sub_u32 v196, 15, v196")
    a("v_and_b32 v197, 1, v196\nv_lshlrev_b32 v197, 4, v197\nv_mov_b32 v198, 0xffff\nv_lshlrev_b32 v197, v197, v198\nv_ashrrev_i32 v196, 1, v196")
    for k in range(4): a(f"v_cmp_eq_u32 vcc, {k}, v196\nv_cndmask_b32 v{U+k}, 0, v197, vcc")
    WT=list(range(16)); per=OPT["cvper"]
    a.extend(poll1_addr())
    a(f"v_add_u32 v{BA}, s{LH}, v{VHD}\nv_cmp_eq_u32 vcc, 0, v2\nv_mov_b32 v196, 4136\nv_cndmask_b32 v196, v196, 30, vcc\nv_add_u32 v{FX}, s{LH}, v196")
    a(f"v_bfe_u32 v196, v2, 3, 2\nv_mul_u32_u24 v196, {CV_COPY}, v196\nv_and_b32 v197, 7, v2\nv_lshl_add_u32 v196, v197, 2, v196\nv_add_u32 v200, s{LH}, v196")
    a("v_mov_b32 v196, 0\nv_mov_b32 v197, 0\nv_mov_b32 v198, 0\nv_mov_b32 v199, 0\nds_write_b32 v200, v196\nv_lshlrev_b32 v201, 4, v0")
    a(f"ds_write_b128 v201, v[196:199]\nds_write_b128 v201, v[196:199] offset:{CV_IMG}")
    def brd(c):
        o=(c&1)*CV_BUF+32
        return flat([[f"ds_read_b128 {Q(BT+6*i)}, v{BA} offset:{o+1024*i} ; @b{c}", f"ds_read_b32 v{BT+6*i+4}, v{BA} offset:{o+1024*i+16} ; @b{c}"] for i in range(4)])
    def bwr(c):
        o=(c&1)*CV_BUF+CV_COPY; L=[f"ds_write_b16 v{FX}, v{BT} offset:{o}"]
        for i in range(4):
            t=BT+6*i
            L+=[f"v_alignbit_b32 v{t+k}, v{t+k+1}, v{t+k}, 16" for k in range(4)]+[f"ds_write_b128 v{BA}, {Q(t)} offset:{o+32+1024*i} ; @bw"]
        return L
    a("@W hc0"); a.extend(brd(0))
    a(f"v_lshrrev_b32 v202, 3, v2\nv_and_b32 v203, 7, v2\nv_lshrrev_b32 v204, 1, v202\nv_xor_b32 v203, v203, v204\nv_mul_u32_u24 v202, 9216, v202")
    a(f"v_lshl_add_u32 v{VK}, v203, 4, v202\nv_xor_b32 v{VK+1}, 64, v{VK}")
    a(f"v_and_b32 v202, 15, v2\nv_add_u32 v202, 1, v202\nv_and_b32 v203, 1, v202\nv_mul_u32_u24 v203, {CV_COPY}, v203\nv_lshrrev_b32 v202, 1, v202\nv_lshl_add_u32 v203, v202, 2, v203")
    a(f"v_lshrrev_b32 v204, 4, v2\nv_lshl_add_u32 v203, v204, 4, v203\nv_add_u32 v{AB}, s{LH}, v203")
    for p in range(1,4): a(f"v_add_u32 v{AB+p}, 1024, v{AB+p-1}")
    a("@W - b0"); a.extend(bwr(0))
    for v in range(4):
        a(f"v_and_b32 v202, 15, v2\nv_lshlrev_b32 v202, 1, v202\nv_sub_u32 v202, v202, v204\nv_add_u32 v202, {17-4*v}, v202")
        a(f"v_bfe_u32 v203, v202, 1, 3\nv_xor_b32 v203, s3, v203\nv_lshlrev_b32 v203, 4, v203\nv_lshl_add_u32 v{BB+v}, v202, 7, v203")
    a(f"v_and_b32 v202, 15, v2\nv_lshlrev_b32 v202, 5, v202\nv_lshl_add_u32 v{YO}, v204, 3, v202")
    a(f"s_mul_i32 s7, s3, {64*9216}\ns_lshl_b32 s8, s{N1}, 8\ns_add_u32 s7, s7, s8\ns_add_u32 s7, s7, {WS_KVT}\ns_lshl_b32 s9, s3, 13\ns_add_u32 s9, s9, 4096")
    def rdA(G,c):
        g0=G&7; r=S0+64*(G&1)+4*c; o=(64*g0+512*(c&1))//4; tg=f"f{G}" if c==0 else f"g{G}"
        return [f"ds_read2_b32 {P(r)}, v{AB+(c>>1)} offset0:{o} offset1:{o+1} ; @{tg}", f"ds_read2_b32 {P(r+2)}, v{AB+(c>>1)} offset0:{o+2} offset1:{o+3} ; @{tg}"]
    def rdB(G):
        g0=G&7
        return [f"ds_read_b128 {Q(S0+64*(G&1)+32+4*c)}, v{BB+(g0&3)} offset:{4096*c+(0 if g0>>2 else 2048)} ; @f{G}" for c in range(8)]
    def reads(G):
        if OPT["cch"]:
            L=flat([[rdB(G)[c]]+rdA(G,c) for c in range(8)])
            return [re.sub(r"@[fg]","@f" if i<12 else "@g",x) for i,x in enumerate(L)]
        return rdA(G,0)+rdB(G)+flat([rdA(G,c) for c in range(1,8)])
    a.extend(flat([rdA(0,c) for c in range(8)]))
    a(poll_issue("p1X"))
    a("@W hd0"); a.extend(dbuild())
    a.extend(R.goto(2))
    stamp(a,5)
    a(poll_check("p1X"))
    a("s_barrier")
    stamp(a,6); stamp(a,1,"B")
    def kvdma(img):
        return [f"s_add_u32 m0, s9, {img*CV_IMG+i*1024}\ns_add_u32 s13, s7, {i*8*9216+img*128}\nbuffer_load_dwordx4 v{VK+(i&1)}, {WS}, s13 offen sc1 lds ; @kvi{img}" for i in range(8)]
    a.extend(kvdma(0))
    a("@W kvi0 0\ns_barrier")
    a.extend(rdB(0))
    def epi(ch,q):
        A=ACC+4*q; k=T+2*q
        return [f"v_cvt_pk_bf16_f32 v{k}, v{A}, v{A+1}", f"v_cvt_pk_bf16_f32 v{k+1}, v{A+2}, v{A+3}",
                f"buffer_store_dwordx2 {P(k)}, v{YO}, {WS}, s6 offen offset:{512*q} sc1 ; @yst"]
    inv={s:t for t,s in SIGMA.items()}
    inflight={}; done=[]
    plan=[(9,0,2,3.6),(3,2,2,5.6),(9,4,2,7.6),(3,6,2,9.4),(9,8,2,11.6),(9,12,2,15.6),(9,16,1.5,19.2)]
    t0=17.5
    for k in range(9): plan.append(((0,1,9)[k%3], t0+k*1.33, 1.33, t0+k*1.33+3.2))
    tiles=WT+[inv[0],inv[1]]
    plan+=[(0,29.5,1.2,None),(1,30.7,1.2,None)]
    GS=[]
    for G in range(32):
        ch,rho=divmod(G,8); s=S0+64*(G&1)
        def M(c,q):
            if c<0: return f"v_mfma_f32_16x16x32_bf16 {Q(ACC+4*q)}, {Q(DV)}, {Q(s+32+4*q)}, 0"
            return f"v_mfma_f32_16x16x32_bf16 {Q(ACC+4*q)}, {Q(s+4*c)}, {Q(s+32+4*(q-c))}, {Q(ACC+4*q)}"
        qmaj = rho==7 or (rho==0 and ch>0); c0=-1 if rho==0 else 0
        g=Gaps([M(c,q) for q in range(7,-1,-1) for c in range(c0,q+1)] if qmaj else [M(c,q) for c in range(c0,8) for q in range(max(c,0),8)])
        if OPT["cch"] and not qmaj: g=Gaps([M(c,q) for q in range(8) for c in ([-1] if c0 else [])+(list(range(q+1)) if q&1==0 else list(range(q,-1,-1)))])
        n=len(g.mf); GS.append(g)
        if qmaj: g.before(0,f"@W - g{G}")
        elif OPT["cch"]: g.before(0,f"@W - f{G}"); g.before(10-4*c0,f"@W - g{G}")
        else: g.before(0,f"@W - f{G}"); g.before(n-28,f"@W - g{G}")
        if G==10: g.put([f"@W - r2_{tiles[3]}\ns_barrier"],6,7)
        if G==17: g.put(["s_barrier"],2,3)
    def late():
      for G,g in enumerate(GS):
        ch,rho=divmod(G,8); n=len(g.mf)
        if ch<3:
            r=[f"@W - b{ch+1}"]+bwr(ch+1)
            if rho==3: g.fit([f"@W hc{ch+1}"]+brd(ch+1),16,36)
            if rho==4: g.fit(r[:12],4,36)
            if rho==5: g.fit(r[12:]+[f"@W hd{ch+1}"]+dbuild(),0,36)
            if rho==6:
                g.fit([f"v_xor_b32 v{BB+v}, 64, v{BB+v}" for v in range(4)]+([f"v_add_u32 v{BB+v}, {CV_IMG}, v{BB+v}" for v in range(4)] if ch==1 else []),18,36)
                g.fit([f"v_add_u32 v{AB+p}, {CV_BUF if ch%2==0 else -CV_BUF}, v{AB+p}" for p in range(4)]+(["@W kvi1\ns_barrier"] if ch==1 else []),29,36)
        if rho==6: g.fit([f"s_add_u32 s6, s12, {WS_YC+16384*ch}"],0,36)
        if rho==7: g.fit(epi(ch,7),12,20); g.fit(epi(ch,6),20,28); g.fit(epi(ch,5),28,36)
        if rho==0 and ch>0:
            g.fit(epi(ch-1,4)+epi(ch-1,3)+epi(ch-1,2),0,23); g.fit(epi(ch-1,1)+epi(ch-1,0),23,38)
        if G<31:
            rr=reads(G+1)
            if rho==6:
                if OPT["cch"]:
                    rr=[x for x in rr if "b128" in x]+[x for x in rr if "b128" not in x]; rr=[re.sub(r"@f","@g",x) for x in rr]
                g.fit(rr[:10],0,14); g.fit(rr[10:],14,29)
            else: g.fit(rr,0,n-7 if rho==7 else n-1)
    def place(items, start, length):
        for k,it in enumerate(items):
            x=start+length*k/len(items); G=int(x); g=GS[G]; g.g[int((x-G)*len(g.mf))].append(it)
    flatg=[(G,i) for G,g in enumerate(GS) for i in range(len(g.mf))]; used=set()
    def nextgap(pre, item, start):
        G=int(start); p=flatg.index((G,int((start-G)*len(GS[G].mf))))
        while p in used or p+1 in used: p+=1
        used.update((p,p+1))
        GS[flatg[p][0]].g[flatg[p][1]].append(pre); GS[flatg[p+1][0]].g[flatg[p+1][1]].append(item)
    last={}
    ev=[]
    for t,(sl,st,ln,dr) in zip(tiles,plan):
        d=w2dma(t,sl); m0,so=d[0].split("\n",1)
        if sl in last: so=f"@W - r2_{last[sl]}\n"+so
        place([so],st,1)
        for r in range(4): nextgap(m0,d[1+r],st+0.03+ln*r/4)
        inflight[t]=sl
        if t<NREG: ev.append((dr,t,sl)); last[sl]=t
        else: assert SIGMA[t]==sl
    for dr,t,sl in sorted(ev):
        place([f"@W w2_{t}"]+flat([x.split("\n") for x in R.reads(t,sl)]),dr,0.36); del inflight[t]; done.append(t)
    for ch in range(3):
        d=cv_hdma(ch+1); m0,so=d[0].split("\n",1); st=8*ch+1
        place([so],st+0.1,1)
        for r in range(4): nextgap(m0,d[1+r],st+0.15+0.22*r)
        place([dload(ch+1)],st+1.25,1)
    for i,it in enumerate(kvdma(1)):
        pre,ld=it.rsplit("\n",1); nextgap(pre,ld,11.2+0.25*i)
    if OPT["cvt"]:
        for i,it in enumerate(tailtouch(243)[1:]): place([it],OPT["cvt"]+0.5+i*OPT["cvts"],1)
    if OPT["pf"]: place(auxpf(243)[1:],OPT["pfa"]+0.4,OPT["pfb"]-OPT["pfa"])
    place(flat([x.split("\n") for x in poll2_addr()]),30.05,0.9)
    late()
    print("; conv overload", " ".join(f"{g.over():.0f}" for g in GS), file=sys.stderr)
    for G,g in enumerate(GS):
        if G%4==0: stamp(a,2+G//4,"B")
        if 8<=G<=20: stamp(a,G-7,"V")
        if OPT.get("cvcut"): g.mf=[m if (i%OPT["cvcut"]) else "s_nop 0" for i,m in enumerate(g.mf)]
        g.emit(a)
    a(poll_issue("p2X"))
    for q in range(4,-1,-1): a.extend(epi(3,q))
    stamp(a,7); stamp(a,10,"B")
    a.extend(R.goto(0))
    a("@W - 0\ns_barrier")
    stamp(a,9)
def idle(a):
    a("L_idle:")
    a("s_waitcnt vmcnt(0)\ns_barrier")
    R=W2R()
    stp=private_steps(R,{},range(10),range(NT),range(NREG))
    for k,s in enumerate(stp):
        if k==9 and OPT["pf"]: a.extend(auxpf(243)[1:])
        a.extend(s)
    a.extend(R.goto(0))
    a.extend(warm("D"))
    a.extend(poll2_addr())
    a(poll_issue("p2X"))
    a("s_branch L_DX")

def dsetup():
    PL,KS=U2_PL,U2_KS; XS,YS=8*SLOT,9*SLOT
    h=[f"v_lshrrev_b32 v31, 4, v2\nv_mul_u32_u24 v24, {PL}, v31\nv_and_b32 v25, 15, v2\nv_lshl_add_u32 v24, v25, 4, v24",
       krow(7)+f"\ns_mul_i32 s7, s7, {18*KS}\ns_lshr_b32 s8, s{M2}, 1\ns_lshl_b32 s8, s8, 12\ns_add_u32 s7, s7, s8\ns_add_u32 s7, s7, {WS_U2}\nv_add_u32 v{VAM}, s7, v24",
       f"s_and_b32 s12, s{M2}, 1\ns_xor_b32 s8, s12, 1\ns_lshl_b32 s8, s8, 11\nv_add_u32 v{VA}, s8, v{VAM}\ns_lshl_b32 s11, s12, 12\ns_sub_u32 s11, s11, 2048"]
    t=Asm(); srd(t,64,S_OUT,NB_SD); srd(t,56,S_Q,NB_SD); r=[i.text for i in t.L]
    for i in range(3):
        r+=[f"v_add_u32 v24, {64*i}, v2", "v_mul_u32_u24 v25, 7282, v24", "v_lshrrev_b32 v25, 16, v25", f"v_mul_u32_u24 v25, {1152-144}, v25", f"v_lshl_add_u32 v{XR+i}, v2, 4, v25"]
    r+=["v_cmp_gt_u32 vcc, 16, v2", f"v_mov_b32 v25, {OOB}", f"v_cndmask_b32 v{XR+2}, v25, v{XR+2}, vcc"]
    r+=[f"{krow(7)}\ns_mul_i32 s7, s7, {576*4096}", f"v_subrev_u32 v3, s7, v{VW2}"]
    r+=["v_and_b32 v24, 15, v2","v_mul_u32_u24 v24, 144, v24","v_lshrrev_b32 v25, 4, v2","v_lshl_add_u32 v24, v25, 3, v24",f"s_add_u32 s7, s{LW}, {XS}\ns_lshl_b32 s4, s12, 4",
        "s_add_u32 s4, s4, s7\nv_add_u32 v1, s4, v24", "s_mul_i32 s4, s12, 144\ns_sub_u32 s4, s7, s4", "v_add_u32 v24, s4, v24"]
    r+=["v_bfe_u32 v25, v2, 2, 3","v_lshlrev_b32 v25, 7, v25","v_lshrrev_b32 v31, 5, v2","v_lshl_add_u32 v25, v31, 12, v25","v_bfe_u32 v31, v2, 3, 2","v_xor_b32 v31, s3, v31","v_lshl_add_u32 v25, v31, 5, v25",
        "v_and_b32 v31, 3, v2","v_lshl_add_u32 v25, v31, 3, v25",f"v_add_u32 v25, {YS}, v25"]
    return h,r
def phaseD(a, ac, role, R):
    JS=12; sig,nreg=(SIGG,OPT["nrg"]) if role=="G" else (SIGMA,NREG)
    a(f"L_D{role}:")
    PL,KS,FO=U2_PL,U2_KS,(0,512,768,1024)
    if role=="X": a.extend(dsetup()[0])
    a(f"s_mov_b32 s8, {WS_STATS}")
    order=list(range(18))+[16,17]+list(range(16))
    XS,YS=8*SLOT,9*SLOT
    C=OPT["dch"]; NF=20; assert 18%C==0 and JS%C==0 and nreg>=JS
    def tmp(f): return RT+4*f
    groups=[(ps,u,dt) for ps in range(2) for u in range(18//C) for dt in range(5-ps)]
    frags=[(ps,order[18*ps+u*C+k],dt) for ps,u,dt in groups for k in range(C)]
    def fload(f):
        ps,t,dt=frags[f]
        s_=f"buffer_load_dwordx4 {Q(AF+4*(f%NF))}, v{VA if dt<4 else VAM}, {WS}, s{K2+t} offen offset:{FO[dt] if dt<4 else 1536} sc1 ; @u{f//C}"
        return (f"v_add_u32 v{VA}, s11, v{VA}\n" if f==90 else "")+s_
    def accr(ps,dt,nt):
        if ps==0: return ACC2+4*dt if nt==0 else ACC2+20+4*(3*dt+nt-1)
        return ACC2+20+4*(4*dt+(nt-1)%4)
    mf=[]
    for g_,(ps,u,dt) in enumerate(groups):
        nts=(1,2,3,0) if (g_&1)==(len(groups)-1)&1 else (0,3,2,1)
        if ps==0 and u==18//C-1 and dt==4: nts=(1,2,3,0)
        for n_,nt in enumerate(nts):
            acc=Q(accr(ps,dt,nt))
            for i,k in enumerate(range(C) if n_%2==0 else range(C-1,-1,-1)):
                kind,r0=w2reg(frags[g_*C+k][1])
                mf.append(f"v_mfma_f32_16x16x32_bf16 {acc}, {Q(AF+4*((g_*C+k)%NF))}, {Q(r0+4*nt,kind)}, "+(acc if (i or u) else Q(112) if (ps and nt==0) else "0"))
    kmul=[f"s_mul_i32 s{K2+t}, s{K2+t}, {KS}" for t in range(18)]
    MB=4
    msetup=flat([[f"s_xor_b32 s7, s3, {k}\ns_lshl_b32 s7, s7, 14", f"s_add_u32 s7, s7, {(k-1)*5120}\nv_lshl_add_u32 v{MB+k-1}, v2, 4, s7"] for k in (1,2,3)])
    msetup+=[f"s_lshl_b32 s7, s3, 14\nv_lshl_add_u32 v{MB+3}, v2, 4, s7"]
    mnext=[f"v_add_u32 v{MB+k}, 0x10000, v{MB+k}" for k in range(4)]
    xsetup=[f"s_lshr_b32 s7, s{M2}, 1\ns_lshl_b32 s7, s7, 5", f"s_add_u32 s7, s7, s{N2}\ns_lshl_b32 s7, s7, 1", "s_add_u32 s15, s7, s12\ns_xor_b32 s6, s15, 1",
            "s_lshl_b32 s7, s6, 2\ns_add_u32 s7, s7, s3", f"s_mul_i32 s9, s7, 5120\ns_add_u32 s9, s9, {WS_XC}", "s_lshl_b32 s7, s15, 2\ns_add_u32 s7, s7, s3", f"s_mul_i32 s10, s7, 5120\ns_add_u32 s10, s10, {WS_XC}",
            f"v_lshlrev_b32 v{RB2}, 4, v2", f"v_add_u32 v{RB2+1}, 4096, v{RB2}"]
    red=[]
    for dt in range(5):
        t=[tmp(3*(dt&1)+k) for k in range(3)]; A=ACC2+4*dt
        rd_=[f"ds_read_b128 {Q(t[k])}, v{MB+3} offset:{k*5120+dt*1024} ; @m{dt}" for k in range(3)]
        ad=[f"@W - m{dt}"]+[f"v_add_f32 v{A+r}, v{A+r}, v{t[0]+r}" for r in range(4)]+[f"v_add_f32 v{t[1]+r}, v{t[1]+r}, v{t[2]+r}" for r in range(4)]+[f"v_add_f32 v{A+r}, v{A+r}, v{t[1]+r}" for r in range(4)]
        st=[f"buffer_store_dwordx4 {Q(A)}, v{RB2+(dt>>2)}, {WS}, s9 offen offset:{1024*(dt&3)} sc1 ; @xs"]
        red.append((rd_,ad,st))
    fs=(9,7) if OPT["xfl"] else (7,2)
    xflag=[f"s_lshl_b32 s7, s6, {fs[0]}\ns_lshl_b32 s4, s3, {fs[1]}", f"s_add_u32 s7, s7, s4\ns_add_u32 s14, s7, {FLAG3}", "v_cmp_eq_u32 vcc, 0, v2", f"v_mov_b32 v12, {OOB}", "v_cndmask_b32 v12, v12, 0, vcc", f"v_mov_b32 v13, s{NONCE}",
           f"@W xs\nbuffer_store_dword v13, v12, {WS}, s14 offen sc1 ; @xf"]
    xpoll=[f"s_lshl_b32 s7, s15, {fs[0]}\ns_lshl_b32 s4, s3, {fs[1]}", f"s_add_u32 s7, s7, s4\ns_add_u32 s7, s7, {FLAG3}", f"v_mov_b32 v{PV}, s7", poll_issue("p4")]
    PM=tmp(5)
    xld=[poll_check("p4")]+[f"buffer_load_dwordx4 {Q(ACC2+4*dt if dt<4 else PM)}, v{RB2+(dt>>2)}, {WS}, s10 offen offset:{1024*(dt&3)} sc1 ; @xl" for dt in range(5)]
    assert OPT["fpl"]==2
    FLAGY=FLAG2+16384
    ypoll=poll_addr(f"s_mul_i32 s4, s{M2}, 9\ns_lshr_b32 s4, s4, 1\ns_lshl_b32 s4, s4, 2",20,FLAGY)+[poll_issue("p3")]
    yflag=[f"s_sub_u32 s4, s{TID}, 216\ns_lshl_b32 s7, s4, 7", f"s_lshl2_add_u32 s7, s3, s7\ns_add_u32 s7, s7, {FLAGY}", f"s_cmp_lt_u32 s4, 36\ns_cselect_b32 s7, s7, {OOB}",
           f"v_min_u32 v{PV}, 1, v2", f"v_lshlrev_b32 v{PV}, 30, v{PV}", f"v_mov_b32 v{PV+1}, s{NONCE}", f"buffer_store_dword v{PV+1}, v{PV}, {WS}, s7 offen sc1 ; @yf"]
    ydma=[poll_check("p3"),
          f"s_mul_i32 s7, s{M2}, {72*4096}\ns_add_u32 s7, s7, {WS_YC}", "s_add_u32 s4, s3, s12\ns_lshl_b32 s4, s4, 15", f"s_add_u32 m0, s{LW}, {YS}\ns_add_u32 s4, s4, s7",
          f"buffer_load_dwordx4 v3, {WS}, s4 offen sc1 lds ; @ey", f"s_add_u32 m0, s{LW}, {YS+1024}\ns_add_u32 s4, s4, {4*32768}",
          f"buffer_load_dwordx4 v3, {WS}, s4 offen sc1 lds ; @ey", "s_xor_b32 s4, s12, 1\ns_lshl_b32 s4, s4, 18", f"s_add_u32 s4, s4, s7\ns_add_u32 m0, s{LW}, {YS+2048}",
          f"s_cmp_lt_u32 s3, 2\ns_cselect_b32 s4, s4, {OOB}", f"buffer_load_dwordx4 v3, {WS}, s4 offen sc1 lds ; @ey"]
    XF=WV; YF=WV+20; Y=XR
    def nr_(j): return tmp(j>>2)+(j&3)
    xdma=[f"s_lshl_b32 s7, s{N2}, 6\ns_lshl_b32 s4, s3, 4", "s_add_u32 s7, s7, s4\ns_mul_i32 s7, s7, 1152", f"s_mul_i32 s4, s{M2}, 144\ns_add_u32 s7, s7, s4", f"s_add_u32 m0, s{LW}, {XS}"]
    xdma+=[f"buffer_load_dwordx4 v{XR+i}, {RA}, s7 offen offset:{1024*i} lds ; @ex" for i in range(3)]
    xrd=["@W ex"]+[f"ds_read_b64 {P(XR+2*dt)}, v{1 if dt<4 else 24} offset:{32*dt} ; @rx" for dt in range(5)]
    xf=["@W es rx"]+flat([unpack(XF+2*j,XR+j) for j in range(10)])+[f"v_mul_f32 v{ST}, v{ST}, v{ST+1}"]
    xn=[f"v_fma_f32 v{nr_(j)}, v{XF+j}, v{ST+1}, -v{ST}" for j in range(20)]
    yrd=[f"ds_read_b64_tr_b16 {P(Y+2*dt)}, v25 offset:{((2*dt)&3)*4096+(dt>>1)*1024} ; @ry" for dt in range(5)]
    ymul=["@W - ry"]+flat([unpack(YF+2*(j&3),Y+j)+[f"v_mul_f32 v{nr_(2*j+h)}, v{nr_(2*j+h)}, v{YF+2*(j&3)+h}" for h in (1,0)] for j in range(10)])
    binit=[f"@W eb\nv_lshlrev_b32 v{B2}, 16, v{B2}"]+[f"v_mov_b32 v{112+k}, v{B2}" for k in range(4)]
    esetup=mnext+[f"s_mov_b32 s8, {f2h(-1.4426950408889634)}"]+[f"v_add_f32 v{ACC2+16+k}, v{ACC2+16+k}, v{B2}" for k in range(4)]
    esetup+=["v_bfe_u32 v31, v2, 4, 1", f"v_mad_u32_u24 v{XO}, v31, 24, v{XO}"]
    stat=[f"buffer_load_dwordx2 {P(ST)}, v{ST}, {WS}, s8 offen sc1 ; @es"]
    xe=OPT["xe"] if role=="G" else 0
    a.extend((xdma+stat+kmul) if xe else kmul[:4])
    if xe==2: a(poll_issue("p2G"))
    stamp(a,10)
    a(poll_check("p2"+role))
    stamp(a,11); stamp(a,1,"D")
    F0=OPT["f0"]
    if xe: a.extend([fload(f) for f in range(F0)])
    else: a.extend([fload(f) for f in range(10)]+kmul[4:]+(dsetup()[1] if role=='X' else [])+[fload(f) for f in range(10,F0)]+xdma+stat)
    resid=[[f"@W w2_{t}"]+flat([x.split("\n") for x in R.reads(t,sig[t])]) for t in range(nreg,NT)]
    xst=["\n".join(flat([r[2] for r in red]))]
    if OPT["xbf"]:
        for dt in range(5):
            A=ACC2+4*dt; d=ACC2+2*dt
            red[dt][1].extend([f"v_cvt_pk_bf16_f32 v{d}, v{A}, v{A+1}", f"v_cvt_pk_bf16_f32 v{d+1}, v{A+2}, v{A+3}"])
        st=[f"buffer_store_dwordx4 {Q(ACC2+4*k)}, v{RB2}, {WS}, s9 offen offset:{1024*k} sc1 ; @xs" for k in range(2)]+[f"buffer_store_dwordx2 {P(ACC2+8)}, v{RB2+1}, {WS}, s9 offen offset:2048 sc1 ; @xs"]
        if OPT["xbf"]==1: red[1][1].append(st[0]); red[3][1].append(st[1]); xst=[st[2]]
        else: xst=["\n".join(st)]
        xsetup[-1]=f"v_lshlrev_b32 v{RB2+1}, 3, v2"
        xld=xld[:1]+[f"buffer_load_dwordx4 {Q(YF+4*k)}, v{RB2}, {WS}, s10 offen offset:{1024*k} sc1 ; @xl" for k in range(2)]+[f"buffer_load_dwordx2 {P(YF+8)}, v{RB2+1}, {WS}, s10 offen offset:2048 sc1 ; @xl"]
    jf=OPT["jxf"]; nrk=OPT["nrk"]
    rseq=red[0][0]+red[1][0]+red[0][1]+red[2][0]+red[1][1]+red[3][0]+red[2][1]+red[4][0]+red[3][1]+red[4][1]+xst
    post=xf+["@W ey\ns_barrier"]+yrd+xn+ymul+esetup
    EX={0:(yflag if role=="X" else []),1:msetup,2:binit,OPT["jxr"]:xrd,9:ypoll,12:xsetup,13:ydma,14:["s_barrier"]+xflag[:-1]}
    j0=OPT["jr0"]; rl=flat(resid); nk=JS-1-j0
    RD={j0+k:rl[k*len(rl)//nk:(k+1)*len(rl)//nk] for k in range(nk)}
    jr=OPT["jrs"]
    for k in range(nrk): EX[jr+k]=(["@W - mw4\ns_barrier"] if k==0 else [])+rseq[k*len(rseq)//nrk:(k+1)*len(rseq)//nrk]
    np_=OPT['jxl']-jr-nrk; assert jr+nrk>=18+C
    for k in range(np_): EX[jr+nrk+k]=post[k*len(post)//np_:(k+1)*len(post)//np_]
    for k,v in ((jf,xflag[-1:]),(OPT["jxp"],xpoll)): EX[k]=v+EX.get(k,[])
    of=OPT["ostore"]; jxl=OPT["jxl"]; assert jxl<=36-C
    EX[jxl]=EX.get(jxl,[])+xld
    A=ACC2+16; n=tmp(4); r=PM
    pre=["@W xl"]+flat([unpack(PM+2*(j-8),YF+j) for j in (8,9)])+[f"v_add_f32 v{A+k}, v{A+k}, v{r+k}" for k in range(4)]+[f"v_mul_f32 v{r+k}, s8, v{A+k}" for k in range(4)]
    pre+=[f"v_exp_f32 v{r+k}, v{r+k}" for k in range(4)]+[f"v_mul_f32 v{n+k}, v{n+k}, v{A+k}" for k in range(4)]+[f"v_add_f32 v{r+k}, 1.0, v{r+k}" for k in range(4)]
    pre+=[f"v_rcp_f32 v{r+k}, v{r+k}" for k in range(4)]+[f"v_fma_f32 v{n+k}, v{n+k}, v{r+k}, v{XF+16+k}" for k in range(4)]
    pre+=[f"v_cvt_pk_bf16_f32 v{A}, v{n}, v{n+1}",f"v_cvt_pk_bf16_f32 v{A+1}, v{n+2}, v{n+3}",f"buffer_store_dwordx2 {P(A)}, v{XO+1}, {RC}, 0 offen {of}"]
    pre=pre[:1]+flat([unpack(ACC2+2*j,YF+j) for j in range(8)])+pre[1:]
    for j_,k in ((34,OPT["npre33"]),(35,OPT["npre"])):
        if k: EX[j_]=EX.get(j_,[])+pre[:k]; pre=pre[k:]
    g=Gaps(mf); n4=4*C; tail=[]
    nxt=F0
    for g_,(ps,u,dt) in enumerate(groups):
        lw="r2_17" if g_*n4==20*JS else f"mw{(1,2,3,4)[dt]}" if (ps==1 and u==0) else "-"
        g.before(g_*n4,f"@W u{g_} {lw}")
        lim=min(len(frags),g_*C+NF); k=min(lim-nxt,C+1)
        if k>0: g.put([fload(f) for f in range(nxt,nxt+k)],g_*n4+1,(g_+1)*n4); nxt+=k
        if u==18//C-1:
            w=[f"ds_write_b128 v{MB+nt-1}, {Q(accr(ps,dt,nt))} offset:{dt*1024}" for nt in (1,2,3)]
            if dt<4-ps:
                if mf[(g_+1)*n4-1].split(",")[0].endswith(Q(accr(ps,dt,1))): w=w[::-1]
                g.put(w,(g_+1)*n4+2,(g_+2)*n4)
            else:
                for i,x in enumerate(w):
                    p_=g_*n4+(i+1)*C+5
                    if p_<len(mf): g.g[p_].append(x)
                    else: tail.append(x)
    assert nxt==len(frags)
    def pos(J): return 20*J if J<=18 else 360+16*(J-18)
    for J in range(36):
        if RD.get(J): g.fit(RD[J],pos(J),pos(J+1))
        if EX.get(J): g.fit(EX[J],pos(J),pos(J+1))
    for i,(m,p_,f) in enumerate(zip(g.mf,g.pre,g.g)):
        if i==20*JS:
            if ac is None: a("s_branch L_Dc"); return
            a=ac; a("L_Dc:")
        for J in range(1,36,4):
            if i==pos(J): stamp(a,2+J//4,"D")
        a.extend(p_); a(m); a.extend(f)
    a.extend(tail)
    stamp(a,12); stamp(a,11,"D")
    a("s_waitcnt lgkmcnt(0)\ns_barrier")
    def Rr(dt): return accr(1,dt,1)
    for dt in range(4):
        for k in range(3): a(f"ds_read_b128 {Q(Rr(dt)+4*k)}, v{MB+3} offset:{k*5120+dt*1024}")
    def fin(d0):
        two=lambda f: flat([f(ACC2+4*dt,Rr(dt),tmp(dt),dt) for dt in (d0,d0+1)])
        s1=two(lambda A,r,n,dt:[f"s_waitcnt lgkmcnt({3*(3-dt)})",f"v_pk_add_f32 {P(A)}, {P(A)}, {P(r)}",f"v_pk_add_f32 {P(A+2)}, {P(A+2)}, {P(r+2)}",f"v_pk_add_f32 {P(r+4)}, {P(r+4)}, {P(r+8)}",f"v_pk_add_f32 {P(r+6)}, {P(r+6)}, {P(r+10)}",
                f"v_pk_add_f32 {P(A)}, {P(A)}, {P(r+4)}",f"v_pk_add_f32 {P(A+2)}, {P(A+2)}, {P(r+6)}"])
        s1+=two(lambda A,r,n,dt:[f"v_pk_mul_f32 {P(r)}, {P(A)}, s[8:9] op_sel_hi:[1,0]",f"v_pk_mul_f32 {P(r+2)}, {P(A+2)}, s[8:9] op_sel_hi:[1,0]"])
        s1+=two(lambda A,r,n,dt:[f"v_exp_f32 v{r+k}, v{r+k}" for k in range(4)])
        s1+=two(lambda A,r,n,dt:[f"v_pk_mul_f32 {P(n)}, {P(n)}, {P(A)}",f"v_pk_mul_f32 {P(n+2)}, {P(n+2)}, {P(A+2)}"])
        s1+=two(lambda A,r,n,dt:[f"v_pk_add_f32 {P(r)}, {P(r)}, 1.0 op_sel_hi:[1,0]",f"v_pk_add_f32 {P(r+2)}, {P(r+2)}, 1.0 op_sel_hi:[1,0]"])
        s1+=two(lambda A,r,n,dt:[f"v_rcp_f32 v{r+k}, v{r+k}" for k in range(4)])
        s1+=two(lambda A,r,n,dt:[f"v_pk_fma_f32 {P(n)}, {P(n)}, {P(r)}, {P(XF+4*dt)}",f"v_pk_fma_f32 {P(n+2)}, {P(n+2)}, {P(r+2)}, {P(XF+4*dt+2)}"])
        o=ACC2+4*d0; n0,n1=tmp(d0),tmp(d0+1)
        s1+=[f"v_cvt_pk_bf16_f32 v{o}, v{n0}, v{n0+1}",f"v_cvt_pk_bf16_f32 v{o+2}, v{n1}, v{n1+1}",f"v_cvt_pk_bf16_f32 v{o+1}, v{n0+2}, v{n0+3}",f"v_cvt_pk_bf16_f32 v{o+3}, v{n1+2}, v{n1+3}",
             f"v_permlane16_swap_b32 v{o}, v{o+2}",f"v_permlane16_swap_b32 v{o+1}, v{o+3}",f"buffer_store_dwordx4 {Q(o)}, v{XO}, {RC}, 0 offen offset:{32*d0} {of}"]
        return s1
    assert OPT["xbf"]
    a.extend(pre)
    for j in range(8): a(f"v_pk_add_f32 {P(ACC2+2*j)}, {P(ACC2+2*j)}, {P(accr(1,j>>1,0)+2*(j&1))}")
    a.extend(fin(0)+fin(2))
    stamp(a,13)
    if OPT["stamps"]:
        a("s_waitcnt vmcnt(0)"); stamp(a,14); stamps_out(a)
    if OPT.get("probe") is not None:
        a("s_waitcnt vmcnt(0)"); stamp(a,14)
        if OPT["probe"]==0: a(f"s_mov_b32 s28, s{NONCE}")
        if OPT.get("prole")=="G": a(f"s_cmp_lt_u32 s{TID}, 216\ns_cselect_b32 s28, s28, s{NONCE}")
        if OPT.get("prole")=="X": a(f"s_sub_u32 s4, s{TID}, 216\ns_cmp_lt_u32 s4, 36\ns_cselect_b32 s28, s28, s{NONCE}")
        a("s_add_u32 s28, s28, 6000\ns_mov_b32 s5, 0\nL_spin:\ns_memrealtime s[0:1]\ns_waitcnt lgkmcnt(0)\ns_sub_u32 s4, s0, s28\ns_add_u32 s5, s5, 1\ns_cmp_gt_u32 s5, 20000\ns_cbranch_scc1 L_spe\ns_cmp_lt_i32 s4, 0\ns_cbranch_scc1 L_spin\nL_spe:")
    a("s_endpgm\nL_segE:")

def check_m0(seg):
    cur=None
    for ins in seg.L:
        if "m0" in ins.w: cur=ins.text.split(",")[1].strip()
        if ins.kind=="vmem" and " lds" in ins.text:
            tg=ins.text.split("@")[1]; want={"w":f"s{LW}","h":f"s{LH}","k":"s9"}[tg[0]]
            assert cur==want,(ins.text,cur)
def build(**kw):
    OPT.update(kw)
    hdr=open("cdna_kernels/"+NAME+".s.ref").read().split("; Override launch")[0]
    segs=s0,sG,sDG,sD,sXA,sC,sDX,sI=[Asm() for _ in range(8)]
    p0(s0); R=roleG(sG); roleX_A(sXA); conv(sC); idle(sI); phaseD(sDG,sD,"G",R); phaseD(sDX,None,"X",W2R())
    for seg in segs:
        for ins in seg.L:
            m=re.search(r";\s*@(\S+)",ins.text)
            if OPT.get("drop"):
                if ins.kind=="vmem" and m and re.fullmatch(OPT["drop"],m.group(1)): ins.__init__("")
                elif ins.text.startswith("@W"):
                    p=ins.text.split(); tg=[t for t in p[1].split(",") if not re.fullmatch(OPT["drop"],t)]
                    ins.__init__(" ".join(["@W",",".join(tg) or "-"]+p[2:]))
            if OPT.get("dropds") and ins.kind=="ds" and m and re.fullmatch(OPT["dropds"],m.group(1)): ins.__init__("ds_nop ; @"+m.group(1))
            if OPT.get("nt") and ins.kind=="vmem" and m and re.fullmatch(OPT["nt"],m.group(1)):
                ins.__init__(ins.text.replace(" lds ;"," nt lds ;") if " lds ;" in ins.text else ins.text.replace(" ;"," nt ;"))
            if OPT.get("nosc1") and ins.kind=="vmem" and m and re.fullmatch(OPT["nosc1"],m.group(1)): ins.__init__(ins.text.replace(" sc1",""))
    resolve_vm([[s0,sG,sDG,sD],[s0,sXA,sC,sDX,sD],[s0,sXA,sI,sDX,sD]])
    a=Asm(); a.L=flat([s.L for s in segs]); c=Asm(); c.extend(COLD)
    if OPT["iw"]:
        k=[i for i,x in enumerate(a.L) if x.text==".p2align 12"][0]; a.L=a.L[:k]+c.L+a.L[k:]
    else: a.L+=c.L
    a("L_end:"); a.fix()
    check_m0(sC)
    if OPT["iw"]:
        def disp(cnt):
            d=Asm()
            for nm in "GXD":
                d(f"L_wc_{nm}:")
                for w in range(4):
                    tgt=f"L_pl_{nm}_{w}" if w<cnt[nm] else "L_wret"
                    d(f"s_cmp_eq_u32 s3, {w}\ns_cbranch_scc1 {tgt}" if w<3 else f"s_branch {tgt}")
            d("L_wret:\ns_setpc_b64 s[82:83]")
            return d.L
        k=[i for i,x in enumerate(a.L) if x.text==".p2align 12"][0]
        L,cnt=page_landings(a.L[:k]+disp(dict(G=0,X=0,D=0))+a.L[k:],"L_org",[("G","L_segG","L_Dc"),("X","L_segX","L_idle"),("D","L_Dc","L_segE")])
        n=len(disp(cnt)); a.L=L[:k]+disp(cnt)+L[k+n:]
        print("; landings",cnt,file=sys.stderr)
    return (hdr+"; @launch grid=(256,1,1) block=(256,1,1) lds=163840\n"+'.amdgcn_target "amdgcn-amd-amdhsa--gfx950"\n.text\n'+a.text()
            +'.section .rodata,"a"\n'+kdesc(KN,256,256))
if __name__=="__main__":
    kw={}
    for x in sys.argv[2:]:
        k,v=x.split("=",1); kw[k]=int(v) if v.lstrip("-").isdigit() else v
    open(sys.argv[1],"w").write(build(**kw))
```

```python
import sys, struct, re
from asmlib import *
from layout import *
NAME="recurrent_scan__ssm_conv_h3__mixer_token_mlp__prompt"
KN=NAME+"_kernel"
OPT=dict(stamps=0, nln=4, nkv=0, npost=10, nA=10, rate=100, lat=3, lead1=2, lead2=2, cflag=0, nin=0, spinmax=100000, sleep=0,
         fpl=2, hrot=1, ostore="sc1", cpl=5, cpr=0, w1w='3_3_4_6', rate2=100, q0=0, q1=0, bsj='33_34_35_36_37_38', g2b=1, rd0=7, pfw=0, pf0=10, jbf=44, jbp=49, jbl=53, jbu=57, nh=6,
         bursts='16.8_17.12_18.19_19.23', maxb=8, quiet=2, cvs=0, bn=1, h0=4, iw=1, kvend=60, n63=2, cch=1, smove=2, je0=0, jen=12, clump=1, ramp=0, cfrac=100,
         rgm=1, w2w='16_2', wd=2, wg=0, hoist=1, pw0=1, hf=1, ct=0, ap='2', rep=4, isl=16, rep1=8, repk=4, npre=10, n0=0, nd0=2, pp=1, ord='h',
         nsl=4, lag=15, f0=8, ncat=2, rg=2, nC=16, nc1=2, c1e=100, pe=9, jlat=1, jd0=0, nd=1, jiG='2_3', jiX='2_3_4', usk=0, uq='50.55',
         nX=18, cvn=13, cvp='9.0.36_3.20.56_9.41.76_3.61.94_9.81.116_9.121.156_9.161.192_0.175.207_1.188.220_9.202.234_0.215.247_1.228.260_9.242.274_0.255.287_1.268.300_9.282.314_0.295.0_1.307.0', fold=1, g2c=1,
         gbc=73, gzp=700, gzl=735, yin=0, np='az', sp1=20, sp2=20, sp3=5, s2d=0, gap=445, gal=500, nal=3, gac=61, gbp=560, gbl=620, nbl=1, gyc=33, gyr=44, gyv='45_54', gx='12_24')
def f2h(x): return "0x%08x"%struct.unpack("<I",struct.pack("<f",x))[0]
S_Q,S_K,S_V,S_SK,S_SSM,S_D,S_BX,S_W1,S_B1,S_W2,S_B2,S_OUT,S_DBG,S_WS=16,18,20,22,24,26,28,30,32,34,36,38,40,42
WS="s[44:47]"; RW1="s[48:51]"; RW2="s[52:55]"; RA="s[56:59]"; RB_="s[60:63]"; RC="s[64:67]"
NONCE,N1,M1,N2,KQ,LW,LH,TID=68,69,70,71,72,73,74,75
K1,K2,KA=76,84,18
NB_SD=2048*576*2
FLAG1=WS_FLAGS; FLAG2=WS_FLAGS+32768; FLAGK=WS_FLAGS+65536
SLOT=16384; HR=7*SLOT; HS=12288
LN_STR=1216; LN_ST=144896; KV_ST=LN_ST+8*LN_STR
OOB="0x40000000"
def P(r): return f"v[{r}:{r+1}]"
def Q(r,k="v"): return f"{k}[{r}:{r+3}]"
def flat(x): return sum(x,[])
def lines(items):
    out=[]
    for it in items:
        l=it.split("\n"); last=max([i for i,x in enumerate(l) if x.startswith(("s_cselect","s_addc"))],default=-1); i=0
        while i<len(l):
            j=i
            if l[i].startswith(("s_cmp","s_bitcmp")):
                j=i+1
                while j+1<=last and not l[j+1].startswith(("s_cmp","s_bitcmp")): j+=1
            out.append("\n".join(l[i:j+1])); i=j+1
    return out

def stamp(a,c,fine=None):
    if OPT.get("probe") is not None:
        if fine is None and c==OPT["probe"]: a("s_memrealtime s[28:29]\ns_waitcnt lgkmcnt(0)")
        return
    if OPT.get("fine") and fine!=OPT["fine"] and c!=14: return
    if fine and not OPT.get("fine"): return
    if OPT["stamps"]:
        a(f"s_memrealtime s[28:29]\ns_memtime s[0:1]\ns_waitcnt lgkmcnt(0)\nv_writelane_b32 v254, s28, {c}\nv_writelane_b32 v254, s0, {16+c}")
def stamps_out(a):
    a(f"s_lshl_b32 s4, s{TID}, 2\ns_add_u32 s4, s4, s3\ns_lshl_b32 s4, s4, 7\ns_add_u32 s4, s4, {WS_STAMP}\nv_lshlrev_b32 v255, 2, v2\ns_mov_b64 exec, 0xffffffff")
    a(f"buffer_store_dword v254, v255, {WS}, s4 offen")

def unpack(dst,src): return [f"v_and_b32 v{dst+1}, 0xffff0000, v{src}", f"v_lshlrev_b32 v{dst}, 16, v{src}"]
def reduce32(r,t):
    L=[f"v_add_f32_dpp v{r}, v{r}, v{r} row_ror:{sh} row_mask:0xf bank_mask:0xf" for sh in (8,4,2,1)]
    return L+[f"v_mov_b32 v{t}, v{r}", f"v_permlane16_swap_b32 v{r}, v{t}", f"v_add_f32 v{r}, v{r}, v{t}"]
def rbf(r): return [f"v_cvt_pk_bf16_f32 v{r}, v{r}, v{r}", f"v_lshlrev_b32 v{r}, 16, v{r}"]
NEG1="op_sel_hi:[1,0] neg_lo:[0,1] neg_hi:[0,1]"
def ln_fused(X,T,M,RS,D,ST):
    L=[f"v_pk_add_f32 {P(T+2*i)}, {P(X+4*i)}, {P(X+4*i+2)}" for i in range(4)]
    L+=[f"v_pk_add_f32 {P(T)}, {P(T)}, {P(T+2)}", f"v_pk_add_f32 {P(T+4)}, {P(T+4)}, {P(T+6)}", f"v_pk_add_f32 {P(T)}, {P(T)}, {P(X+16)}", f"v_pk_add_f32 {P(T)}, {P(T)}, {P(T+4)}"]
    L+=[f"v_add_f32 v{M}, v{T}, v{T+1}"]+reduce32(M,M+1)+[f"v_mul_f32 v{M}, 0x3ae38e39, v{M}"]
    L+=[f"v_pk_add_f32 {P(X+2*j)}, {P(X+2*j)}, {P(M)} {NEG1}" for j in range(9)]
    L+=[f"v_pk_mul_f32 {P(T)}, {P(X)}, {P(X)}", f"v_pk_mul_f32 {P(T+2)}, {P(X+2)}, {P(X+2)}"]
    L+=[f"v_pk_fma_f32 {P(T+2*(j&1))}, {P(X+2*j)}, {P(X+2*j)}, {P(T+2*(j&1))}" for j in range(2,9)]
    L+=[f"v_pk_add_f32 {P(T)}, {P(T)}, {P(T+2)}", f"v_add_f32 v{RS}, v{T}, v{T+1}"]+reduce32(RS,RS+1)
    L+=[f"v_mul_f32 v{RS}, 0x3ae38e39, v{RS}"]
    L+=[f"v_cvt_pk_bf16_f32 v{T}, v{M}, v{RS}", f"v_lshlrev_b32 v{ST}, 16, v{T}", f"v_and_b32 v{T}, 0xffff0000, v{T}",
        f"v_add_f32 v{T}, 0x3727c5ac, v{T}", f"v_sub_f32 v{M}, v{M}, v{ST}"]+rbf(T)+[f"v_sqrt_f32 v{T}, v{T}"]+rbf(T)+[f"v_rcp_f32 v{ST+1}, v{T}"]
    L+=[f"v_mul_f32 v{M}, v{M}, v{ST+1}", f"v_mul_f32 v{RS}, v{RS}, v{ST+1}", f"v_mul_f32 v{RS}, v{RS}, v{ST+1}",
        f"v_cvt_pk_bf16_f32 v{T}, v{M}, v{RS}", f"v_lshlrev_b32 v{T+1}, 16, v{T}", f"v_and_b32 v{T}, 0xffff0000, v{T}",
        f"v_add_f32 v{T}, 0x3727c5ac, v{T}", f"v_sub_f32 v{M}, v{M}, v{T+1}"]+rbf(T)+[f"v_sqrt_f32 v{T}, v{T}"]+rbf(T)+[f"v_rcp_f32 v{T}, v{T}"]
    L+=[f"v_mul_f32 v{RS}, v{ST+1}, v{T}", f"v_mul_f32 v{M}, v{M}, v{T}"]
    L+=[f"v_pk_fma_f32 {P(X+2*j)}, {P(X+2*j)}, {P(RS)}, {P(M)} op_sel_hi:[1,0,0]" for j in range(9)]
    L+=[f"v_cvt_pk_bf16_f32 v{D+j}, v{X+2*j}, v{X+2*j+1}" for j in range(9)]
    return L

VW2,RB2,RR,VA,SA,B8,PV,XO=4,10,14,19,26,27,28,252
AF,L16,PA1,PE1,PA2,PE2,PD_,XF,NN,YP,RB8,SA8,PY,SB,RVS,WV=104,136,137,138,139,140,141,144,164,184,186,18,188,192,204,220
SYA,SZ,SR0,SR1,SMA,SM8,ST8,SY0,SC16,SST,SMB,SMZ,SYB,SY8=30,31,32,33,34,35,36,37,40,42,11,12,15,16
KU=18
ACC1,HF,BIAS,VW1,RW1B,VH,RH,GT=32,80,144,148,152,156,159,160
NT=18
MP="s_bfe_u32 s{}, s2, 0x20003"

def w2reg(t): return ("a",16*t) if t<16 else ("v",WV+16*(t-16))
def w2dma(t,slot):
    L=[f"s_add_u32 m0, s{LW}, {slot*SLOT}\ns_lshl_b32 s14, s{K2+t}, 18"]
    return L+[f"buffer_load_dwordx4 v{VW2+r}, {RW2}, s14 offen offset:{1024*r} lds ; @w2_{t}" for r in range(4)]
class W2R:
    def __init__(self): self.win=0
    def goto(self,w):
        d=(w-self.win)*65536; self.win=w
        return [f"v_add_u32 v{RB2+nt}, {d}, v{RB2+nt}" for nt in range(2)] if d else []
    def reads(self,t,slot):
        kind,r0=w2reg(t); adj=self.goto(slot>>2); L=[]
        for nt in range(2):
            for ks in range(2):
                for hf in range(2):
                    r=r0+8*ks+4*nt+2*hf
                    s=f"ds_read_b64_tr_b16 {kind}[{r}:{r+1}], v{RB2+nt} offset:{(slot&3)*SLOT+4096*ks+2048*hf} ; @r2_{t}"
                    L.append((adj[nt]+"\n" if adj and ks+hf==0 else "")+s)
        return L
def w2setup():
    L=["v_lshrrev_b32 v24, 3, v2","v_and_b32 v25, 7, v2","v_bfe_u32 v31, v2, 4, 2","v_lshlrev_b32 v31, 1, v31","v_xor_b32 v25, v25, v31","v_lshlrev_b32 v24, 12, v24","v_lshl_add_u32 v24, v25, 4, v24",
       w2base(7)+f"\ns_lshl_b32 s8, s{N2}, 7\ns_add_u32 s7, s7, s8\nv_add_u32 v{VW2}, s7, v24"]
    L+=[f"v_add_u32 v{VW2+i}, {32768-1024}, v{VW2+i-1}" for i in range(1,4)]
    L+=["v_lshrrev_b32 v24, 2, v2","v_lshlrev_b32 v24, 7, v24","v_and_b32 v25, 3, v2","v_lshl_add_u32 v24, v25, 3, v24",f"s_and_b32 s7, s{LW}, 8192\nv_add_u32 v24, s7, v24","v_bfe_u32 v31, v2, 3, 2",
        "s_and_b32 s7, s3, 1\ns_lshl_b32 s7, s7, 1\nv_xor_b32 v31, s7, v31",f"v_lshl_add_u32 v{RB2}, v31, 5, v24",f"v_xor_b32 v{RB2+1}, 32, v{RB2}"]
    return L
def w2base(d): return f"s_mul_i32 s{d}, s{KQ}, 36\ns_bitcmp1_b32 s3, 0\ns_addc_u32 s{d}, s{d}, 0\ns_lshl_b32 s{d}, s{d}, 17"
def k2table():
    L=[]; b=0; ws=[int(x) for x in str(OPT["w2w"]).split("_")]; assert sum(ws)==18 and ws[-1]>1
    for W in ws:
        L.append(f"s_mul_i32 s{K2+b}, s{K2+17}, {W}\ns_lshr_b32 s{K2+b}, s{K2+b}, 2\ns_add_u32 s{K2+b}, s{K2+b}, {b}")
        L+=[f"s_add_u32 s{K2+i}, s{K2+i-1}, 1\ns_cmp_eq_u32 s{K2+i}, {b+W}\ns_cselect_b32 s{K2+i}, {b}, s{K2+i}" for i in range(b+1,b+W)]
        b+=W
    return L
def kutable():
    return ["s_bitcmp1_b32 s3, 1\n"+"\n".join(f"s_cselect_b32 s{KU+u}, s{K2+2*u+1}, s{K2+2*u}\ns_mul_i32 s{KU+u}, s{KU+u}, {2*U2_KS}" for u in range(9))]
def eprep():
    return [f"v_and_b32 v24, 15, v2\ns_lshl_b32 s7, s{N2}, 6\nv_add_u32 v24, s7, v24\ns_and_b32 s8, s3, 1\ns_lshl_b32 s4, s8, 5\nv_add_u32 v25, s4, v24\nv_lshlrev_b32 v{SA}, 3, v25",
            f"v_mul_u32_u24 v25, 1152, v25\nv_bfe_u32 v31, v2, 4, 1\nv_lshl_add_u32 v25, v31, 5, v25\nv_lshrrev_b32 v31, 5, v2\nv_lshl_add_u32 v25, v31, 4, v25\n"+MP.format(7)+"\ns_mul_i32 s7, s7, 288",
            f"s_lshl_b32 s4, s{KQ}, 6\ns_add_u32 s4, s4, s7\nv_add_u32 v{XO}, s4, v25\ns_xor_b32 s8, s3, s{KQ}\ns_and_b32 s4, s{KQ}, 1\ns_lshl1_add_u32 s4, s4, s8\nv_lshl_add_u32 v24, s4, 4, v24",
            f"s_add_u32 s7, s7, 256\ns_cmp_lt_u32 s8, 2\ns_cselect_b32 s7, s7, {OOB}\nv_lshlrev_b32 v{SA8}, 3, v24\nv_mul_u32_u24 v24, 1152, v24\nv_lshrrev_b32 v31, 4, v2\nv_lshl_add_u32 v24, v31, 3, v24\nv_add_u32 v{XO+1}, s7, v24"]

COLD=[]
def flag_prep(idx_sgpr, base, v=1):
    f=OPT["fpl"]
    return [f"s_lshr_b32 s4, s{idx_sgpr}, {f}\ns_lshl_b32 s4, s4, 7\ns_and_b32 s5, s{idx_sgpr}, {(1<<f)-1}\ns_lshl2_add_u32 s4, s5, s4\ns_add_u32 s4, s4, {base}",
            f"v_min_u32 v{v}, 1, v0\nv_lshlrev_b32 v{v}, 30, v{v}\nv_add_u32 v{v}, s4, v{v}"]
def flag_store(a): a(f"v_mov_b32 v3, s{NONCE}\nbuffer_store_dword v3, v1, {WS}, 0 offen sc1 ; @fl")
def pv(tag): return PY if tag[:2]=="p3" else 15 if tag=="p2G" else PV
def poll_addr(first_expr, n, base, v=PV):
    f=OPT["fpl"]
    return [first_expr+f"\nv_min_u32 v{v}, {n-1}, v2", f"v_add_u32 v{v}, s4, v{v}", f"v_and_b32 v{v+1}, {(1<<f)-1}, v{v}", f"v_lshrrev_b32 v{v}, {f}, v{v}",
            f"v_lshlrev_b32 v{v}, 7, v{v}", f"v_lshl_add_u32 v{v}, v{v+1}, 2, v{v}", f"v_add_u32 v{v}, {base}, v{v}"]
def atom(tag): return tag[1] in str(OPT["ap"])
def pexp(tag): return f"s{NONCE}" if tag=="p1X" else {"1":"v12","2":"v13","5":"v12"}[tag[1]]
def poll_op(tag):
    v=pv(tag)
    return f"v_mov_b32 v{v+1}, 0\nbuffer_atomic_add v{v+1}, v{v}, {WS}, 0 offen sc0 sc1" if atom(tag) else f"buffer_load_dword v{v+1}, v{v}, {WS}, 0 offen sc1"
def poll_issue(tag): return poll_op(tag)+f" ; @{tag}"
def poll_check(tag):
    v=pv(tag); sl=f"s_sleep {OPT['sleep']}\n" if OPT["sleep"] else ""; ex=pexp(tag) if atom(tag) else "s83" if (tag[:2]=="p2" and OPT["pw0"]==1) else f"s{NONCE}"
    pre=""
    if tag=="p2G" and OPT["ct"]:
        pre=f"v_and_b32 v24, 31, v2\nv_lshlrev_b32 v24, 12, v24\n"+w2base(4)+f"\ns_lshl_b32 s7, s{N2}, 7\ns_add_u32 s4, s4, s7\nv_add_u32 v24, s4, v24\nv_lshrrev_b32 v25, 5, v2\n"
        for t in range(18-OPT["ct"],18,2): pre+=f"s_sub_u32 s4, s{K2+t+1}, s{K2+t}\nv_mul_i32_i24 v31, s4, v25\nv_add_u32 v31, s{K2+t}, v31\nv_lshl_add_u32 v31, v31, 18, v24\nbuffer_load_dword v255, v31, {RW2}, 0 offen\n"
    if tag[:2]=="p2" and OPT["pw0"]==2: pre+=f"s_cmp_lg_u32 s3, 0\ns_cbranch_scc1 L_rx_{tag}\n"
    if not any(c.startswith(f"L_rs_{tag}:") for c in COLD): COLD.append(f"L_rs_{tag}:\n{pre}s_mov_b32 s5, 0\nL_rt_{tag}:\ns_mov_b64 exec, vcc\n{sl}"
            f"{poll_op(tag)}\ns_waitcnt vmcnt(0)\nv_cmp_ne_u32 vcc, {ex}, v{v+1}\ns_cbranch_vccz L_rx_{tag}\n"
            f"s_add_u32 s5, s5, 1\ns_cmp_lt_u32 s5, {OPT['spinmax']}\ns_cbranch_scc1 L_rt_{tag}\nL_rx_{tag}:\ns_mov_b64 exec, -1\ns_branch L_ok_{tag}")
    return f"@W {tag}\nv_cmp_ne_u32 vcc, {ex}, v{v+1}\ns_cbranch_vccnz L_rs_{tag}\nL_ok_{tag}:"
def split_check(c):
    l=c.split("\n"); k=[i for i,x in enumerate(l) if x.startswith("s_cbranch_vcc")]
    if not k: return l[:-2]+["\n".join(l[-2:])]
    k=k[0]; return l[:k-1]+[l[k-1]+" ; #"+l[k].split()[1], far("\n".join(l[k:]))]
def poll1_addr():
    if atom("p1"):
        return [f"s_lshr_b32 s4, s2, 1\ns_and_b32 s4, s4, {OPT['repk']-1}\ns_lshl2_add_u32 s4, s4, s3\ns_lshl_b32 s4, s4, 8\ns_add_u32 s4, s4, {FLAGK}\nv_lshl_add_u32 v{PV}, v2, 2, s4"]
    return poll_addr("s_lshl_b32 s4, s3, 6",64,FLAGK if OPT["hf"] else FLAG1)
def flag2_prep(v):
    R=OPT["rep"]; k=R.bit_length()-1
    return [f"s_mul_i32 s4, s{M1}, 43691\ns_lshr_b32 s4, s4, 16\ns_mul_i32 s5, s{M1}, 21846\ns_lshr_b32 s5, s5, 16\ns_mul_i32 s5, s5, 3\ns_sub_u32 s5, s{M1}, s5",
            f"s_lshl2_add_u32 s4, s{KQ}, s4\ns_lshl_b32 s4, s4, {7+k}\ns_mul_i32 s7, s{KQ}, 9\ns_sub_u32 s7, s{N1}, s7\ns_lshl3_add_u32 s4, s7, s4\ns_add_u32 s4, s4, {FLAG2}",
            f"s_cmp_eq_u32 s5, 1\ns_cselect_b32 s7, {2*R}, {R}", f"s_cmp_lg_u32 s5, 0\ns_cselect_b32 s5, 4, 0",
            f"v_lshlrev_b32 v{v}, 7, v0\nv_add_u32 v{v}, s4, v{v}\nv_cmp_gt_u32 vcc, {R}, v0\nv_mov_b32 v24, s5\nv_cndmask_b32 v24, 0, v24, vcc\nv_add_u32 v{v}, v{v}, v24",
            f"v_cmp_gt_u32 vcc, s7, v0\nv_mov_b32 v24, {OOB}\nv_cndmask_b32 v{v}, v24, v{v}, vcc"]
def poll2_addr(v=PV):
    if OPT["rep"]:
        R=OPT["rep"]; k=R.bit_length()-1; assert atom("p2") and OPT["pw0"]==1
        L=[MP.format(4)+f"\ns_lshl2_add_u32 s4, s{KQ}, s4\ns_lshl_b32 s4, s4, {k}"]
        if R>1: L+=[f"s_lshr_b32 s5, s2, 4\ns_and_b32 s5, s5, {R-2}\ns_add_u32 s4, s4, s5\ns_and_b32 s5, s2, 1\ns_add_u32 s4, s4, s5"]
        return L+[f"s_lshl_b32 s4, s4, 7\ns_add_u32 s4, s4, {FLAG2}\nv_lshl_add_u32 v{v}, v2, 2, s4",
                  f"s_cmp_eq_u32 s3, 0\ns_cselect_b32 s4, 18, 0\nv_cmp_gt_u32 vcc, s4, v2\nv_mov_b32 v13, {OOB}\nv_cndmask_b32 v{v}, v13, v{v}, vcc\nv_mov_b32 v13, s{NONCE}\nv_cndmask_b32 v13, 0, v13, vcc"]
    L=poll_addr(f"s_mul_i32 s4, s{KQ}, 54\n"+MP.format(5)+"\ns_mul_i32 s5, s5, 3\ns_lshr_b32 s5, s5, 1\ns_add_u32 s4, s4, s5",18,FLAG2,v)
    L=L[:1]+[f"v_lshrrev_b32 v{v+1}, 1, v{v}", f"v_lshl_add_u32 v{v}, v{v+1}, 2, v{v}"]+L[1:]
    if atom("p2"):
        assert OPT["pw0"]
        L+=[(f"s_cmp_eq_u32 s3, 0\ns_cselect_b32 s4, 18, 0" if OPT["pw0"]==1 else "s_mov_b32 s4, 18")+f"\nv_cmp_gt_u32 vcc, s4, v2\nv_mov_b32 v13, {OOB}\nv_cndmask_b32 v{v}, v13, v{v}, vcc\nv_mov_b32 v13, s{NONCE}\nv_cndmask_b32 v13, 0, v13, vcc"]
    elif OPT["pw0"]==1: L+=[f"s_cmp_eq_u32 s3, 0\ns_cselect_b32 s83, s{NONCE}, 0\ns_cselect_b32 s4, 0, {OOB}\nv_add_u32 v{v}, s4, v{v}"]
    return L

def warm(name):
    if not OPT["iw"]: return []
    return [f"s_mov_b64 exec, 0\ns_call_b64 s[82:83], L_wc_{name}\ns_mov_b64 exec, -1"]

KR,VR,TR=60,82,98
KL=HR; VL=HR+12672
def p0(a):
    a(f".globl {KN}\n.p2align 8\n.type {KN},@function\n{KN}:")
    a("s_cmp_lt_u32 s2, 256\ns_cbranch_scc0 L_exit")
    a("s_load_dwordx2 s[56:57], s[0:1], 0\ns_load_dwordx2 s[48:49], s[0:1], 8\ns_load_dwordx2 s[52:53], s[0:1], 16\ns_load_dwordx2 s[60:61], s[0:1], 24")
    a("s_load_dwordx16 s[16:31], s[0:1], 0\ns_load_dwordx8 s[32:39], s[0:1], 64\ns_load_dwordx4 s[40:43], s[0:1], 96\ns_memrealtime s[12:13]")
    a("v_lshrrev_b32 v1, 6, v0\nv_and_b32 v2, 63, v0")
    nl=OPT["cpl"]; red=OPT["cpr"]
    a(f"s_getpc_b64 s[6:7]\nL_pc:\ns_lshr_b32 s4, s2, 1\ns_and_b32 s4, s4, {(128>>red)-4}\nv_add_u32 v22, s4, v1\nv_lshl_add_u32 v22, v2, {7-red}, v22\nv_lshlrev_b32 v22, 7, v22")
    a(f"v_min_u32 v22, L_end-L_pc-4, v22\ns_mov_b64 exec, {(1<<nl)-1}\nglobal_load_dword v255, v22, s[6:7] ; @code\ns_mov_b64 exec, -1\nv_readfirstlane_b32 s3, v1")
    if OPT["rgm"]: a(f"s_and_b32 s4, s2, 7\ns_lshr_b32 s5, s2, 3\ns_lshl_b32 s4, s4, 5\ns_add_u32 s{NONCE}, s4, s5")
    else: a(f"s_mov_b32 s{NONCE}, s2")
    a(f"v_lshrrev_b32 v3, 5, v0\nv_and_b32 v4, 31, v0\nv_mul_u32_u24 v5, 1152, v3\nv_mad_u32_u24 v5, v4, 12, v5\ns_mul_i32 s15, s{NONCE}, 9216")
    a(f"s_mul_i32 s4, s3, 3072\ns_add_u32 s5, s4, s15\ns_sub_u32 s5, s5, 3456\nv_lshlrev_b32 v6, 4, v2\nv_add_u32 v7, s5, v6\nv_add_u32 v58, 1024, v7")
    a(f"s_add_u32 s4, s4, {KL}\ns_lshl_b32 s5, s3, 11\ns_add_u32 s11, s5, s15\ns_add_u32 s5, s5, {VL}\ns_mov_b32 m0, s4")
    for r,nb in ((56,NB_SD),(48,NB_SD),(52,NB_SD),(60,576*8)): a(f"s_mov_b32 s{r+2}, {nb}\ns_mov_b32 s{r+3}, 0x20000")
    a("v_lshlrev_b32 v59, 3, v0\ns_movk_i32 s10, 4096")
    a("s_waitcnt lgkmcnt(0)")
    stamp(a,1,"P")
    for j in range(3): a(f"buffer_load_dwordx3 v[{8+4*j}:{10+4*j}], v5, {RA}, s15 offen offset:{384*j} ; @x")
    a("buffer_load_dwordx4 v7, s[48:51], 0 offen lds ; @kv\ns_add_u32 m0, s4, 1024\ns_cmp_eq_u32 s3, 3")
    a("buffer_load_dwordx4 v58, s[48:51], 0 offen lds ; @kv\nbuffer_load_dwordx4 v58, s[48:51], 0 offen offset:1024 lds ; @kv\ns_cbranch_scc1 L_xld\nL_nox:\ns_mov_b32 m0, s5")
    COLD.insert(0,"L_xld:\ns_mov_b64 exec, 0xffffff\nbuffer_load_dwordx4 v58, s[48:51], 0 offen offset:2048 lds\ns_mov_b64 exec, -1\ns_mov_b32 m0, s5\nbuffer_load_dwordx4 v6, s[52:55], s11 offen offset:2048 lds\ns_branch L_nox")
    a(f"buffer_load_dwordx2 {P(TR)}, v59, {RB_}, 0 offen ; @kv")
    a("buffer_load_dwordx4 v6, s[52:55], s11 offen lds ; @kv\nbuffer_load_dwordx4 v6, s[52:55], s11 offen offset:1024 lds ; @kv")
    a(f"buffer_load_dwordx2 {P(TR+2)}, v59, {RB_}, 0 offen offset:2048 ; @kv\nbuffer_load_dwordx2 {P(TR+4)}, v59, {RB_}, s10 offen ; @kv")
    srd(a,64,S_DBG,256)
    if OPT["stamps"]: a("v_writelane_b32 v254, s12, 0")
    a(f"s_or_b32 s12, s12, 1\nv_or_b32 v22, s2, v0\nv_lshlrev_b32 v22, 8, v22\nv_mov_b32 v23, s12\nbuffer_store_dword v23, v22, {RC}, 0 offen sc1 ; @pub")
    stamp(a,2,"P")
    srd(a,44,S_WS,WS_END)
    a("s_and_b32 s5, s2, 7\ns_lshr_b32 s6, s2, 3")
    a("s_lshr_b32 s7, s6, 2\ns_lshr_b32 s8, s3, 1\ns_lshl1_add_u32 s9, s7, s8\ns_cmp_ge_u32 s9, 10\ns_addc_u32 s14, s9, 0\ns_cmp_ge_u32 s9, 3\ns_addc_u32 s14, s14, 0")
    a(f"s_lshl3_add_u32 s8, s8, 3\ns_cmp_eq_u32 s7, 7\ns_cselect_b32 s14, s8, s14\ns_and_b32 s4, s5, 1\ns_lshl4_add_u32 s{N2}, s4, s14")
    a(f"s_lshr_b32 s13, s5, 1\ns_mov_b32 s{KQ}, s13\ns_and_b32 s{K2+17}, s6, 3\ns_lshl_b32 s{LW}, s3, 12")
    srd(a,52,S_W2,4608*4096)
    if OPT["smove"]<2: a.extend(k2table())
    a("s_cmp_lt_u32 s6, 27\ns_cbranch_scc0 L_aux")
    if OPT["iw"]==1: a("s_branch L_org\nL_exit:\ns_endpgm\n.p2align 12\nL_org:")
    else: COLD.append("L_exit:\ns_endpgm")

def phaseA(a, tag, fill_ln, fill_kv, fill_post):
    X,T,M,RS,D=20,38,56,18,8
    L=flat([unpack(X+2*j,8+4*(j//3)+j%3) for j in range(9)])+ln_fused(X,T,M,RS,D,106)
    a(f"s_mov_b32 s9, {LN_ST}\ns_mov_b32 s11, {KL}")
    stamp(a,3,"P")
    if OPT.get("fine")=="P":
        a("s_waitcnt vmcnt(12)"); stamp(a,4,"P")
        a("s_waitcnt vmcnt(9)"); stamp(a,5,"P")
        a("s_waitcnt vmcnt(6)"); stamp(a,6,"P")
        a("s_waitcnt vmcnt(4)"); stamp(a,7,"P")
        a("s_waitcnt vmcnt(1)"); stamp(a,8,"P")
        a("s_waitcnt vmcnt(0)"); stamp(a,9,"P")
    a("@W x"); stamp(a,1)
    a.extend(interleave(L,fill_ln,0,len(L)-4) if fill_ln else L)
    a(f"v_lshrrev_b32 v3, 5, v0\nv_and_b32 v1, 31, v0\nv_mul_u32_u24 v17, {LN_STR}, v3\nv_mad_u32_u24 v17, v1, 12, v17\nv_add_u32 v17, {LN_ST}, v17")
    for j in range(9): a(f"ds_write_b32 v17, v{D+j} offset:{384*(j//3)+4*(j%3)}")
    a(f"v_lshlrev_b32 v3, 3, v3\ns_lshl_b32 s5, s{NONCE}, 6\ns_add_u32 s5, s5, {WS_STATS}\nv_cmp_eq_u32 vcc, 0, v1\nv_mov_b32 v18, {OOB}\nv_cndmask_b32 v3, v18, v3, vcc")
    a(f"buffer_store_dwordx2 v[106:107], v3, {WS}, s5 offen sc1 ; @st")
    a(f"v_lshrrev_b32 v19, 4, v0\nv_and_b32 v17, 3, v2\nv_lshlrev_b32 v17, 3, v17\nv_lshl_add_u32 v19, v19, 5, v17\nv_bfe_u32 v6, v2, 2, 2\nv_mul_u32_u24 v17, {LN_STR}, v6\nv_mul_u32_u24 v6, 1152, v6")
    a(f"v_add3_u32 v17, v17, v19, s9\nv_add3_u32 v6, v6, v19, s11")
    a(f"v_lshlrev_b32 v19, 4, v0\ns_add_u32 s7, s15, 4096\ns_add_u32 s8, s15, 8192\ns_cmp_eq_u32 s3, 0\ns_cselect_b32 s8, s8, {OOB}\nv_add_u32 v18, {WS_KVT}, v19\nv_mov_b32 v44, 0")
    hf=OPT["hf"]
    a("@W - 0\ns_barrier" if hf else "@W kv 0\ns_barrier")
    hrd=[[f"ds_read_b64_tr_b16 {P(20+4*i)}, v17 offset:{512*i} ; @ht{i}", f"ds_read_b64_tr_b16 {P(22+4*i)}, v17 offset:{512*i+4*LN_STR} ; @ht{i}"] for i in range(3)]
    so=("s15","s7","s8")
    hst=[f"@W - ht{i}\nbuffer_store_dwordx4 {Q(20+4*i)}, v19, {WS}, {so[i]} offen sc1 ; @st" for i in range(3)]
    krd=[[f"ds_read_b64_tr_b16 {P(KR+10*i+2*q)}, v6 offset:{512*i+1152*(0,4,8,11,15)[q]} ; @kr{i}" for q in range(5)] for i in range(3)]
    nonce=f"buffer_load_dword v45, v44, {RC}, 0 offen sc1 ; @nonce"
    fl=[f"s_bfe_u32 s6, s{NONCE}, 0x20001\ns_lshl_b32 s6, s6, 6\ns_lshr_b32 s9, s{NONCE}, 3\ns_lshl_b32 s9, s9, 1\ns_add_u32 s6, s6, s9\ns_and_b32 s9, s{NONCE}, 1\ns_add_u32 s6, s6, s9"]+(flag_prep(6,FLAG1) if not atom("p1") else
        [f"s_lshl_b32 s4, s6, 2\ns_add_u32 s4, s4, {FLAG1}\nv_lshl_add_u32 v1, v0, 10, s4\nv_add_u32 v46, {FLAGK-FLAG1}, v1\nv_mov_b32 v47, {OOB}\nv_cmp_gt_u32 vcc, {OPT['rep1']}, v0\nv_cndmask_b32 v1, v47, v1, vcc\nv_cmp_gt_u32 vcc, {OPT['repk']}, v0\nv_cndmask_b32 v46, v47, v46, vcc"])
    if hf:
        a.extend(flat(hrd)+fl+hst+[nonce]); stamp(a,2)
        a("@W kv\ns_barrier"); a.extend(krd[0]+krd[1]); hst=[]
    else: a.extend(krd[0]+flat(hrd)+krd[1][:4]); stamp(a,2)
    def kvc(i):
        K=KR+10*i; V_=K+6; J=108; T=114; RE=116+8*(i&1); VU=132; O=160+4*i
        L=[f"v_alignbit_b32 v{T}, v{TR+2*i+1}, v{TR+2*i+1}, 16", f"v_alignbit_b32 v{T+1}, v{TR+2*i}, v{TR+2*i}, 16", f"@W - kr{i}"]
        L+=[f"v_alignbit_b32 v{J+m}, v{K+m+1}, v{K+m}, 16" for m in range(5)]
        L+=[f"v_dot2_f32_bf16 v{RE+r}, v{(J if r&1 else K)+(r>>1)}, v{T}, 0" for r in range(8)]
        L+=[f"v_dot2_f32_bf16 v{RE+r}, v{(J if r&1 else K)+(r>>1)+1}, v{T+1}, v{RE+r}" for r in range(8)]
        L+=flat([unpack(VU+2*m,V_+m) for m in range(4)])
        L+=[f"v_pk_mul_f32 {P(RE+2*m)}, {P(RE+2*m)}, {P(VU+2*m)}" for m in range(4)]
        L+=[f"v_cvt_pk_bf16_f32 v{O+p}, v{RE+7-2*p}, v{RE+6-2*p}" for p in range(4)]
        return L+[f"buffer_store_dwordx4 {Q(O)}, v18, {WS}, {so[i]} offen sc1 ; @stk"]
    c0=kvc(0)
    pub=f"@W nonce\nv_readfirstlane_b32 s{NONCE}, v45\ns_cmp_eq_u32 s{NONCE}, 0\ns_cbranch_scc1 L_nw_{tag}\nL_ng_{tag}:\ns_barrier\nv_mov_b32 v3, s{NONCE}\nbuffer_store_dword v3, v1, {WS}, 0 offen sc1 ; @fl"
    L=c0[:8]+interleave(c0[8:],(krd[2] if hf else krd[1][4:]+krd[2])+hst,0,24)+kvc(1)+([pub] if hf==2 else [])+kvc(2)
    a.extend(interleave(L,fill_kv,10,OPT['kvend']) if fill_kv else L)
    if not hf: a(nonce)
    stamp(a,3)
    if hf:
        k=OPT["npre"]; a.extend(fill_post[:k])
        if hf==1: a(pub)
        stamp(a,15)
        a.extend(fill_post[k:])
        a(("v_mov_b32 v1, v46" if atom("p1") else f"v_add_u32 v1, {FLAGK-FLAG1}, v1")+f"\n@W stk\ns_barrier\nbuffer_store_dword v3, v1, {WS}, 0 offen sc1 ; @fl")
    else: a.extend(fill_post+fl+[pub])
    COLD.append(f"L_nw_{tag}:\ns_mov_b32 s5, 0\nL_nl_{tag}:\nbuffer_load_dword v45, v44, {RC}, 0 offen sc1\ns_waitcnt vmcnt(0)\nv_readfirstlane_b32 s{NONCE}, v45\n"
                f"s_cmp_lg_u32 s{NONCE}, 0\ns_cbranch_scc1 L_ng_{tag}\ns_add_u32 s5, s5, 1\ns_cmp_lt_u32 s5, {OPT['spinmax']}\ns_cbranch_scc1 L_nl_{tag}\ns_branch L_ng_{tag}")
    stamp(a,4)

def w2steps(S, n_issue, n_drain, pick):
    steps=[]; R=S["R"]
    def issue():
        t=S["issue"]; s=pick(t,S["free"]) if t<n_issue else None
        if s is None: return []
        S["free"].remove(s); S["slot"][t]=s; S["issue"]+=1
        return w2dma(t,s)
    while True:
        d=issue()
        if not d: break
        steps.append(d)
    prev=None
    while S["drain"]<n_drain:
        t=S["drain"]; S["drain"]+=1; dm=[]
        st=[f"@W w2_{t} "+(f"r2_{prev}" if prev is not None else "-")+"\ns_barrier"]
        if prev is not None: S["free"].append(S["slot"].pop(prev)); dm=issue()
        steps.append(st+interleave(R.reads(t,S["slot"][t]),dm)); prev=t
    if prev is not None:
        S["free"].append(S["slot"].pop(prev)); steps.append([f"@W - r2_{prev}\ns_barrier"]+issue())
    while S["issue"]<n_issue:
        d=issue(); assert d; steps.append(d)
    return steps

def roleG(a):
    a(f"s_mul_i32 s7, s6, 21846\ns_lshr_b32 s7, s7, 16\ns_mul_i32 s8, s7, 3\ns_sub_u32 s12, s6, s8\ns_mul_i32 s8, s13, 9\ns_add_u32 s{N1}, s8, s7\ns_lshl1_add_u32 s{M1}, s12, s4")
    a(f"s_mul_i32 s8, s{N1}, 6\ns_add_u32 s{TID}, s8, s{M1}")
    srd(a,48,S_W1,2048*4608*2)
    if OPT["hrot"]: a("s_add_u32 s12, s12, s7\ns_mul_i32 s8, s12, 21846\ns_lshr_b32 s8, s8, 16\ns_mul_i32 s8, s8, 3\ns_sub_u32 s12, s12, s8")
    KT=list(range(18,28))+list(range(76,82)); b=0
    a(f"s_mul_i32 s4, s4, {16*73728}")
    for W in [int(x) for x in str(OPT["w1w"]).split("_")]:
        a(f"s_mul_i32 s7, s12, {W*21846}\ns_lshr_b32 s7, s7, 16\ns_mul_i32 s7, s7, 73728\ns_add_u32 s5, s4, {b*73728}\ns_add_u32 s{KT[b]}, s7, s5\ns_add_u32 s8, s5, {W*73728}")
        for i in range(b+1,b+W): a(f"s_add_u32 s{KT[i]}, s{KT[i-1]}, 73728\ns_cmp_eq_u32 s{KT[i]}, s8\ns_cselect_b32 s{KT[i]}, s5, s{KT[i]}")
        b+=W
    assert b==16
    NW1=16
    a("v_lshrrev_b32 v24, 4, v2\nv_and_b32 v25, 15, v2\nv_lshlrev_b32 v26, 1, v24\nv_xor_b32 v25, v25, v26\nv_mul_u32_u24 v24, 9216, v24\nv_lshl_add_u32 v24, v25, 4, v24")
    a(f"s_mul_i32 s7, s3, {16*9216}\ns_lshl_b32 s8, s{N1}, 8\ns_add_u32 s7, s7, s8\nv_add_u32 v{VW1}, s7, v24\nv_add_u32 v{VW1+1}, {36864-1024}, v{VW1}")
    a(f"v_xor_b32 v24, 128, v{VW1}\nv_add_u32 v{VW1+2}, {2*(36864-1024)}, v24\nv_add_u32 v{VW1+3}, {36864-1024}, v{VW1+2}")
    def w1dma(q,slot):
        L=[f"s_add_u32 m0, s{LW}, {slot*SLOT}\ns_lshl_b32 s14, s{KT[q]}, 3"]
        return L+[f"buffer_load_dwordx4 v{VW1+r}, {RW1}, s14 offen offset:{1024*r} lds ; @w1_{q}" for r in range(4)]
    def w1reads(q,slot):
        L=[]
        for ks in range(2):
            for ft in range(2):
                for hf in range(2):
                    r0=16*(q&15)+8*ks+4*ft+2*hf
                    L.append(f"ds_read_b64_tr_b16 a[{r0}:{r0+1}], v{RW1B+2*(slot>>2)+ft} offset:{(slot&3)*SLOT+ks*8192+hf*1024} ; @r1_{q}")
        return L
    rb=["v_bfe_u32 v140, v2, 2, 2","v_lshrrev_b32 v141, 4, v2","v_lshl_add_u32 v142, v141, 3, v140","v_lshlrev_b32 v142, 8, v142","v_and_b32 v143, 3, v2","v_lshl_add_u32 v142, v143, 3, v142",
        "v_and_b32 v141, 1, v141","v_lshl_add_u32 v140, v141, 2, v140","s_lshl_b32 s7, s3, 1","v_xor_b32 v140, s7, v140",f"v_lshl_add_u32 v{RW1B}, v140, 5, v142",f"v_xor_b32 v{RW1B+1}, 32, v{RW1B}",
        f"v_add_u32 v{RW1B+2}, 0x10000, v{RW1B}",f"v_add_u32 v{RW1B+3}, 0x10000, v{RW1B+1}"]
    a.extend(rb)
    UA=240; BU=128; ACCF=192; XA=246; RH2=250
    NH=OPT['nh']; NWB=(163840-NH*HS)//SLOT; HB=NWB*SLOT
    a(f"v_and_b32 v24, 15, v2\nv_lshrrev_b32 v25, 4, v2\nv_mul_u32_u24 v26, {U2_PL}, v25\nv_lshl_add_u32 v26, v24, 4, v26")
    a(f"v_mul_u32_u24 v25, 1536, v25\nv_lshl_add_u32 v25, v24, 4, v25\nv_add_u32 v{RH}, {HB}, v25\nv_add_u32 v{RH2}, {3*HS}, v{RH}")
    a(f"s_mul_i32 s7, s3, 18432\ns_xor_b32 s8, s{M1}, 1\ns_mul_i32 s8, s8, 1536\ns_add_u32 s7, s7, s8\nv_lshlrev_b32 v{XA}, 4, v2\nv_add_u32 v{VH}, s7, v{XA}")
    a(f"v_lshrrev_b32 v25, 5, v2\nv_mul_u32_u24 v25, {9216-1536}, v25\nv_add_u32 v{VH+1}, v{VH}, v25\nv_add_u32 v{VH+2}, {9216-1536}, v{VH}\ns_mul_i32 s{LH}, s3, 3072\ns_add_u32 s{LH}, s{LH}, {HB}")
    uset=[f"s_mul_i32 s7, s{M1}, 6\ns_add_u32 s7, s7, {dt}\ns_mul_i32 s8, s7, 7282\ns_lshr_b32 s8, s8, 16\ns_mul_i32 s5, s8, 9\ns_sub_u32 s7, s7, s5\ns_lshl_b32 s7, s7, 2\n"
          f"s_mov_b32 s4, 0xeca86420\ns_mov_b32 s5, 3\ns_lshr_b64 s[4:5], s[4:5], s7\ns_and_b32 s4, s4, 15\ns_lshl4_add_u32 s4, s8, s4\nv_lshl_add_u32 v{UA+dt}, s4, 8, v{UA+5}" for dt in range(6)]
    a(f"v_mov_b32 v{UA+5}, v26")
    first=[]
    slot={q:s_ for q,s_ in enumerate(list(range(NWB,7))+list(range(NWB)))}
    for q in range(7):
        d=w1dma(q,slot[q]); first+=[d[0]+"\n"+d[1]]+d[2:]
    nln,nkv,npost=OPT["nln"],OPT["nkv"],OPT["npost"]
    phaseA(a,"G",first[:nln],first[nln:nln+nkv],first[nln+nkv:nln+nkv+npost]+(warm("G") if OPT["wg"]==0 else [])+(warm("D") if OPT["wd"]==1 else []))
    if OPT["iw"]==2: a("s_branch L_org\n.p2align 12\nL_org:")
    a("L_segG:")
    n0=OPT["n0"]
    a.extend(first[nln+nkv+npost:4*n0 if n0 else 28]); assert not n0 or nln+nkv+npost<=4*n0
    if OPT["wg"]==1: a.extend(warm("G"))
    if OPT["wd"]==2: a.extend(warm("D"))
    srd(a,56,S_B1,4608*2); srd(a,60,S_B2,4096)
    p1=poll_addr(f"s_and_b32 s4, s{M1}, 1\ns_lshl1_add_u32 s4, s3, s4\ns_lshl_b32 s4, s4, 5",32,FLAG1)
    if atom("p1"):
        assert OPT["hf"]; R1=OPT["rep1"]
        p1=[f"s_and_b32 s4, s{M1}, 1\ns_lshl1_add_u32 s4, s3, s4\ns_lshl_b32 s4, s4, 7\ns_bfe_u32 s5, s2, 0x10003\ns_lshl1_add_u32 s5, s{KQ}, s5\ns_lshr_b32 s5, s5, {3-(R1.bit_length()-1)}"]
        p1+=[f"s_lshl_b32 s5, s5, 10\ns_add_u32 s4, s4, s5\ns_add_u32 s4, s4, {FLAG1}", f"v_lshl_add_u32 v{PV}, v2, 2, s4", "v_cmp_gt_u32 vcc, 32, v2", f"v_mov_b32 v12, {OOB}", f"v_cndmask_b32 v{PV}, v12, v{PV}, vcc", f"v_mov_b32 v12, s{NONCE}\nv_cndmask_b32 v12, 0, v12, vcc"]
    setup=p1+[f"v_lshrrev_b32 v24, 4, v2\nv_lshlrev_b32 v25, 3, v24\ns_lshl_b32 s7, s{N1}, 8\ns_lshl_b32 s8, s3, 6\ns_add_u32 s7, s7, s8\n"
           f"buffer_load_dwordx2 {P(BIAS)}, v25, {RA}, s7 offen ; @bias\nbuffer_load_dwordx2 {P(BIAS+2)}, v25, {RA}, s7 offen offset:32 ; @bias"]+eprep()+w2setup()
    moved=[]
    if OPT["smove"]: moved=setup[8:]; setup=setup[:8]
    nA=OPT["nA"]; nd=max(2,nA-NWB+1)
    per=max(7,(len(setup)+nd-2)//(nd-1))
    assert nd-OPT["lead1"]>=1 and per*(nd-OPT["lead1"])>=7
    nq=7; freeq=[]
    if n0:
        nA,nd=7,OPT["nd0"]; a.extend(setup)
        if OPT["pp"]==0: a(poll_issue("p1G"))
        a("@W w1_1\ns_barrier"); a.extend(w1reads(0,slot[0])+w1reads(1,slot[1]))
        if OPT["pp"]==1: a(poll_issue("p1G"))
        for d in range(2,nd): a(f"@W w1_{d}\ns_barrier"); a.extend(w1reads(d,slot[d])); freeq.append((slot[d],-1))
        if OPT["pp"]==2: a(poll_issue("p1G"))
        a("@W - 0\ns_barrier"); assert nd<=n0
    for d in range(0 if not n0 else nd,nd):
        if d%2==0: stamp(a,1+d//2,"A")
        if d==nd-OPT["lead1"]: a(poll_issue("p1G"))
        a(f"@W w1_{d} 0\ns_barrier")
        dm=[]
        if freeq and nq<nA: slot[nq]=freeq.pop(0)[0]; dm=w1dma(nq,slot[nq]); nq+=1
        a.extend(interleave(w1reads(d,slot[d]),dm)); a.extend(setup[d*per:(d+1)*per])
        if slot[d]<NWB: freeq.append((slot[d],-1))
    assert n0 or (nq==nA and nd>7-NWB)
    if OPT["lead1"]==0 and not n0: a(poll_issue("p1G"))
    stamp(a,5)
    a(poll_check("p1G"))
    stamp(a,6); stamp(a,1,"B")
    R=W2R()
    issued_at={q:-9 for q in range(nA)}
    nxt_issue,nxt_drain,acc=nA,nd,OPT.get("acc0",50)
    ep_dma={};ep_rd={};ep_wait={};ep_h={}
    bl=[[int(y) for y in x.split(".")] for x in str(OPT["bursts"]).split("_") if "." in x]
    bursts={x[0]:x[1] for x in bl}; bnn={x[0]:(x[2] if len(x)>2 else OPT["bn"]) for x in bl}
    quiet=-1; qfrom=-1; nh=OPT['h0']; lim=NW1+OPT['maxb']
    def issue(e):
        nonlocal nxt_issue
        s=freeq.pop(0)[0]; t=nxt_issue; slot[t]=s; issued_at[t]=e; nxt_issue+=1
        ep_dma.setdefault(e,[]).extend(w1dma(t,s) if t<NW1 else w2dma(t-NW1,s))
    for e in range(0,31):
        t=nxt_drain
        if t in issued_at and issued_at[t]+OPT["lat"]+(OPT["quiet"] if (t in bursts or t-1 in bursts) else 0)<=e and (t<NW1 or t<e):
            ep_rd[e]=w1reads(t,slot[t]) if t<NW1 else R.reads(t-NW1,slot[t])
            ep_wait[e]=f"w1_{t}" if t<NW1 else f"w2_{t-NW1}"
            assert t>=NW1 or e<=t-2, (t,e)
            freeq.append((slot[t],e+2)); nxt_drain+=1
        if qfrom<e<=quiet: continue
        k=max(0,min(2,min(e+NH,31)+1-nh))
        ep_h[e]=list(range(nh,nh+k)); nh+=k
        assert not k or ep_h[e][0]>=e+3, (e,ep_h[e])
        if k==2 or e<=quiet: continue
        ok=len([1 for s_,f in freeq if f<=e])
        if nxt_issue in bursts:
            if e>=bursts[nxt_issue] and ok>=bnn[nxt_issue] and nxt_issue<lim:
                for _ in range(bnn[nxt_issue]): issue(e)
                quiet=e+OPT["quiet"]+OPT.get("qlag",0); qfrom=e+OPT.get("qlag",0); acc=100
            continue
        acc+=OPT["rate"] if nxt_issue<NW1 else OPT["rate2"]
        if acc>=100 and ok and nxt_issue<lim and not (OPT["q0"]<=e<OPT["q1"]):
            issue(e); acc-=100
        acc=min(acc,150)
    assert nh==32
    assert nxt_drain>=NW1
    print(f"; B schedule: issue epochs {[issued_at[t] for t in range(nA,nxt_issue)]}; w2 issued {nxt_issue-NW1}, drained {nxt_drain-NW1}; h {''.join(str(len(ep_h.get(e,[]))) for e in range(31))}", file=sys.stderr)
    def hdma(p):
        L=[f"s_add_u32 m0, s{LH}, {(p%NH)*HS}"]
        if p==16: L=[f"s_and_b32 s13, s{M1}, 1\ns_mul_i32 s13, s13, 3072", "s_sub_u32 s13, s13, 1536"]+[f"v_add_u32 v{VH+r}, s13, v{VH+r}" for r in range(3)]+L
        return L+[f"buffer_load_dwordx4 v{VH+r}, {WS}, s{KT[p&15]} offen offset:{1024*r} sc1 lds ; @h{p}" for r in range(3)]
    def hreads(j):
        p,ks=divmod(j,2)
        pos=[(3*ks+(i>>1),i&1) for i in range(6)]
        return [f"ds_read_b128 {Q(HF+24*(j&1)+4*i)}, v{RH if p%NH<3 else RH2} offset:{(p%NH%3 if p%NH<6 else p%NH-3)*HS+k*6144+dt*256} ; @H{j}" for i,(dt,k) in enumerate(pos)]
    S=dict(R=R, slot={t-NW1:slot[t] for t in range(nxt_drain,nxt_issue)}, free=list(range(NWB,10))+[s for s,_ in freeq], issue=nxt_issue-NW1, drain=nxt_drain-NW1)
    RS0=10-OPT["nsl"]
    def tile(ring):
        fr=[s for s in ((8,9,7,6,5) if ring else range(RS0)) if s in S["free"] and (s>=RS0)==ring]
        if not fr or S["issue"]>=OPT["nC"]: return []
        t=S["issue"]; S["issue"]+=1; S["free"].remove(fr[0]); S["slot"][t]=fr[0]; return w2dma(t,fr[0])
    hq=[hdma(p) for p in range(OPT['h0'])]; wq=[first[4*q:4*q+4] for q in range(n0,7)] if n0 else []
    for c in str(OPT["ord"]):
        q_=hq if c=="h" else wq
        if q_: a.extend(q_.pop(0))
    a.extend(flat(hq)+flat(wq))
    a("@W h0 0\ns_barrier")
    a.extend(hreads(0))
    xs=[f"s_xor_b32 s7, s{TID}, 1\ns_lshl2_add_u32 s7, s7, s3", f"s_mul_i32 s9, s7, 6144\ns_add_u32 s9, s9, {WS_XB}", f"s_lshl_b32 s7, s7, 7\ns_add_u32 s6, s7, {WS_F4}",
        f"s_lshl2_add_u32 s7, s{TID}, s3\ns_mul_i32 s10, s7, 6144", f"s_add_u32 s10, s10, {WS_XB}\ns_lshl_b32 s7, s7, 7", f"s_add_u32 s7, s7, {WS_F4}\nv_mov_b32 v{PV}, s7",
        f"v_add_u32 v{XA+1}, 3072, v{XA}", "v_cmp_eq_u32 vcc, 0, v2", f"v_mov_b32 v{XA+2}, {OOB}", f"v_cndmask_b32 v{XA+2}, v{XA+2}, 0, vcc", f"v_mov_b32 v{XA+3}, s{NONCE}"]
    if atom("p5"): xs+=[f"v_add_u32 v{PV}, v{PV}, v{XA+2}", f"v_cndmask_b32 v12, 0, v{XA+3}, vcc"]
    snd=[[f"v_cvt_pk_bf16_f32 v{ACCF+8*dt+k}, v{ACCF+8*dt+2*k}, v{ACCF+8*dt+2*k+1}" for k in range(4)]+[f"buffer_store_dwordx4 {Q(ACCF+8*dt)}, v{XA+dt//3}, {WS}, s9 offen offset:{1024*(dt%3)} sc1 ; @bs"] for dt in range(6)]
    RV=160
    rcv=[poll_check("p5")]+[f"buffer_load_dwordx4 {Q(RV+4*dt)}, v{XA+dt//3}, {WS}, s10 offen offset:{1024*(dt%3)} sc1 ; @bl" for dt in range(6)]
    EX={}
    early=lines(uset)+xs+["@W bias"]+flat([unpack(BU+2*q,BIAS+q) for q in range(4)])
    if OPT["smove"]: early=lines(moved)+(k2table() if OPT["smove"]>=2 else [])+early
    early+=lines((flag2_prep(17) if OPT["rep"] else flag_prep(TID,FLAG2,17))+poll2_addr(15)+dsetA()+dsetE()+(dsetB() if OPT["hoist"] else []))
    e0,ne=OPT["je0"],OPT["jen"]; CL={}
    nc=len(early)*OPT["cfrac"]//100; restl=early[nc:]; early=early[:nc]; nr_=29-e0-ne
    for k in range(nr_): EX[e0+ne+k]=restl[k*len(restl)//nr_:(k+1)*len(restl)//nr_]
    print("; early instrs",nc,len(restl),file=sys.stderr)
    wts=[1+OPT["ramp"]*(ne-1-k)/max(1,ne-1)/10 for k in range(ne)]; cs=[int(round(len(early)*sum(wts[:k])/sum(wts))) for k in range(ne+1)]
    for k in range(ne): (CL if OPT["clump"] else EX)[e0+k]=early[cs[k]:cs[k+1]]
    g2=OPT["g2b"]
    for dt,j in enumerate(str(OPT["bsj"]).split("_")): assert int(j)>=31+dt//3; EX[int(j)]=EX.get(int(j),[])+snd[dt]
    EX[OPT["jbf"]]=[f"@W bs\nbuffer_store_dword v{XA+3}, v{XA+2}, {WS}, s6 offen sc1 ; @bf"]
    EX[OPT["jbp"]]=poll_issue("p5").split("\n")
    EX[OPT["jbl"]]=(split_check(rcv[0]) if g2 else rcv[:1])+rcv[1:4]; EX[OPT["jbl"]+1]=rcv[4:]
    ju=OPT["jbu"]; assert ju==57
    EX[ju]=["@W bl"]; BC=[]
    for j in range(64):
        p,ks=divmod(j,2); e=(j-1)//2; half=(j-1)%2
        mf=[]
        for d in range(3):
            dt=3*ks+d
            for f in range(2):
                ft=f^(dt&1); acc_=Q((ACCF if j<32 else ACC1)+8*dt+4*ft)
                for n_,k in enumerate((1,0) if f else (0,1)):
                    mf.append(f"v_mfma_f32_16x16x32_bf16 {acc_}, {Q(16*(p&15)+8*k+4*ft,'a')}, {Q(HF+24*(j&1)+8*d+4*k)}, "+(acc_ if (n_ or p%16) else "0" if p==0 else Q(BU+4*ft)))
        g=(Gaps2 if g2 else Gaps)(mf)
        if j%8==0: stamp(a,2+j//8,"B")
        if j%4==0 and j<48: stamp(a,1+j//4,"B1")
        if j%4==0 and j>=16: stamp(a,1+(j-16)//4,"B2")
        g.before(0,f"@W - H{j}")
        if ks==1:
            tg=([f"h{p+1}"] if p<31 else [])+([ep_wait[e]] if e in ep_wait else [])
            g.put([(f"@W {','.join(tg)}\n" if tg else "")+"s_barrier"],0,1)
        hh=ep_h.get(e,[])
        dm=(hdma(hh[0]) if hh else []) if ks==1 else (hdma(hh[1]) if len(hh)>1 else ep_dma.get(e,[]))
        if len(hh)>1 and e in ep_dma:
            allv=hdma(hh[0])+hdma(hh[1])+ep_dma[e]; dm=allv[:len(allv)//2] if ks==1 else allv[len(allv)//2:]
        if j==63:
            dm=flat([tile(True) for _ in range(OPT['n63'])])
        if j<63: g.put(hreads(j+1),1,7)
        if e in ep_rd:
            if g2: g.fit(flat([x.split("\n") for x in ep_rd[e][4*half:4*half+4]]),OPT["rd0"],12)
            else: g.put(ep_rd[e][4*half:4*half+4],7,11)
        if dm:
            if g2>1: g.fit([far(x,1) if (k and "m0," in dm[k-1]) else x for k,x in enumerate(dm)],ks,12,spread=0.3)
            else: g.put(dm,1 if ks==1 else 0,12)
        if j>ju:
            dt=3*(1-ks)+(j-58)//2; L_=[]
            for ft in range(2):
                q=2*dt+ft; A=ACC1+4*q; t=ACCF+4*ft
                L_+=unpack(t,RV+2*q)+unpack(t+2,RV+2*q+1)+[f"v_add_f32 v{A+r}, v{A+r}, v{t+r}" for r in range(4)]
            g.fit(L_,2,11)
        if EX.get(j): g.fit(EX[j],4 if j==31 else 0,12)
        if CL.get(j):
            c_=OPT["clump"]; n_=len(CL[j])
            for i in range(c_): g.g[(2*i+1)*12//(2*c_)]+=CL[j][i*n_//c_:(i+1)*n_//c_]
        if OPT.get("gnop") and OPT.get("gn0",0)<=j<OPT["gnop"]:
            for i in range(0,12,OPT.get("gns",3)): g.g[i].append("s_nop 7")
        if OPT.get("gcut") and j<OPT.get("gcj",64): g.mf=[m if (i%OPT["gcut"]) else "s_nop 0" for i,m in enumerate(g.mf)]
        if g2: BC.append(g.over())
        g.emit(a)
    if g2: print("; B cost/kstep"," ".join(f"{x:.0f}" for x in BC),file=sys.stderr)
    stamp(a,7); stamp(a,10,"B"); stamp(a,13,"B2")
    c=0.7978845608028654*2*1.4426950408889634
    BU=HF
    V=[f"v_mov_b32 v{BU+8}, {f2h(-c)}", f"s_mov_b32 s10, {f2h(-c*0.044715)}", f"s_lshl_b32 s9, s{N1}, 2\ns_add_u32 s9, s9, s3\ns_mul_i32 s9, s9, {U2_KS}\ns_add_u32 s9, s9, {WS_U2}"]
    for g in range(3):
        A=ACC1+16*g; T=GT; O=HF+16+8*g
        V+=[f"v_pk_mul_f32 {P(T+2*j)}, {P(A+2*j)}, {P(A+2*j)}" for j in range(8)]
        V+=[f"v_pk_fma_f32 {P(T+2*j)}, {P(T+2*j)}, s[10:11], {P(BU+8)} op_sel_hi:[1,0,0]" for j in range(8)]
        V+=[f"v_pk_mul_f32 {P(T+2*j)}, {P(T+2*j)}, {P(A+2*j)}" for j in range(8)]
        V+=[f"v_exp_f32 v{T+j}, v{T+j}" for j in range(16)]
        V+=[f"v_pk_add_f32 {P(T+2*j)}, {P(T+2*j)}, 1.0 op_sel_hi:[1,0]" for j in range(8)]
        V+=[f"v_rcp_f32 v{T+j}, v{T+j}" for j in range(16)]
        V+=[f"v_pk_mul_f32 {P(A+2*j)}, {P(A+2*j)}, {P(T+2*j)}" for j in range(8)]
        V+=[f"v_cvt_pk_bf16_f32 v{O+j}, v{A+2*j}, v{A+2*j+1}" for j in range(8)]
        V+=[f"buffer_store_dwordx4 {Q(O+4*h)}, v{UA+2*g+h}, {WS}, s9 offen sc1 ; @ust" for h in range(2)]
    a("@W - 0")
    fill=flat([tile(True) for _ in range(OPT["nin"])])
    a.extend(interleave(V,fill,0,len(V)-40) if fill else V)
    stamp(a,8)
    if OPT["wd"]==0: a.extend(warm("D"))
    a(f"@W ust\ns_barrier\nbuffer_store_dword v{XA+3}, v17, {WS}, 0 offen sc1 ; @fl")
    stamp(a,9); stamp(a,1,"C")
    old=sorted(S["slot"]); pe=OPT["pe"]
    if pe==0: a(poll_issue("p2G"))
    new=flat([tile(False) for _ in range(OPT["nc1"])])
    rd=flat([R.reads(t,S["slot"][t]) for t in old])
    a.extend(interleave(rd,new,0,len(rd)*OPT["c1e"]//100) if new else rd); stamp(a,2,"C")
    a.extend(kutable())
    a(f"@W - r2_{old[-1]}\ns_barrier"); stamp(a,3,"C")
    for t in old: S["free"].append(S["slot"].pop(t))
    S["drain"]=old[-1]+1
    k=0
    while True:
        if pe==k+1: a(poll_issue("p2G"))
        d=tile(False)
        if not d: break
        a.extend(d); k+=1; stamp(a,3+k,"C")
    if pe>k+1: a(poll_issue("p2G"))
    assert S["issue"]==OPT["nC"]
    print("; C: drained",old,"resident",S["slot"], file=sys.stderr)
    stamp(a,13,"C")
    return S

CV_IMG=36864; CV_H0=2*CV_IMG; CV_COPY=4160; CV_BUF=2*CV_COPY
def roleX_A(a):
    if OPT["iw"]==1: a(".p2align 12")
    a("L_aux:")
    if OPT["smove"]>=2: a.extend(k2table())
    a(f"s_lshl2_add_u32 s7, s5, s6\ns_add_u32 s7, s7, 188\ns_add_u32 s8, s5, 248\ns_cmp_eq_u32 s6, 27\ns_cselect_b32 s{TID}, s8, s7")
    srd(a,48,S_SSM,576*4096)
    a(f"v_lshlrev_b32 v240, 4, v2\ns_mul_i32 s{LH}, s3, {2*CV_BUF}\ns_add_u32 s{LH}, s{LH}, {CV_H0}\ns_sub_u32 s{N1}, s{TID}, 216")
    a(f"s_lshl_b32 s{M1}, s{N1}, 4\ns_add_u32 s{M1}, s{M1}, s3\ns_lshl_b32 s12, s{M1}, 12\ns_lshl_b32 s{M1}, s{M1}, 1")
    a("v_lshrrev_b32 v242, 5, v2\nv_and_b32 v243, 31, v2\nv_lshlrev_b32 v242, 14, v242\nv_lshl_add_u32 v242, v243, 7, v242\ns_add_u32 s13, s12, 32768")
    st=[f"buffer_load_dword v255, v242, {RW1}, s12 offen ; @ts", f"buffer_load_dword v255, v242, {RW1}, s13 offen ; @ts"]
    k=OPT["cvs"]
    phaseA(a,"X",st[:1] if k>=2 else [],[],(st[1:] if k>=2 else [])+warm("X"))
    a.extend(warm("D"))
    a("L_segX:")
    if k==1: a.extend(st)
    a.extend(cv_hdma(0))
    if OPT["pfw"]:
        n=OPT["pfw"]; st=2 if n<=3 else 1; k=-(-n*64*18//(20*64)); srd(a,64,S_W1,2048*4608*2)
        a(f"s_lshr_b32 s4, s2, 3\ns_sub_u32 s4, s4, 27\ns_lshl2_add_u32 s4, s4, s3\ns_mul_i32 s4, s4, {64*k}\ns_and_b32 s7, s2, 1\ns_lshl_b32 s7, s7, 10\ns_add_u32 s7, s7, {64*OPT['pf0']}\ns_mul_i32 s7, s7, 9216\ns_mul_i32 s8, s{KQ}, 2304\ns_add_u32 s7, s7, s8")
        for i in range(k):
            a(f"v_add_u32 v24, s4, v2\nv_min_u32 v24, {n*64*18-1}, v24\nv_mul_u32_u24 v25, 3641, v24\nv_lshrrev_b32 v25, 16, v25\nv_mul_u32_u24 v31, 18, v25\nv_sub_u32 v24, v24, v31\ns_add_u32 s4, s4, 64")
            if st==2: a("v_and_b32 v31, 0xffc0, v25\nv_add_u32 v25, v25, v31")
            a(f"v_mul_u32_u24 v25, 9216, v25\nv_lshl_add_u32 v24, v24, 7, v25\nbuffer_load_dword v255, v24, {RC}, s7 offen ; @pf")
    srd(a,60,S_B2,4096)
    a.extend(eprep()); a.extend(w2setup()); a.extend(dsetA())
    a(f"s_cmp_lt_u32 s{TID}, 252\ns_cbranch_scc0 L_idle")
def nX(): return OPT["nX"]
XS={}
def cv_hdma(c):
    L=[f"s_add_u32 m0, s{LH}, {(c&1)*CV_BUF+32}\ns_add_u32 s13, s12, {16384*c}"]
    return L+[f"buffer_load_dwordx4 v240, {RW1}, s13 offen offset:{1024*i} lds ; @hc{c}" for i in range(4)]
def conv(a):
    ACC=32; S0=64; T=192; U=208; BT=212
    VHD,BA,FX,EB,YO,DR,AB,BB,DV,VK=240,241,242,243,8,9,236,244,248,24
    R=W2R()
    srd(a,56,S_D,576*2)
    a.extend(kutable())
    def dload(c): return f"v_mov_b32 v{DR}, {8*c}\nbuffer_load_ushort v{DR}, v{DR}, {RA}, s{M1} offen ; @hd{c}"
    a(dload(0))
    fold=OPT["fold"]
    def dbuild(): return [] if fold else [f"v_lshl_or_b32 v{DR}, v{DR}, 16, v{DR}"]+[f"v_and_b32 v{DV+k}, v{DR}, v{U+k}" for k in range(4)]
    if not fold:
        a(f"v_and_b32 v196, 15, v2\nv_lshrrev_b32 v197, 4, v2\nv_lshlrev_b32 v197, 3, v197\nv_add_u32 v196, v196, v197\nv_sub_u32 v196, 15, v196")
        a("v_and_b32 v197, 1, v196\nv_lshlrev_b32 v197, 4, v197\nv_mov_b32 v198, 0xffff\nv_lshlrev_b32 v197, v197, v198\nv_ashrrev_i32 v196, 1, v196")
        for k in range(4): a(f"v_cmp_eq_u32 vcc, {k}, v196\nv_cndmask_b32 v{U+k}, 0, v197, vcc")
    a.extend(poll1_addr())
    a(f"v_add_u32 v{BA}, s{LH}, v{VHD}\nv_cmp_eq_u32 vcc, 0, v2\nv_mov_b32 v196, 4136\nv_cndmask_b32 v196, v196, 30, vcc\nv_add_u32 v{FX}, s{LH}, v196")
    a(f"v_bfe_u32 v196, v2, 3, 2\nv_mul_u32_u24 v196, {CV_COPY}, v196\nv_and_b32 v197, 7, v2\nv_lshl_add_u32 v196, v197, 2, v196\nv_add_u32 v200, s{LH}, v196")
    a("v_mov_b32 v196, 0\nv_mov_b32 v197, 0\nv_mov_b32 v198, 0\nv_mov_b32 v199, 0\nds_write_b32 v200, v196\nv_lshlrev_b32 v201, 4, v0")
    a(f"ds_write_b128 v201, v[196:199]\nds_write_b128 v201, v[196:199] offset:{CV_IMG}")
    def brd(c):
        o=(c&1)*CV_BUF+32
        return flat([[f"ds_read_b128 {Q(BT+6*i)}, v{BA} offset:{o+1024*i} ; @b{c}", f"ds_read_b32 v{BT+6*i+4}, v{BA} offset:{o+1024*i+16} ; @b{c}"] for i in range(4)])
    def bwr(c):
        o=(c&1)*CV_BUF+CV_COPY; L=[f"ds_write_b16 v{FX}, v{BT} offset:{o}"]
        if fold: L=[f"@W hd{c}", f"v_lshlrev_b32 v{DR}, 16, v{DR}", f"v_lshlrev_b32 v{U}, 16, v{BT}", f"v_add_f32 v{DR}, v{DR}, v{U}", f"v_cvt_pk_bf16_f32 v{DR}, v{DR}, v{DR}",
                    f"ds_write_b16 v{FX}, v{DR} offset:{o}", f"ds_write_b16 v{FX}, v{DR} offset:{o-CV_COPY+2}"]
        for i in range(4):
            t=BT+6*i
            L+=[f"v_alignbit_b32 v{t+k}, v{t+k+1}, v{t+k}, 16" for k in range(4)]+[f"ds_write_b128 v{BA}, {Q(t)} offset:{o+32+1024*i} ; @bw"]
        return L
    a("@W hc0"); a.extend(brd(0))
    a(f"v_lshrrev_b32 v202, 3, v2\nv_and_b32 v203, 7, v2\nv_lshrrev_b32 v204, 1, v202\nv_xor_b32 v203, v203, v204\nv_mul_u32_u24 v202, 9216, v202")
    a(f"v_lshl_add_u32 v{VK}, v203, 4, v202\nv_xor_b32 v{VK+1}, 64, v{VK}")
    a(f"v_and_b32 v202, 15, v2\nv_add_u32 v202, 1, v202\nv_and_b32 v203, 1, v202\nv_mul_u32_u24 v203, {CV_COPY}, v203\nv_lshrrev_b32 v202, 1, v202\nv_lshl_add_u32 v203, v202, 2, v203")
    a(f"v_lshrrev_b32 v204, 4, v2\nv_lshl_add_u32 v203, v204, 4, v203\nv_add_u32 v{AB}, s{LH}, v203")
    for p in range(1,4): a(f"v_add_u32 v{AB+p}, 1024, v{AB+p-1}")
    a("@W - b0"); a.extend(bwr(0))
    for v in range(4):
        a(f"v_and_b32 v202, 15, v2\nv_lshlrev_b32 v202, 1, v202\nv_sub_u32 v202, v202, v204\nv_add_u32 v202, {17-4*v}, v202")
        a(f"v_bfe_u32 v203, v202, 1, 3\nv_xor_b32 v203, s3, v203\nv_lshlrev_b32 v203, 4, v203\nv_lshl_add_u32 v{BB+v}, v202, 7, v203")
    a(f"v_and_b32 v202, 15, v2\nv_lshlrev_b32 v202, 5, v202\nv_lshl_add_u32 v{YO}, v204, 3, v202")
    a(f"s_mul_i32 s7, s3, {64*9216}\ns_lshl_b32 s8, s{N1}, 8\ns_add_u32 s7, s7, s8\ns_add_u32 s7, s7, {WS_KVT}\ns_lshl_b32 s9, s3, 13\ns_add_u32 s9, s9, 4096")
    def rdA(G,c):
        g0=G&7; r=S0+64*(G&1)+4*c; o=(64*g0+512*(c&1))//4; tg=f"f{G}" if c==0 else f"g{G}"
        return [f"ds_read2_b32 {P(r)}, v{AB+(c>>1)} offset0:{o} offset1:{o+1} ; @{tg}", f"ds_read2_b32 {P(r+2)}, v{AB+(c>>1)} offset0:{o+2} offset1:{o+3} ; @{tg}"]
    def rdB(G):
        g0=G&7
        return [f"ds_read_b128 {Q(S0+64*(G&1)+32+4*c)}, v{BB+(g0&3)} offset:{4096*c+(0 if g0>>2 else 2048)} ; @f{G}" for c in range(8)]
    def reads(G):
        if OPT["cch"]:
            L=flat([[rdB(G)[c]]+rdA(G,c) for c in range(8)])
            return [re.sub(r"@[fg]","@f" if i<12 else "@g",x) for i,x in enumerate(L)]
        return rdA(G,0)+rdB(G)+flat([rdA(G,c) for c in range(1,8)])
    a.extend(flat([rdA(0,c) for c in range(8)]))
    a(poll_issue("p1X"))
    if not fold: a("@W hd0"); a.extend(dbuild())
    a.extend(R.goto(2))
    stamp(a,5)
    a(poll_check("p1X"))
    a("s_barrier")
    stamp(a,6); stamp(a,1,"B")
    def kvdma(img):
        return [f"s_add_u32 m0, s9, {img*CV_IMG+i*1024}\ns_add_u32 s13, s7, {i*8*9216+img*128}\nbuffer_load_dwordx4 v{VK+(i&1)}, {WS}, s13 offen sc1 lds ; @kvi{img}" for i in range(8)]
    a.extend(kvdma(0))
    a("@W kvi0 0\ns_barrier")
    a.extend(rdB(0))
    def epi(ch,q):
        A=ACC+4*q; k=T+2*q
        return [f"v_cvt_pk_bf16_f32 v{k}, v{A}, v{A+1}", f"v_cvt_pk_bf16_f32 v{k+1}, v{A+2}, v{A+3}",
                f"buffer_store_dwordx2 {P(k)}, v{YO}, {WS}, s6 offen offset:{512*q} sc1 ; @yst"]
    GS=[]
    for G in range(32):
        ch,rho=divmod(G,8); s=S0+64*(G&1)
        def M(c,q):
            if c<0: return f"v_mfma_f32_16x16x32_bf16 {Q(ACC+4*q)}, {Q(DV)}, {Q(s+32+4*q)}, 0"
            z=fold and rho==0 and q not in seen; seen.add(q)
            return f"v_mfma_f32_16x16x32_bf16 {Q(ACC+4*q)}, {Q(s+4*c)}, {Q(s+32+4*(q-c))}, "+("0" if z else Q(ACC+4*q))
        qmaj = rho==7 or (rho==0 and ch>0); c0=-1 if (rho==0 and not fold) else 0; seen=set(); GP=Gaps2 if OPT["g2c"] else Gaps
        g=GP([M(c,q) for q in range(7,-1,-1) for c in range(c0,q+1)] if qmaj else [M(c,q) for c in range(c0,8) for q in range(max(c,0),8)])
        if OPT["cch"] and not qmaj: seen=set(); g=GP([M(c,q) for q in range(8) for c in ([-1] if c0 else [])+(list(range(q+1)) if q&1==0 else list(range(q,-1,-1)))])
        n=len(g.mf); GS.append(g)
        if qmaj: g.before(0,f"@W - g{G}")
        elif OPT["cch"]: g.before(0,f"@W - f{G}"); g.before(10-4*c0,f"@W - g{G}")
        else: g.before(0,f"@W - f{G}"); g.before(n-28,f"@W - g{G}")
    def late():
      for G,g in enumerate(GS):
        ch,rho=divmod(G,8); n=len(g.mf)
        if ch<3:
            r=[f"@W - b{ch+1}"]+bwr(ch+1)
            if rho==3: g.fit([f"@W hc{ch+1}"]+brd(ch+1),16,36)
            k=len(r)-10
            if rho==4: g.fit(r[:k],4,36)
            if rho==5: g.fit(r[k:]+([] if fold else [f"@W hd{ch+1}"])+dbuild(),0,36)
            if rho==6:
                g.fit([f"v_xor_b32 v{BB+v}, 64, v{BB+v}" for v in range(4)]+([f"v_add_u32 v{BB+v}, {CV_IMG}, v{BB+v}" for v in range(4)] if ch==1 else []),18,36)
                g.fit([f"v_add_u32 v{AB+p}, {CV_BUF if ch%2==0 else -CV_BUF}, v{AB+p}" for p in range(4)],29,36)
        if rho==6: g.fit([f"s_add_u32 s6, s12, {WS_YC+16384*ch}"],0,36)
        if rho==7: g.fit(epi(ch,7),12,20); g.fit(epi(ch,6),20,28); g.fit(epi(ch,5),28,36)
        if rho==0 and ch>0:
            e1,e2=(20,32) if fold else (23,38)
            g.fit(epi(ch-1,4)+epi(ch-1,3)+epi(ch-1,2),0,e1); g.fit(epi(ch-1,1)+epi(ch-1,0),e1,e2)
        if G<31:
            rr=reads(G+1)
            if rho==6:
                if OPT["cch"]:
                    rr=[x for x in rr if "b128" in x]+[x for x in rr if "b128" not in x]; rr=[re.sub(r"@f","@g",x) for x in rr]
                g.fit(rr[:10],0,14); g.fit(rr[10:],14,29)
            else: g.fit(rr,0,n-7 if rho==7 else n-1)
    def place(items, start, length):
        for k,it in enumerate(items):
            x=start+length*k/len(items); G=int(x); g=GS[G]; g.g[int((x-G)*len(g.mf))].append(it)
    flatg=[(G,i) for G,g in enumerate(GS) for i in range(len(g.mf))]; used=set()
    def nextgap(pre, item, start):
        G=int(start); p=flatg.index((G,int((start-G)*len(GS[G].mf))))
        while p in used or p+1 in used: p+=1
        used.update((p,p+1))
        GS[flatg[p][0]].g[flatg[p][1]].append(pre); GS[flatg[p+1][0]].g[flatg[p+1][1]].append(item)
    plan=[[int(y) for y in x.split(".")] for x in str(OPT["cvp"]).split("_")]; assert len(plan)==nX()
    B={102:[[],[],[]],149:[["kvi1"],[],[]],171:[[],[],[]]}; last={}
    for t,(sl,st,dr) in enumerate(plan):
        if dr: B.setdefault(dr,[[],[],[]])[0].append(f"w2_{t}")
        else: XS[t]=sl; assert sl<2 and t>=nX()-2
        assert (sl!=3 or dr<=97) and (sl>1 or st>171) and (not dr or t==0 or dr>=plan[t-1][2]+4)
    for t,(sl,st,dr) in enumerate(plan):
        if sl in last:
            d0=plan[last[sl]][2]+4; assert d0<=st-1,(t,sl); c=[b for b in B if d0<=b<=st-1]
            B.setdefault(max(c) if c else st-1,[[],[],[]])[1].append(last[sl])
        last[sl]=t
    if 3 in last: B[102][1].append(last[3])
    for t,(sl,st,dr) in enumerate(plan):
        if dr: B[dr][2]=flat([x.split("\n") for x in R.reads(t,sl)])
    for b,(vt,lt,rd) in sorted(B.items()): place([f"@W {','.join(vt) or '-'} {f'r2_{max(lt)}' if lt else '-'}\ns_barrier"]+rd,b/10,0.36)
    for t,(sl,st,dr) in enumerate(plan):
        d=w2dma(t,sl); m0,so=d[0].split("\n",1); place([so],st/10,1); ln=min(OPT["cvn"],(plan[t+1][1] if t+1<len(plan) else 319)-st)/10
        for r in range(4): nextgap(m0,d[1+r],st/10+0.03+ln*r/4)
    print("; conv barriers",len(B),file=sys.stderr)
    for ch in range(3):
        d=cv_hdma(ch+1); m0,so=d[0].split("\n",1); st=8*ch+1
        place([so],st+0.1,1)
        for r in range(4): nextgap(m0,d[1+r],st+0.15+0.22*r)
        place([dload(ch+1)],st+1.25,1)
    for i,it in enumerate(kvdma(1)):
        pre,ld=it.rsplit("\n",1); nextgap(pre,ld,11.2+0.25*i)
    place(lines(poll2_addr()),30.05,0.9)
    late()
    print("; conv overload", " ".join(f"{g.over():.0f}" for g in GS), file=sys.stderr)
    for G,g in enumerate(GS):
        if G%4==0: stamp(a,2+G//4,"B")
        if 8<=G<=20: stamp(a,G-7,"V")
        if OPT.get("cvcut"): g.mf=[m if (i%OPT["cvcut"]) else "s_nop 0" for i,m in enumerate(g.mf)]
        g.emit(a)
    a(poll_issue("p2X"))
    for q in range(4,-1,-1): a.extend(epi(3,q))
    stamp(a,7); stamp(a,10,"B")
    a.extend(R.goto(0))
    a("@W - 0\ns_barrier")
    stamp(a,9)
def idle(a):
    a("L_idle:")
    a("s_waitcnt vmcnt(0)\ns_barrier")
    R=W2R()
    n=nX(); S=dict(R=R,slot={},free=list(range(10)),issue=0,drain=0)
    a.extend(kutable())
    for s in w2steps(S,n,n-2,lambda t,free: (XS[t] if t>=n-2 else ([s for s in free if s>1] or [None])[0])): a.extend(s)
    a.extend(R.goto(0))
    a.extend(warm("D"))
    a.extend(poll2_addr())
    if OPT["isl"]:
        a(f"s_mov_b32 s5, 0\nL_iw:\ns_sleep {OPT['isl']}\n{poll_op('p2X')}\ns_waitcnt vmcnt(0)\nv_cmp_eq_u32 vcc, 0, v13\ns_mov_b64 s[6:7], vcc\nv_cmp_ne_u32 vcc, v13, v{PV+1}\ns_andn2_b64 s[8:9], exec, vcc\ns_andn2_b64 s[8:9], s[8:9], s[6:7]"
          f"\ns_cbranch_scc1 L_ix\ns_cmp_eq_u64 s[6:7], exec\ns_cbranch_scc1 L_ix\ns_add_u32 s5, s5, 1\ns_cmp_lt_u32 s5, {OPT['spinmax']}\ns_cbranch_scc1 L_iw\nL_ix:")
    a(poll_issue("p2X"))
    a("s_branch L_DX")

def dsetA():
    L=[f"v_and_b32 v24, 15, v2\nv_lshrrev_b32 v25, 4, v2\nv_mul_u32_u24 v25, {U2_PL}, v25\nv_lshl_add_u32 v24, v24, 4, v25",
       f"s_mul_i32 s7, s{KQ}, 36\ns_and_b32 s8, s3, 1\ns_add_u32 s7, s7, s8\ns_mul_i32 s7, s7, {U2_KS}\n"+MP.format(8)+f"\ns_lshl_b32 s8, s8, 12\ns_add_u32 s7, s7, s8\ns_add_u32 s7, s7, {WS_U2}\nv_add_u32 v{VA+4}, s7, v24"]
    L+=[f"s_xor_b32 s7, s{KQ}, {b}\nv_lshl_add_u32 v{VA+b}, s7, 10, v{VA+4}" for b in range(4)]
    L.append(f"v_lshlrev_b32 v{RR}, 4, v2\nv_add_u32 v{RR}, {(10-OPT['nsl'])*SLOT}, v{RR}\nv_add_u32 v1, 0x10000, v{RR}")
    return L
def dsetE():
    t=Asm(); srd(t,56,S_Q,NB_SD)
    return [i.text for i in t.L]+[f"s_mov_b32 s{SC16}, {16*1152}\ns_mov_b32 s{SST}, {WS_STATS}"]
def dsetB():
    t=Asm(); srd(t,64,S_OUT,NB_SD); L=[i.text for i in t.L]
    L+=[f"v_lshlrev_b32 v{L16}, 4, v2", w2base(7)+f"\nv_subrev_u32 v{YP}, s7, v{VW2}\nv_subrev_u32 v{YP+1}, s7, v{VW2+1}"]
    L+=[MP.format(4)+f"\ns_mul_i32 s4, s4, 9\ns_lshl1_add_u32 s7, s{KQ}, s4\ns_and_b32 s8, s3, 1\ns_add_u32 s7, s7, s8\ns_lshl_b32 s{SY0}, s7, 16\ns_add_u32 s{SY0}, s{SY0}, {WS_YC}\ns_add_u32 s4, s4, 8\ns_lshl_b32 s{SY8}, s4, 16\ns_add_u32 s{SY8}, s{SY8}, {WS_YC}",
        f"s_sub_u32 s4, s4, s7\ns_lshl_b32 s4, s4, 7\ns_lshl_b32 s7, s7, 7\ns_add_u32 s7, s7, {FLAGY}\nv_bfe_u32 v24, v2, 2, 1\nv_mul_u32_u24 v24, s4, v24\nv_and_b32 v25, 3, v2\nv_lshl_add_u32 v24, v25, 2, v24\nv_add_u32 v{PY}, s7, v24"]
    XA,XB,XZ,X8=(WS_X4+k*(3<<20) for k in range(4))
    L+=[f"s_lshl2_add_u32 s7, s2, s3\ns_mul_i32 s8, s7, 3072\ns_add_u32 s{SMA}, s8, {XA}\ns_add_u32 s{SMB}, s8, {XB}\ns_add_u32 s{SMZ}, s8, {XZ}\ns_lshl_b32 s{SM8}, s7, 12\ns_add_u32 s{SM8}, s{SM8}, {X8}"]
    L+=[f"s_xor_b32 s8, s7, {8*b}\ns_mul_i32 s8, s8, 3072\ns_add_u32 s{d}, s8, {x}" for b,d,x in ((1,SYA,XA),(2,SYB,XB),(3,SZ,XZ))]
    L+=[f"s_andn2_b32 s7, s7, 24\ns_lshl3_add_u32 s7, s3, s7\ns_lshl2_add_u32 s8, s7, s{KQ}\ns_lshl_b32 s8, s8, 10\ns_add_u32 s{SR0}, s8, {X8}\ns_xor_b32 s8, s8, 4096\ns_add_u32 s{SR1}, s8, {X8}",
        f"s_xor_b32 s8, s3, s{KQ}\ns_cmp_lt_u32 s8, 2\ns_cselect_b32 s{SM8}, s{SM8}, {OOB}\ns_cselect_b32 s{SY8}, s{SY8}, {OOB}\ns_cselect_b32 s{ST8}, s{NONCE}, 0",
        f"s_mov_b32 s38, {f2h(-1.4426950408889634)}"]
    L+=[f"s_and_b32 s8, s8, 1\ns_mul_i32 s41, s8, 96\ns_and_b32 s43, s{LW}, 4096"]
    if len(OPT["np"])<3: L+=[f"v_lshlrev_b32 v24, 10, v2\nv_add_u32 v24, s{SM8}, v24\ns_add_u32 s7, s{SMA}, 2048\nv_mov_b32 v25, s{ST8}\nv_cmp_gt_u32 vcc, 4, v2\nv_cndmask_b32 v{PE1}, 0, v25, vcc\nv_mov_b32 v25, {OOB}\nv_cndmask_b32 v{PA1}, v25, v24, vcc",
        f"v_writelane_b32 v{PA1}, s7, 4\nv_writelane_b32 v{PE1}, s{NONCE}, 4\nv_min_u32 v{PA2}, 1, v2\nv_lshlrev_b32 v{PA2}, 30, v{PA2}\nv_mov_b32 v{PE2}, 0\nv_writelane_b32 v{PE2}, s{NONCE}, 0"]
    return L
FLAGY=FLAG2+16384
A8,AB=32,(88,40,56,72)
XP,STT,B2,X8=88,96,102,142
def eloads():
    L=[f"v_lshrrev_b32 v30, 2, v{SA}", f"v_lshrrev_b32 v31, 2, v{SA8}"]
    L+=[f"buffer_load_dwordx4 {Q(XP+4*j)}, v{XO}, {RA}, {('0',f's{SC16}')[j]} offen ; @ex" for j in range(2)]+[f"buffer_load_dwordx2 {P(X8)}, v{XO+1}, {RA}, 0 offen ; @ex"]
    L+=[f"buffer_load_dwordx2 {P(STT+2*n)}, v{SA if n<2 else SA8}, {WS}, s{SST} offen offset:{128*(n&1)} sc1 ; @ex" for n in range(3)]
    L+=[f"buffer_load_ushort v{B2+n if n<2 else B8}, v{30+(n>>1)}, {RB_}, 0 offen offset:{32*(n&1)} ; @eb" for n in range(3)]
    return L
def phaseD(a, ac, role, S):
    R=S["R"]; NSL=OPT["nsl"]; RS0=10-NSL; YSL=RS0-1; assert YSL>=4 and OPT["fpl"]==2
    a(f"L_D{role}:")
    us=OPT["usk"]; r1=[("R",0),(1,0),(1,1)]; blk=lambda b:[(b,0),(b,1)]
    groups=[(b,r,u) for rows,ur in ((r1+blk(2),range(us)),(r1,range(us,9)),(blk(2),range(us,9)),(blk(3),range(9)),(blk(0),range(9))) for u in ur for b,r in rows]
    need=[min(i for i,x in enumerate(groups) if x[2]==u) for u in range(9)]
    GS=need[8]//4*4; end={b:max(i for i,x in enumerate(groups) if x[0]==b)+1 for b in ("R",0,1,2,3)}; beg={b:min(i for i,x in enumerate(groups) if x[0]==b) for b in (0,3)}
    def acc(b,r): return A8 if b=="R" else AB[b]+8*r
    mf=[]
    for g_,(b,r,u) in enumerate(groups):
        for n_,nt in enumerate((1,0) if g_&1 else (0,1)):
            c=Q(acc(b,r)+4*nt)
            for i,k in enumerate((3,2,1,0) if n_ else (0,1,2,3)):
                kind,r0=w2reg(2*u+(k>>1))
                mf.append(f"v_mfma_f32_16x16x32_bf16 {c}, {Q(AF+16*(g_&1)+4*k)}, {Q(r0+8*(k&1)+4*nt,kind)}, "+("0" if (i==0 and u==0 and b in ("R",1,2)) else c))
    g=Gaps2(mf); fit0=g.fit
    def fit(L,s_,e_): assert not s_<8*GS<e_, ("list crosses the role boundary",L[:2]); fit0(L,s_,e_)
    g.fit=fit
    def G(x): return int(round(8*x))
    def udma(g_):
        b,r,u=groups[g_]; e=g_//4; o=768 if b=="R" else 512*r
        return [f"s_add_u32 m0, s{LW}, {(RS0+e%NSL)*SLOT+1024*(g_%4)-o}", f"buffer_load_dwordx4 v{VA+(4 if b=='R' else b)}, {WS}, s{KU+u} offen offset:{o} sc1 lds ; @u{e}"]
    def urd(g_): return [f"ds_read_b128 {Q(AF+16*(g_&1)+4*k)}, v{RR if g_//4%NSL<4 else 1} offset:{(g_//4%NSL%4)*SLOT+4096*k+1024*(g_%4)} ; @f{g_}{'ab'[k>>1]}" for k in range(4)]
    PD=(0,1,2,4,5,6,8,9)
    def send(b,so):
        L=[]
        for d in range(8):
            L.append(f"v_cvt_pk_bf16_f32 v{SB+PD[d]}, v{AB[b]+2*d}, v{AB[b]+2*d+1}")
            if d in (2,5,7): L.append(far(f"buffer_store_dwordx4 {Q(SB+PD[d]//4*4)}, v{L16}, {WS}, s{so} offen offset:{PD[d]//4*1024} sc1 ; @xs",1))
        return L
    def rld(h,dst,so,n,tg=True): return [far(f"buffer_load_dwordx4 {Q(dst+4*p)}, v{L16}, {WS}, s{so} offen offset:{1024*p} sc1"+(f" ; @r{h}" if tg else ""),1) for p in range(n)]
    def rchk(h,dst,so,n,tag):
        t=[f"v_bitop3_b32 v{dst+3}, v{dst+3}, v{dst+7}, s{tag} bitop3:0x7e"]+[f"v_bitop3_b32 v{dst+3}, v{dst+3}, v{dst+4*p+3}, s{tag} bitop3:0xf6" for p in range(2,n)]+[f"v_cmp_ne_u32 vcc, 0, v{dst+3}"]
        if ac is not None: COLD.append(f"L_xs_{h}:\ns_mov_b32 s5, 0\nL_xt_{h}:\n"+"\n".join(rld(h,dst,so,n,False))+"\ns_waitcnt vmcnt(0)\n"+"\n".join(t)
            +f"\ns_cbranch_vccz L_xo_{h}\ns_add_u32 s5, s5, 1\ns_cmp_lt_u32 s5, {OPT['spinmax']}\ns_cbranch_scc1 L_xt_{h}\ns_branch L_xo_{h}")
        return [f"@W r{h}"]+t[:-1]+split_check(t[-1]+("" if OPT.get("nochk") else f"\ns_cbranch_vccnz L_xs_{h}")+f"\nL_xo_{h}:")
    def apoll(h,va,so,off,tg=True): return [f"v_mov_b32 v{PD_}, 0", far(f"buffer_atomic_add v{PD_}, v{va}, {WS}, {so} offen offset:{off} sc0 sc1"+(f" ; @q{h}" if tg else ""),1)]
    def achk(h,va,so,off,ve):
        t=f"v_cmp_ne_u32 vcc, v{ve}, v{PD_}"
        if ac is not None: COLD.append(f"L_as_{h}:\ns_mov_b32 s5, 0\nL_at_{h}:\n"+"\n".join(apoll(h,va,so,off,False))+f"\ns_waitcnt vmcnt(0)\n{t}"
            +f"\ns_cbranch_vccz L_ao_{h}\ns_add_u32 s5, s5, 1\ns_cmp_lt_u32 s5, {OPT['spinmax']}\ns_cbranch_scc1 L_at_{h}\ns_branch L_ao_{h}")
        return [f"@W q{h}"]+split_check(t+("" if OPT.get("nochk") else f"\ns_cbranch_vccnz L_as_{h}")+f"\nL_ao_{h}:")
    def unp(dst,src,ds=range(8)): return flat([unpack(dst+2*d,src+PD[d]) for d in ds])
    late=(dsetE() if role=="X" else [])+(dsetB() if (role=="X" or not OPT["hoist"]) else [])
    stamp(a,10)
    a(poll_check("p2"+role))
    if OPT["pw0"]: a("s_barrier")
    stamp(a,11); stamp(a,1,"D"); stamp(a,1,"D1")
    F0=OPT["f0"]
    for x in range(F0): a.extend(udma(x))
    a.extend(late)
    a.extend([f"v_mov_b32 v{SB+k}, s{NONCE}" for k in (3,7,10,11)])
    a("@W u0\ns_barrier"); a.extend(urd(0))
    nxt=F0; m0busy=set(); quiet=set(flat([list(range(*[int(y) for y in x.split(".")])) for x in str(OPT["uq"]).split("_") if "." in x]))
    for g_ in range(81):
        g.before(8*g_,f"@W - f{g_}a"); g.before(8*g_+2,f"@W - f{g_}b")
        bar=(g_+1)%4==0
        if bar: g.g[8*g_+2].append(f"@W u{(g_+1)//4} -\ns_barrier")
        if g_<80:
            for k,x in enumerate(urd(g_+1)): g.g[8*g_+(3 if bar else OPT["rg"])+k].append(x)
        k=0
        while nxt<81 and k<OPT["ncat"] and nxt//4<=g_//4+NSL-1 and nxt<=g_+OPT["lag"] and g_ not in quiet:
            d=udma(nxt); p=8*g_+(0,6)[k]; assert nxt//4*4-1-g_>=5, (nxt,g_)
            g.g[p].append(d[0]); g.g[p+1].append(d[1]); m0busy.update((p,p+1)); nxt+=1; k+=1
    assert nxt==81
    def addw(e,tag):
        f=g.g[8*(4*e-1)+2]; i=[k for k,x in enumerate(f) if x.startswith(f"@W u{e}") or x.startswith(f"@W w")][0]; w,rest=f[i].split("\n",1); p=w.split()
        if tag[0]=="r": p[2]=tag if p[2]=="-" else p[2]+","+tag
        else: p[1]+=","+tag
        f[i]=" ".join(p)+"\n"+rest
    free=[(s_,0) for s_ in sorted(S["free"]) if s_<YSL+(not OPT["yin"])]; slot=S["slot"]; assert all(s_<RS0 for s_ in slot.values()), slot
    at={t:1+OPT["jd0"] for t in slot}; ti,td=S["issue"],S["drain"]; log=[[],[]]; yfree=0
    ji=[int(x) for x in str(OPT["ji"+role]).split("_") if x!=""]
    def due(t): return min((need[t//2]-3)//4,GS//4-1)
    for e in range(GS//4):
        L=[]; k=0
        while td<NT and at.get(td,99)<=e and (k<OPT["nd"] or any(due(t)-e<t-td+1 for t in range(td,NT))) and k<2:
            assert e<=due(td), (td,e); k+=1
            addw(e,f"w2_{td}"); L+=flat([x.split("\n") for x in R.reads(td,slot[td])]); log[1].append(e)
            addw(e+1,f"r2_{td}")
            if slot[td]!=YSL or not OPT["yin"]: free.append((slot[td],e+1))
            else: yfree=4*e+4
            td+=1
        if L: g.fit(L,32*e-5,32*e+26)
        if ti<NT and e>=ji[len(log[0])] and free and free[0][1]<=e:
            s_,_=free.pop(0); slot[ti]=s_; d=w2dma(ti,s_); m0,so=d[0].split("\n"); n_=1
            ps=[p for p in range(max(0,32*e-5),32*(e+n_)-7) if p not in m0busy and p+1 not in m0busy]
            g.g[ps[0]].append(so)
            for r in range(4):
                want=ps[0]+r*(ps[-1]-ps[0])//4; p=[x for x in ps if x>=want and x not in m0busy and x+1 not in m0busy][0]
                g.g[p].append(m0); g.g[p+1].append(d[1+r]); m0busy.update((p,p+1))
            at[ti]=e+n_+OPT["jlat"]; log[0].append(e); ti+=1
    assert td==NT,(td,ti,log)
    print(f"; D {role}: issue {log[0]} drain {log[1]}",file=sys.stderr)
    for u in range(9):
        if 2*u+1>=S["drain"] and need[u]<GS: g.pre[8*need[u]][0]+=f",r2_{2*u+1}"
    if R.win!=YSL>>2: g.fit(R.goto(YSL>>2),G(GS)-5,G(GS))
    if role=="X":
        g.fit([f"s_sub_u32 s4, s{TID}, 216\ns_lshl_b32 s7, s4, 7", f"s_lshl2_add_u32 s7, s3, s7\ns_add_u32 s7, s7, {FLAGY}", f"s_cmp_lt_u32 s4, 36\ns_cselect_b32 s7, s7, {OOB}",
           f"v_min_u32 v{PV}, 1, v2", f"v_lshlrev_b32 v{PV}, 30, v{PV}", f"v_mov_b32 v{PV+1}, s{NONCE}", f"buffer_store_dword v{PV+1}, v{PV}, {WS}, s7 offen sc1 ; @yf"],0,12)
    E1=end[1]; ga=min(E1+9,45)
    AUTO=dict(gb2=f"{GS-16}_{GS-12}", gbv=f"{GS-6}_{GS}", gx=f"{GS-12}_{GS}", gxv=f"{E1+5}_{E1+15}", gy=GS, gyc=GS+7 if E1-GS>8 else E1+13, gyr=56, gyv="57_64",
              gap=10*ga, gal=10*(ga+7), nal=5, gac=max(56,ga+15), g8c=64, g8f=76, gbp=540 if ga<43 else 570, gbl=600 if ga<43 else 622, nbl=2 if ga<43 else 1)
    O=lambda k: OPT[k] if OPT.get(k,-1)!=-1 else AUTO[k]
    def rng(k): return [G(int(x)) for x in str(O(k)).split("_")]
    def at_(k,L,n=1): g.fit(L,G(O(k)/10),G(O(k)/10+n))
    rs=flat([[f"v_cvt_pk_bf16_f32 v{SB+4*q+h}, v{A8+4*q+2*h}, v{A8+4*q+2*h+1}" for h in range(2)]+[far(f"buffer_store_dwordx4 {Q(SB+4*q)}, v{L16}, {WS}, s{so} offen sc1 ; @xs",1)] for q,so in enumerate((SR0,SR1))])
    sent={}
    for bs,L,sp in ((("R",1),rs+send(1,SYA),O("sp1")/10),((2,),send(2,SYB),O("sp2")/10),((3,),send(3,SZ),O("sp3")/10)):
        t=end[bs[-1]]+0.5+O("s2d")*(bs==(2,)); assert GS<=t; pc=[]
        for x in L:
            pc.append(x)
            if "store" in x: g.fit(pc,G(t),G(t+min(sp,1.5))); pc=[]; t+=sp
        for b in bs: sent[b]=t-sp+min(sp,1.5)
    p1,p2,p3=("a",PA1,"0",12),("b",PA2,f"s{SMB}",2060),("z",PA2,f"s{SMZ}",2060)
    E=AB[0]; T1,T2,T3=AB[1:]
    def get(p,ve,kp,kl,n,L,t):
        if p[0] not in OPT["np"]: at_(kp,apoll(*p),0.5); L=achk(*p,ve)+L; assert O(kp)>=10*t
        at_(kl,L,n); assert O(kl)>=10*t
    get(p1,PE1,"gap","gal",O("nal"),rld("a",T1,SMA,3)+rld("8",RVS,SM8,4),max(sent[1],sent["R"]))
    g.fit(rchk("a",T1,SMA,3,NONCE)+unp(E,T1),G(O("gac")),G(beg[0])-1)
    get(p2,PE2,"gbp","gbl",O("nbl"),rld("b",T2,SMB,3),sent[2])
    get(p3,PE2,"gzp","gzl",1,rld("z",T3,SMZ,3),sent[3])
    assert O("gbp")>=O("gal")+5 and O("gzp")>=O("gbl")+5
    gb=O("gbc"); assert gb>=beg[0] and gb>=O("gac")+4
    g.fit(rchk("b",T2,SMB,3,NONCE)+unp(T1,T2),G(gb),G(gb+3))
    for r in range(2):
        g_=[x for x in range(gb+3,80) if groups[x-1][:2]==(0,r) and groups[x][:2]==(0,1-r)][0]
        g.fit([f"v_add_f32 v{E+8*r+k}, v{E+8*r+k}, v{T1+8*r+k}" for k in ((0,1,2,3,4,5,6,7) if g_&1 else (4,5,6,7,0,1,2,3))],G(g_)+2,G(g_)+7)
    zt=[str(x) for x in rchk("z",T3,SMZ,3,NONCE)]+unp(T1,T3)
    of=OPT["ostore"]
    assert (O("gy")>=GS)==(O("gyc")>=GS)==(not OPT["yin"])
    g.fit([poll_issue("p3" if O("gy")>=GS else "p3"+role)],G(O("gy")),G(O("gy")+1))
    g.fit(split_check(poll_check("p3" if O("gyc")>=GS else "p3"+role)),G(O("gyc")),G(O("gyc")+1))
    p=G(O("gyc")+1); assert O("gyc")+1>=yfree
    for q,so in enumerate((SY0,SY8)):
        while any(x in m0busy for x in (p,p+1,p+2)): p+=1
        g.g[p].append(f"s_add_u32 m0, s{LW}, {YSL*SLOT+2048*q}"); m0busy.update((p,p+1,p+2))
        assert (p+2<8*GS)==(O("gyc")<GS)
        for r in range(2): g.g[p+1+r].append(f"buffer_load_dwordx4 v{YP+r}, {WS}, s{so} offen offset:{1024*r} sc1 lds ; @ey")
    assert O("gyr")%4==0 and O("gyr")>=GS and p+3<G(O("gyr")-1); addw(O("gyr")//4,"ey")
    def xq(q,h): return XP+4*(q&1)+2*(q>>1)+h if q<4 else X8+h
    def st(q): return STT+2*(q&1 if q<4 else 2)
    def yq(q,h): return (12,24,28,190,X8)[q]+h
    assert rng("gxv")[1]<=G(O("gyr")) and G(O("gyr")+1)<=rng("gyv")[0] and rng("gyv")[1]<=G(O("g8c")) and rng("gxv")[1]<=G(O("gac"))
    el=eloads(); g.fit(el[:2]+el[-3:],*rng("gb2")); g.fit(el[2:-3],*rng("gx")); assert rng("gx")[1]<=rng("gxv")[0]
    g.fit(["@W eb"]+[f"v_lshlrev_b32 v{T3+k}, 16, v{B2+(k>>2&1)}" for k in range(16)]+[f"v_lshlrev_b32 v{B8}, 16, v{B8}"],*rng("gbv")); assert rng("gb2")[1]<=rng("gbv")[0] and rng("gbv")[1]<G(beg[3])
    xv=["@W ex"]+[f"v_mul_f32 v{STT+2*n}, v{STT+2*n}, v{STT+2*n+1}" for n in range(3)]+[f"v_permlane16_swap_b32 v{XP+4*j+h}, v{XP+4*j+2+h}" for j in range(2) for h in range(2)]
    xv+=flat([unpack(XF+4*q+2*h,xq(q,h)) for q in range(5) for h in range(2)])+[f"v_fma_f32 v{NN+j}, v{XF+j}, v{st(j//4)+1}, -v{st(j//4)}" for j in range(20)]
    g.fit(xv,*rng("gxv"))
    yr=[f"v_xor_b32 v{RB8}, s41, v{RB2}",f"v_add_u32 v{RB8}, s43, v{RB8}"]+[f"ds_read_b64_tr_b16 {P(yq(q,0))}, v{RB2+(q&1) if q<4 else RB8} offset:{(YSL&3)*SLOT+(4096*(q>>1) if q<4 else 2048)} ; @ry" for q in range(5)]
    g.fit(yr,G(O("gyr")),G(O("gyr")+1))
    tv=(8,30)
    yv=["@W - ry"]+flat([unpack(tv[h],yq(q,h))+[f"v_mul_f32 v{NN+4*q+2*h+k}, v{NN+4*q+2*h+k}, v{tv[h]+k}" for k in (1,0)] for q in range(5) for h in range(2)])
    g.fit(yv,*rng("gyv"))
    A=A8; r=A8+4; n=NN+16
    e8=rchk("8",RVS,SM8,4,ST8)+unpack(A,RVS)+unpack(A+2,RVS+1)+[f"v_add_f32 v{A+k}, v{A+k}, v{B8}" for k in range(4)]
    for q in range(1,4): e8+=unpack(r,RVS+4*q)+unpack(r+2,RVS+4*q+1)+[f"v_add_f32 v{A+k}, v{A+k}, v{r+k}" for k in range(4)]
    e8+=[f"v_mul_f32 v{r+k}, s38, v{A+k}" for k in range(4)]+[f"v_exp_f32 v{r+k}, v{r+k}" for k in range(4)]+[f"v_mul_f32 v{n+k}, v{n+k}, v{A+k}" for k in range(4)]
    e8+=[f"v_add_f32 v{r+k}, 1.0, v{r+k}" for k in range(4)]+[f"v_rcp_f32 v{r+k}, v{r+k}" for k in range(4)]+[f"v_fma_f32 v{n+k}, v{n+k}, v{r+k}, v{XF+16+k}" for k in range(4)]
    e8+=[f"v_cvt_pk_bf16_f32 v{X8}, v{n}, v{n+1}",f"v_cvt_pk_bf16_f32 v{X8+1}, v{n+2}, v{n+3}",f"buffer_store_dwordx2 {P(X8)}, v{XO+1}, {RC}, 0 offen {of} ; @o8"]
    g.fit(e8[:-1],G(O("g8c")),G(O("g8f")))
    g.fit(e8[-1:],G(max(O("g8f"),O("gzl")//10+2)),G(81))
    g.finish()
    if ac is not None: print("; D cost/group"," ".join(f"{sum(g.load(i) for i in range(8*k,8*k+8)):.0f}" for k in range(81)),file=sys.stderr)
    for i,(m,p_,f) in enumerate(zip(g.mf,g.pre,g.g)):
        if i==8*GS:
            if ac is None: a("s_branch L_Dc"); return
            a=ac; a("L_Dc:")
        if i and i%72==0: stamp(a,1+i//72,"D")
        if i%32==0 and i<12*32: stamp(a,2+i//32,"D1")
        if i%32==0 and i>=9*32: stamp(a,1+i//32-9,"D2")
        a.extend(p_); a(m); a.extend(f)
    stamp(a,12); stamp(a,10,"D"); stamp(a,13,"D2")
    def fin(nt):
        two=lambda f: flat([f(E+4*q,T2+4*q,NN+4*q,q) for q in (nt,nt+2)])
        s1=two(lambda A,r,n,t:[f"v_pk_add_f32 {P(A)}, {P(A)}, {P(T1+4*t)}",f"v_pk_add_f32 {P(A+2)}, {P(A+2)}, {P(T1+4*t+2)}"])
        s1+=two(lambda A,r,n,t:[f"v_pk_mul_f32 {P(r)}, {P(A)}, s[38:39] op_sel_hi:[1,0]",f"v_pk_mul_f32 {P(r+2)}, {P(A+2)}, s[38:39] op_sel_hi:[1,0]"])
        s1+=two(lambda A,r,n,t:[f"v_exp_f32 v{r+k}, v{r+k}" for k in range(4)])
        s1+=two(lambda A,r,n,t:[f"v_pk_mul_f32 {P(n)}, {P(n)}, {P(A)}",f"v_pk_mul_f32 {P(n+2)}, {P(n+2)}, {P(A+2)}"])
        s1+=two(lambda A,r,n,t:[f"v_pk_add_f32 {P(r)}, {P(r)}, 1.0 op_sel_hi:[1,0]",f"v_pk_add_f32 {P(r+2)}, {P(r+2)}, 1.0 op_sel_hi:[1,0]"])
        s1+=two(lambda A,r,n,t:[f"v_rcp_f32 v{r+k}, v{r+k}" for k in range(4)])
        s1+=two(lambda A,r,n,t:[f"v_pk_fma_f32 {P(n)}, {P(n)}, {P(r)}, {P(XF+4*t)}",f"v_pk_fma_f32 {P(n+2)}, {P(n+2)}, {P(r+2)}, {P(XF+4*t+2)}"])
        o=E+4*nt; n0,n1=NN+4*nt,NN+4*nt+8
        s1+=[f"v_cvt_pk_bf16_f32 v{o}, v{n0}, v{n0+1}",f"v_cvt_pk_bf16_f32 v{o+2}, v{n1}, v{n1+1}",f"v_cvt_pk_bf16_f32 v{o+1}, v{n0+2}, v{n0+3}",f"v_cvt_pk_bf16_f32 v{o+3}, v{n1+2}, v{n1+3}",
             f"v_permlane16_swap_b32 v{o}, v{o+2}",f"v_permlane16_swap_b32 v{o+1}, v{o+3}",f"buffer_store_dwordx4 {Q(o)}, v{XO}, {RC}, {('0',f's{SC16}')[nt]} offen {of}"]
        return s1
    a.extend(zt+fin(0)+fin(1))
    stamp(a,13)
    if OPT["stamps"]:
        a("s_waitcnt vmcnt(0)"); stamp(a,14); stamps_out(a)
    if OPT.get("probe") is not None:
        a("s_waitcnt vmcnt(0)"); stamp(a,14)
        if OPT["probe"]==0: a(f"s_mov_b32 s28, s{NONCE}")
        if OPT.get("prole")=="G": a(f"s_cmp_lt_u32 s{TID}, 216\ns_cselect_b32 s28, s28, s{NONCE}")
        if OPT.get("prole")=="X": a(f"s_sub_u32 s4, s{TID}, 216\ns_cmp_lt_u32 s4, 36\ns_cselect_b32 s28, s28, s{NONCE}")
        a("s_add_u32 s28, s28, 6000\ns_mov_b32 s5, 0\nL_spin:\ns_memrealtime s[0:1]\ns_waitcnt lgkmcnt(0)\ns_sub_u32 s4, s0, s28\ns_add_u32 s5, s5, 1\ns_cmp_gt_u32 s5, 20000\ns_cbranch_scc1 L_spe\ns_cmp_lt_i32 s4, 0\ns_cbranch_scc1 L_spin\nL_spe:")
    a("s_endpgm\nL_segE:")

def check_vcc(seg):
    last=None
    for ins in seg.L:
        if "vcc" in ins.w: assert last is None or "#" not in last, (last,ins.text); last=ins.text
        if ins.op.startswith("s_cbranch_vcc"):
            assert last is not None and ("#" not in last or last.split("#")[1]==ins.text.split()[1]), (last,ins.text); last=None
def check_m0(seg):
    cur=None
    for ins in seg.L:
        if "m0" in ins.w: cur=ins.text.split(",")[1].strip()
        if ins.kind=="vmem" and " lds" in ins.text:
            tg=ins.text.split("@")[1]; want={"w":f"s{LW}","h":f"s{LH}","k":"s9"}[tg[0]]
            assert cur==want,(ins.text,cur)
def build(**kw):
    OPT.update(kw)
    hdr=open("cdna_kernels/"+NAME+".s.ref").read().split("; Override launch")[0]
    segs=s0,sG,sDG,sD,sXA,sC,sDX,sI=[Asm() for _ in range(8)]
    p0(s0); R=roleG(sG); roleX_A(sXA); conv(sC); idle(sI); phaseD(sDG,sD,"G",R); n=nX(); phaseD(sDX,None,"X",dict(R=W2R(),slot=dict(XS),free=list(range(2,10)),issue=n,drain=n-2))
    for seg in segs:
        for ins in seg.L:
            m=re.search(r";\s*@(\S+)",ins.text)
            if OPT.get("drop"):
                if ins.kind=="vmem" and m and re.fullmatch(OPT["drop"],m.group(1)): ins.__init__("")
                elif ins.text.startswith("@W"):
                    p=ins.text.split(); tg=[t for t in p[1].split(",") if not re.fullmatch(OPT["drop"],t)]
                    ins.__init__(" ".join(["@W",",".join(tg) or "-"]+p[2:]))
            if OPT.get("dropds") and ins.kind=="ds" and m and re.fullmatch(OPT["dropds"],m.group(1)): ins.__init__("ds_nop ; @"+m.group(1))
            if OPT.get("nt") and ins.kind=="vmem" and m and re.fullmatch(OPT["nt"],m.group(1)):
                ins.__init__(ins.text.replace(" lds ;"," nt lds ;") if " lds ;" in ins.text else ins.text.replace(" ;"," nt ;"))
            if OPT.get("nosc1") and ins.kind=="vmem" and m and re.fullmatch(OPT["nosc1"],m.group(1)): ins.__init__(ins.text.replace(" sc1",""))
    for seg in segs: check_vcc(seg)
    paths=[[s0,sG,sDG,sD],[s0,sXA,sC,sDX,sD],[s0,sXA,sI,sDX,sD]]
    resolve_vm(paths)
    if not OPT.get('drop'): check_pending(paths)
    a=Asm(); a.L=flat([s.L for s in segs]); c=Asm(); c.extend(COLD)
    if OPT["iw"]:
        k=[i for i,x in enumerate(a.L) if x.text==".p2align 12"][0]; a.L=a.L[:k]+c.L+a.L[k:]
    else: a.L+=c.L
    a("L_end:"); a.fix()
    check_m0(sC)
    if OPT["iw"]:
        def disp(cnt):
            d=Asm()
            for nm in "GXD":
                d(f"L_wc_{nm}:")
                for w in range(4):
                    tgt=f"L_pl_{nm}_{w}" if w<cnt[nm] else "L_wret"
                    d(f"s_cmp_eq_u32 s3, {w}\ns_cbranch_scc1 {tgt}" if w<3 else f"s_branch {tgt}")
            d("L_wret:\ns_setpc_b64 s[82:83]")
            return d.L
        k=[i for i,x in enumerate(a.L) if x.text==".p2align 12"][0]
        L,cnt=page_landings(a.L[:k]+disp(dict(G=0,X=0,D=0))+a.L[k:],"L_org",[("G","L_segG","L_Dc"),("X","L_segX","L_idle"),("D","L_Dc","L_segE")])
        n=len(disp(cnt)); a.L=L[:k]+disp(cnt)+L[k+n:]
        print("; landings",cnt,file=sys.stderr)
    return (hdr+"; @launch grid=(256,1,1) block=(256,1,1) lds=163840\n"+'.amdgcn_target "amdgcn-amd-amdhsa--gfx950"\n.text\n'+a.text()
            +'.section .rodata,"a"\n'+kdesc(KN,256,256))
if __name__=="__main__":
    kw={}
    for x in sys.argv[2:]:
        k,v=x.split("=",1); kw[k]=int(v) if v.lstrip("-").isdigit() else v
    open(sys.argv[1],"w").write(build(**kw))
```

```python
import sys, struct, re
from asmlib import *
from layout import *
WS_XB=WS_U; WS_F4=WS_U2+144*U2_KS; WS_X4=WS_F4+1024*128; WS_END=WS_X4+(13<<20)
NAME="recurrent_scan__ssm_conv_h3__mixer_token_mlp__prompt"
KN=NAME+"_kernel"
OPT=dict(stamps=0, nln=4, nkv=0, npost=10, nA=10, rate=100, lat=3, lead1=2, lead2=2, cflag=0, nin=0, spinmax=100000, sleep=0,
         fpl=2, hrot=1, ostore="sc1", cpl=5, cpr=0, w1w='3_3_4_6', rate2=100, q0=0, q1=0, bsj='31_32_33_34_35_36', g2b=1, stg=0, rd0=7, pfw=0, pf0=10, jbf=42, jbp=49, jbl=53, jbu=57, nh=6,
         bursts='16.8_17.12_18.19_19.23', maxb=8, quiet=2, cvs=0, kp=3, bn=1, h0=4, iw=1, kvend=60, n63=2, cch=1, smove=2, je0=0, jen=12, clump=1, ramp=0, cfrac=100,
         rgm=1, w2w='14_4', wd=2, wg=0, hoist=1, pw0=1, hf=1, wso=0, k8=0, rbl=1, kvb=1, pub0=1, ct=0, ap='12', rep=8, ppl=0, psl=3, isl=16, ipf=0, ipc=4, rep1=8, repk=4, npre=10, n0=7, nd0=5, pp=3, nrf=1, e01=2, e2x=0, ord='h',
         nsl=4, lag=15, f0=8, ncat=2, rg=2, nC=16, nc1=2, cfirst=-1, cpos=0, c1s=0, c1e=100, cw=1, pe=3, jlat=1, jd0=0, nd=1, jiG='2_3', jiX='2_3_4', usk=0, uq='50.55',
         nX=18, cvn=13, cvb=4, cvd=1, cvp='9.0.36_3.20.56_9.41.76_3.61.94_9.81.116_9.121.156_9.161.192_0.175.207_1.188.220_9.202.234_0.215.247_1.228.260_9.242.274_0.255.287_1.268.300_9.282.314_0.295.0_1.307.0', fold=1, g2c=1,
         gbc=73, gzp=700, gzl=730, yin=0, np='az', sp1=20, sp2=15, sp3=5, s2d=0, gap=445, gal=500, nal=3, gac=61, gbp=570, gbl=625, nbl=1, gyc=33, gyr=44, gyv='45_54', gx='12_24')
def f2h(x): return "0x%08x"%struct.unpack("<I",struct.pack("<f",x))[0]
S_Q,S_K,S_V,S_SK,S_SSM,S_D,S_BX,S_W1,S_B1,S_W2,S_B2,S_OUT,S_DBG,S_WS=16,18,20,22,24,26,28,30,32,34,36,38,40,42
WS="s[44:47]"; RW1="s[48:51]"; RW2="s[52:55]"; RA="s[56:59]"; RB_="s[60:63]"; RC="s[64:67]"
NONCE,N1,M1,N2,KQ,LW,LH,TID=68,69,70,71,72,73,74,75
K1,K2,KA=76,84,18
NB_SD=2048*576*2
FLAG1=WS_FLAGS; FLAG2=WS_FLAGS+32768; FLAGK=WS_FLAGS+65536
SLOT=16384; HR=7*SLOT; HS=12288
LN_STR=1216; LN_ST=144896; KV_ST=LN_ST+8*LN_STR
OOB="0x40000000"
def P(r): return f"v[{r}:{r+1}]"
def Q(r,k="v"): return f"{k}[{r}:{r+3}]"
def flat(x): return sum(x,[])
def lines(items):
    out=[]
    for it in items:
        l=it.split("\n"); last=max([i for i,x in enumerate(l) if x.startswith(("s_cselect","s_addc"))],default=-1); i=0
        while i<len(l):
            j=i
            if l[i].startswith(("s_cmp","s_bitcmp")):
                j=i+1
                while j+1<=last and not l[j+1].startswith(("s_cmp","s_bitcmp")): j+=1
            out.append("\n".join(l[i:j+1])); i=j+1
    return out

def stamp(a,c,fine=None):
    if OPT.get("probe") is not None:
        if fine is None and c==OPT["probe"]: a("s_memrealtime s[28:29]\ns_waitcnt lgkmcnt(0)")
        return
    if OPT.get("fine") and fine!=OPT["fine"] and c!=14: return
    if fine and not OPT.get("fine"): return
    if OPT["stamps"]:
        a(f"s_memrealtime s[28:29]\ns_memtime s[0:1]\ns_waitcnt lgkmcnt(0)\nv_writelane_b32 v254, s28, {c}\nv_writelane_b32 v254, s0, {16+c}")
def stamps_out(a):
    a(f"s_lshl_b32 s4, s{TID}, 2\ns_add_u32 s4, s4, s3\ns_lshl_b32 s4, s4, 7\ns_add_u32 s4, s4, {WS_STAMP}\nv_lshlrev_b32 v255, 2, v2\ns_mov_b64 exec, 0xffffffff")
    a(f"buffer_store_dword v254, v255, {WS}, s4 offen")

def unpack(dst,src): return [f"v_and_b32 v{dst+1}, 0xffff0000, v{src}", f"v_lshlrev_b32 v{dst}, 16, v{src}"]
def reduce32(r,t):
    L=[f"v_add_f32_dpp v{r}, v{r}, v{r} row_ror:{sh} row_mask:0xf bank_mask:0xf" for sh in (8,4,2,1)]
    return L+[f"v_mov_b32 v{t}, v{r}", f"v_permlane16_swap_b32 v{r}, v{t}", f"v_add_f32 v{r}, v{r}, v{t}"]
def rbf(r): return [f"v_cvt_pk_bf16_f32 v{r}, v{r}, v{r}", f"v_lshlrev_b32 v{r}, 16, v{r}"]
NEG1="op_sel_hi:[1,0] neg_lo:[0,1] neg_hi:[0,1]"
def ln_fused(X,T,M,RS,D,ST):
    L=[f"v_pk_add_f32 {P(T+2*i)}, {P(X+4*i)}, {P(X+4*i+2)}" for i in range(4)]
    L+=[f"v_pk_add_f32 {P(T)}, {P(T)}, {P(T+2)}", f"v_pk_add_f32 {P(T+4)}, {P(T+4)}, {P(T+6)}", f"v_pk_add_f32 {P(T)}, {P(T)}, {P(X+16)}", f"v_pk_add_f32 {P(T)}, {P(T)}, {P(T+4)}"]
    L+=[f"v_add_f32 v{M}, v{T}, v{T+1}"]+reduce32(M,M+1)+[f"v_mul_f32 v{M}, 0x3ae38e39, v{M}"]
    L+=[f"v_pk_add_f32 {P(X+2*j)}, {P(X+2*j)}, {P(M)} {NEG1}" for j in range(9)]
    L+=[f"v_pk_mul_f32 {P(T)}, {P(X)}, {P(X)}", f"v_pk_mul_f32 {P(T+2)}, {P(X+2)}, {P(X+2)}"]
    L+=[f"v_pk_fma_f32 {P(T+2*(j&1))}, {P(X+2*j)}, {P(X+2*j)}, {P(T+2*(j&1))}" for j in range(2,9)]
    L+=[f"v_pk_add_f32 {P(T)}, {P(T)}, {P(T+2)}", f"v_add_f32 v{RS}, v{T}, v{T+1}"]+reduce32(RS,RS+1)
    L+=[f"v_mul_f32 v{RS}, 0x3ae38e39, v{RS}"]
    L+=[f"v_cvt_pk_bf16_f32 v{T}, v{M}, v{RS}", f"v_lshlrev_b32 v{ST}, 16, v{T}", f"v_and_b32 v{T}, 0xffff0000, v{T}",
        f"v_add_f32 v{T}, 0x3727c5ac, v{T}", f"v_sub_f32 v{M}, v{M}, v{ST}"]+rbf(T)+[f"v_sqrt_f32 v{T}, v{T}"]+rbf(T)+[f"v_rcp_f32 v{ST+1}, v{T}"]
    L+=[f"v_mul_f32 v{M}, v{M}, v{ST+1}", f"v_mul_f32 v{RS}, v{RS}, v{ST+1}", f"v_mul_f32 v{RS}, v{RS}, v{ST+1}",
        f"v_cvt_pk_bf16_f32 v{T}, v{M}, v{RS}", f"v_lshlrev_b32 v{T+1}, 16, v{T}", f"v_and_b32 v{T}, 0xffff0000, v{T}",
        f"v_add_f32 v{T}, 0x3727c5ac, v{T}", f"v_sub_f32 v{M}, v{M}, v{T+1}"]+rbf(T)+[f"v_sqrt_f32 v{T}, v{T}"]+rbf(T)+[f"v_rcp_f32 v{T}, v{T}"]
    L+=[f"v_mul_f32 v{RS}, v{ST+1}, v{T}", f"v_mul_f32 v{M}, v{M}, v{T}"]
    L+=[f"v_pk_fma_f32 {P(X+2*j)}, {P(X+2*j)}, {P(RS)}, {P(M)} op_sel_hi:[1,0,0]" for j in range(9)]
    L+=[f"v_cvt_pk_bf16_f32 v{D+j}, v{X+2*j}, v{X+2*j+1}" for j in range(9)]
    return L

VW2,RB2,RR,VA,SA,B8,PV,XO=4,10,14,19,26,27,28,252
AF,L16,PA1,PE1,PA2,PE2,PD_,XF,NN,YP,RB8,SA8,PY,SB,RVS,WV=104,136,137,138,139,140,141,144,164,184,186,18,188,192,204,220
SYA,SZ,SR0,SR1,SMA,SM8,ST8,SY0,SC16,SST,SMB,SMZ,SYB,SY8=30,31,32,33,34,35,36,37,40,42,11,12,15,16
KU=18
ACC1,HF,BIAS,VW1,RW1B,VH,RH,GT=32,80,144,148,152,156,159,160
NT=18
MP="s_bfe_u32 s{}, s2, 0x20003"

def w2reg(t): return ("a",16*t) if t<16 else ("v",WV+16*(t-16))
def w2dma(t,slot):
    L=[f"s_add_u32 m0, s{LW}, {slot*SLOT}\ns_lshl_b32 s14, s{K2+t}, 18"]
    return L+[f"buffer_load_dwordx4 v{VW2+r}, {RW2}, s14 offen offset:{1024*r} lds ; @w2_{t}" for r in range(4)]
class W2R:
    def __init__(self): self.win=0
    def goto(self,w):
        d=(w-self.win)*65536; self.win=w
        return [f"v_add_u32 v{RB2+nt}, {d}, v{RB2+nt}" for nt in range(2)] if d else []
    def reads(self,t,slot):
        kind,r0=w2reg(t); adj=self.goto(slot>>2); L=[]
        for nt in range(2):
            for ks in range(2):
                for hf in range(2):
                    r=r0+8*ks+4*nt+2*hf
                    s=f"ds_read_b64_tr_b16 {kind}[{r}:{r+1}], v{RB2+nt} offset:{(slot&3)*SLOT+4096*ks+2048*hf} ; @r2_{t}"
                    L.append((adj[nt]+"\n" if adj and ks+hf==0 else "")+s)
        return L
def w2setup():
    L=["v_lshrrev_b32 v24, 3, v2","v_and_b32 v25, 7, v2","v_bfe_u32 v31, v2, 4, 2","v_lshlrev_b32 v31, 1, v31","v_xor_b32 v25, v25, v31","v_lshlrev_b32 v24, 12, v24","v_lshl_add_u32 v24, v25, 4, v24",
       w2base(7)+f"\ns_lshl_b32 s8, s{N2}, 7\ns_add_u32 s7, s7, s8\nv_add_u32 v{VW2}, s7, v24"]
    L+=[f"v_add_u32 v{VW2+i}, {32768-1024}, v{VW2+i-1}" for i in range(1,4)]
    L+=["v_lshrrev_b32 v24, 2, v2","v_lshlrev_b32 v24, 7, v24","v_and_b32 v25, 3, v2","v_lshl_add_u32 v24, v25, 3, v24",f"s_and_b32 s7, s{LW}, 8192\nv_add_u32 v24, s7, v24","v_bfe_u32 v31, v2, 3, 2",
        "s_and_b32 s7, s3, 1\ns_lshl_b32 s7, s7, 1\nv_xor_b32 v31, s7, v31",f"v_lshl_add_u32 v{RB2}, v31, 5, v24",f"v_xor_b32 v{RB2+1}, 32, v{RB2}"]
    return L
def w2base(d): return f"s_mul_i32 s{d}, s{KQ}, 36\ns_bitcmp1_b32 s3, 0\ns_addc_u32 s{d}, s{d}, 0\ns_lshl_b32 s{d}, s{d}, 17"
def k2table():
    L=[]; b=0; ws=[int(x) for x in str(OPT["w2w"]).split("_")]; assert sum(ws)==18 and ws[-1]>1
    for W in ws:
        L.append(f"s_mul_i32 s{K2+b}, s{K2+17}, {W}\ns_lshr_b32 s{K2+b}, s{K2+b}, 2\ns_add_u32 s{K2+b}, s{K2+b}, {b}")
        L+=[f"s_add_u32 s{K2+i}, s{K2+i-1}, 1\ns_cmp_eq_u32 s{K2+i}, {b+W}\ns_cselect_b32 s{K2+i}, {b}, s{K2+i}" for i in range(b+1,b+W)]
        b+=W
    return L
def kutable():
    return ["s_bitcmp1_b32 s3, 1\n"+"\n".join(f"s_cselect_b32 s{KU+u}, s{K2+2*u+1}, s{K2+2*u}\ns_mul_i32 s{KU+u}, s{KU+u}, {2*U2_KS}" for u in range(9))]
def eprep():
    return [f"v_and_b32 v24, 15, v2\ns_lshl_b32 s7, s{N2}, 6\nv_add_u32 v24, s7, v24\ns_and_b32 s8, s3, 1\ns_lshl_b32 s4, s8, 5\nv_add_u32 v25, s4, v24\nv_lshlrev_b32 v{SA}, 3, v25",
            f"v_mul_u32_u24 v25, 1152, v25\nv_bfe_u32 v31, v2, 4, 1\nv_lshl_add_u32 v25, v31, 5, v25\nv_lshrrev_b32 v31, 5, v2\nv_lshl_add_u32 v25, v31, 4, v25\n"+MP.format(7)+"\ns_mul_i32 s7, s7, 288",
            f"s_lshl_b32 s4, s{KQ}, 6\ns_add_u32 s4, s4, s7\nv_add_u32 v{XO}, s4, v25\ns_xor_b32 s8, s3, s{KQ}\ns_and_b32 s4, s{KQ}, 1\ns_lshl1_add_u32 s4, s4, s8\nv_lshl_add_u32 v24, s4, 4, v24",
            f"s_add_u32 s7, s7, 256\ns_cmp_lt_u32 s8, 2\ns_cselect_b32 s7, s7, {OOB}\nv_lshlrev_b32 v{SA8}, 3, v24\nv_mul_u32_u24 v24, 1152, v24\nv_lshrrev_b32 v31, 4, v2\nv_lshl_add_u32 v24, v31, 3, v24\nv_add_u32 v{XO+1}, s7, v24"]

COLD=[]
def flag_prep(idx_sgpr, base, v=1):
    f=OPT["fpl"]
    return [f"s_lshr_b32 s4, s{idx_sgpr}, {f}\ns_lshl_b32 s4, s4, 7\ns_and_b32 s5, s{idx_sgpr}, {(1<<f)-1}\ns_lshl2_add_u32 s4, s5, s4\ns_add_u32 s4, s4, {base}",
            f"v_min_u32 v{v}, 1, v0\nv_lshlrev_b32 v{v}, 30, v{v}\nv_add_u32 v{v}, s4, v{v}"]
def flag_store(a): a(f"v_mov_b32 v3, s{NONCE}\nbuffer_store_dword v3, v1, {WS}, 0 offen sc1 ; @fl")
def pv(tag): return PY if tag[:2]=="p3" else 15 if tag=="p2G" else PV
def poll_addr(first_expr, n, base, v=PV):
    f=OPT["fpl"]
    return [first_expr+f"\nv_min_u32 v{v}, {n-1}, v2", f"v_add_u32 v{v}, s4, v{v}", f"v_and_b32 v{v+1}, {(1<<f)-1}, v{v}", f"v_lshrrev_b32 v{v}, {f}, v{v}",
            f"v_lshlrev_b32 v{v}, 7, v{v}", f"v_lshl_add_u32 v{v}, v{v+1}, 2, v{v}", f"v_add_u32 v{v}, {base}, v{v}"]
def atom(tag): return tag[1] in str(OPT["ap"])
def pexp(tag): return f"s{NONCE}" if tag=="p1X" else {"1":"v12","2":"v13","5":"v12"}[tag[1]]
def poll_op(tag):
    v=pv(tag)
    return f"v_mov_b32 v{v+1}, 0\nbuffer_atomic_add v{v+1}, v{v}, {WS}, 0 offen sc0 sc1" if atom(tag) else f"buffer_load_dword v{v+1}, v{v}, {WS}, 0 offen sc1"
def poll_issue(tag): return poll_op(tag)+f" ; @{tag}"
def poll_check(tag):
    v=pv(tag); sl=f"s_sleep {OPT['sleep']}\n" if OPT["sleep"] else ""; ex=pexp(tag) if atom(tag) else "s83" if (tag[:2]=="p2" and OPT["pw0"]==1) else f"s{NONCE}"
    pre=""
    if tag=="p2G" and OPT["ct"]:
        pre=f"v_and_b32 v24, 31, v2\nv_lshlrev_b32 v24, 12, v24\n"+w2base(4)+f"\ns_lshl_b32 s7, s{N2}, 7\ns_add_u32 s4, s4, s7\nv_add_u32 v24, s4, v24\nv_lshrrev_b32 v25, 5, v2\n"
        for t in range(18-OPT["ct"],18,2): pre+=f"s_sub_u32 s4, s{K2+t+1}, s{K2+t}\nv_mul_i32_i24 v31, s4, v25\nv_add_u32 v31, s{K2+t}, v31\nv_lshl_add_u32 v31, v31, 18, v24\nbuffer_load_dword v255, v31, {RW2}, 0 offen\n"
    if tag[:2]=="p2" and OPT["pw0"]==2: pre+=f"s_cmp_lg_u32 s3, 0\ns_cbranch_scc1 L_rx_{tag}\n"
    n=OPT["ppl"] if (tag[:2]=="p2" and atom(tag)) else 0
    if n and not any(c.startswith(f"L_rs_{tag}:") for c in COLD):
        op=lambda k: f"v_mov_b32 v{RVS+k}, 0\nbuffer_atomic_add v{RVS+k}, v{v}, {WS}, 0 offen sc0 sc1\ns_sleep {OPT['psl']}\n"
        COLD.append(f"L_rs_{tag}:\ns_mov_b32 s5, 0\n"+"".join(op(k) for k in range(n-1))+f"L_rt_{tag}:\n"
            +"".join(op((k+n-1)%n)+f"s_waitcnt vmcnt({n-1})\nv_cmp_ne_u32 vcc, {ex}, v{RVS+k}\ns_cbranch_vccz L_ok_{tag}\n" for k in range(n))
            +f"s_add_u32 s5, s5, 1\ns_cmp_lt_u32 s5, {OPT['spinmax']}\ns_cbranch_scc1 L_rt_{tag}\ns_branch L_ok_{tag}")
    if not any(c.startswith(f"L_rs_{tag}:") for c in COLD): COLD.append(f"L_rs_{tag}:\n{pre}s_mov_b32 s5, 0\nL_rt_{tag}:\ns_mov_b64 exec, vcc\n{sl}"
            f"{poll_op(tag)}\ns_waitcnt vmcnt(0)\nv_cmp_ne_u32 vcc, {ex}, v{v+1}\ns_cbranch_vccz L_rx_{tag}\n"
            f"s_add_u32 s5, s5, 1\ns_cmp_lt_u32 s5, {OPT['spinmax']}\ns_cbranch_scc1 L_rt_{tag}\nL_rx_{tag}:\ns_mov_b64 exec, -1\ns_branch L_ok_{tag}")
    return f"@W {tag}\nv_cmp_ne_u32 vcc, {ex}, v{v+1}\ns_cbranch_vccnz L_rs_{tag}\nL_ok_{tag}:"
def split_check(c):
    l=c.split("\n"); k=[i for i,x in enumerate(l) if x.startswith("s_cbranch_vcc")]
    if not k: return l[:-2]+["\n".join(l[-2:])]
    k=k[0]; return l[:k-1]+[l[k-1]+" ; #"+l[k].split()[1], far("\n".join(l[k:]))]
def poll1_addr():
    if atom("p1"):
        return [f"s_lshr_b32 s4, s2, 1\ns_and_b32 s4, s4, {OPT['repk']-1}\ns_lshl2_add_u32 s4, s4, s3\ns_lshl_b32 s4, s4, 8\ns_add_u32 s4, s4, {FLAGK}\nv_lshl_add_u32 v{PV}, v2, 2, s4"]
    return poll_addr("s_lshl_b32 s4, s3, 6",64,FLAGK if OPT["hf"] else FLAG1)
def flag2_prep(v):
    R=OPT["rep"]; k=R.bit_length()-1
    return [f"s_mul_i32 s4, s{M1}, 43691\ns_lshr_b32 s4, s4, 16\ns_mul_i32 s5, s{M1}, 21846\ns_lshr_b32 s5, s5, 16\ns_mul_i32 s5, s5, 3\ns_sub_u32 s5, s{M1}, s5",
            f"s_lshl2_add_u32 s4, s{KQ}, s4\ns_lshl_b32 s4, s4, {7+k}\ns_mul_i32 s7, s{KQ}, 9\ns_sub_u32 s7, s{N1}, s7\ns_lshl3_add_u32 s4, s7, s4\ns_add_u32 s4, s4, {FLAG2}",
            f"s_cmp_eq_u32 s5, 1\ns_cselect_b32 s7, {2*R}, {R}", f"s_cmp_lg_u32 s5, 0\ns_cselect_b32 s5, 4, 0",
            f"v_lshlrev_b32 v{v}, 7, v0\nv_add_u32 v{v}, s4, v{v}\nv_cmp_gt_u32 vcc, {R}, v0\nv_mov_b32 v24, s5\nv_cndmask_b32 v24, 0, v24, vcc\nv_add_u32 v{v}, v{v}, v24",
            f"v_cmp_gt_u32 vcc, s7, v0\nv_mov_b32 v24, {OOB}\nv_cndmask_b32 v{v}, v24, v{v}, vcc"]
def poll2_addr(v=PV):
    if OPT["rep"]:
        R=OPT["rep"]; k=R.bit_length()-1; assert atom("p2") and OPT["pw0"]==1
        L=[MP.format(4)+f"\ns_lshl2_add_u32 s4, s{KQ}, s4\ns_lshl_b32 s4, s4, {k}"]
        if R>1: L+=[f"s_lshr_b32 s5, s2, 4\ns_and_b32 s5, s5, {R-2}\ns_add_u32 s4, s4, s5\ns_and_b32 s5, s2, 1\ns_add_u32 s4, s4, s5"]
        return L+[f"s_lshl_b32 s4, s4, 7\ns_add_u32 s4, s4, {FLAG2}\nv_lshl_add_u32 v{v}, v2, 2, s4",
                  f"s_cmp_eq_u32 s3, 0\ns_cselect_b32 s4, 18, 0\nv_cmp_gt_u32 vcc, s4, v2\nv_mov_b32 v13, {OOB}\nv_cndmask_b32 v{v}, v13, v{v}, vcc\nv_mov_b32 v13, s{NONCE}\nv_cndmask_b32 v13, 0, v13, vcc"]
    L=poll_addr(f"s_mul_i32 s4, s{KQ}, 54\n"+MP.format(5)+"\ns_mul_i32 s5, s5, 3\ns_lshr_b32 s5, s5, 1\ns_add_u32 s4, s4, s5",18,FLAG2,v)
    L=L[:1]+[f"v_lshrrev_b32 v{v+1}, 1, v{v}", f"v_lshl_add_u32 v{v}, v{v+1}, 2, v{v}"]+L[1:]
    if atom("p2"):
        assert OPT["pw0"]
        L+=[(f"s_cmp_eq_u32 s3, 0\ns_cselect_b32 s4, 18, 0" if OPT["pw0"]==1 else "s_mov_b32 s4, 18")+f"\nv_cmp_gt_u32 vcc, s4, v2\nv_mov_b32 v13, {OOB}\nv_cndmask_b32 v{v}, v13, v{v}, vcc\nv_mov_b32 v13, s{NONCE}\nv_cndmask_b32 v13, 0, v13, vcc"]
    elif OPT["pw0"]==1: L+=[f"s_cmp_eq_u32 s3, 0\ns_cselect_b32 s83, s{NONCE}, 0\ns_cselect_b32 s4, 0, {OOB}\nv_add_u32 v{v}, s4, v{v}"]
    return L

def warm(name):
    if not OPT["iw"]: return []
    return [f"s_mov_b64 exec, 0\ns_call_b64 s[82:83], L_wc_{name}\ns_mov_b64 exec, -1"]

KR,VR,TR=60,82,98
KL=HR; VL=HR+12672; KLX=8192
def p0(a):
    a(f".globl {KN}\n.p2align 8\n.type {KN},@function\n{KN}:")
    a("s_cmp_lt_u32 s2, 256\ns_cbranch_scc0 L_exit")
    a("s_load_dwordx2 s[56:57], s[0:1], 0\ns_load_dwordx2 s[48:49], s[0:1], 8\ns_load_dwordx2 s[52:53], s[0:1], 16\ns_load_dwordx2 s[60:61], s[0:1], 24")
    a("s_load_dwordx16 s[16:31], s[0:1], 0\ns_load_dwordx8 s[32:39], s[0:1], 64\ns_load_dwordx4 s[40:43], s[0:1], 96\ns_memrealtime s[12:13]")
    a("v_lshrrev_b32 v1, 6, v0\nv_and_b32 v2, 63, v0")
    nl=OPT["cpl"]; red=OPT["cpr"]
    a(f"s_getpc_b64 s[6:7]\nL_pc:\ns_lshr_b32 s4, s2, 1\ns_and_b32 s4, s4, {(128>>red)-4}\nv_add_u32 v22, s4, v1\nv_lshl_add_u32 v22, v2, {7-red}, v22\nv_lshlrev_b32 v22, 7, v22")
    a(f"v_min_u32 v22, L_end-L_pc-4, v22\ns_mov_b64 exec, {(1<<nl)-1}\nglobal_load_dword v255, v22, s[6:7] ; @code\ns_mov_b64 exec, -1\nv_readfirstlane_b32 s3, v1")
    if OPT["rgm"]: a(f"s_and_b32 s4, s2, 7\ns_lshr_b32 s5, s2, 3\ns_lshl_b32 s4, s4, 5\ns_add_u32 s{NONCE}, s4, s5")
    else: a(f"s_mov_b32 s{NONCE}, s2")
    a(f"v_lshrrev_b32 v3, 5, v0\nv_and_b32 v4, 31, v0\nv_mul_u32_u24 v5, 1152, v3\nv_mad_u32_u24 v5, v4, 12, v5\ns_mul_i32 s15, s{NONCE}, 9216")
    a(f"s_mul_i32 s4, s3, 3072\ns_add_u32 s5, s4, s15\ns_sub_u32 s5, s5, 3456\nv_lshlrev_b32 v6, 4, v2\nv_add_u32 v7, s5, v6\nv_add_u32 v58, 1024, v7")
    a(f"s_add_u32 s4, s4, {KL}\ns_lshl_b32 s5, s3, 11\ns_add_u32 s11, s5, s15\ns_add_u32 s5, s5, {VL}\ns_cmp_lt_u32 s2, 216\ns_cselect_b32 s9, 0, {KL-KLX}\ns_sub_u32 s4, s4, s9\ns_sub_u32 s5, s5, s9\ns_mov_b32 m0, s4")
    for r,nb in ((56,NB_SD),(48,NB_SD),(52,NB_SD),(60,576*8)): a(f"s_mov_b32 s{r+2}, {nb}\ns_mov_b32 s{r+3}, 0x20000")
    a("v_lshlrev_b32 v59, 3, v0\ns_movk_i32 s10, 4096\nv_lshlrev_b32 v91, 3, v2\nv_or_b32 v22, s2, v0\nv_lshlrev_b32 v22, 8, v22\ns_mov_b32 s66, 256\ns_mov_b32 s67, 0x20000")
    a("s_waitcnt lgkmcnt(0)")
    stamp(a,1,"P")
    for j in range(3): a(f"buffer_load_dwordx3 v[{8+4*j}:{10+4*j}], v5, {RA}, s15 offen offset:{384*j} ; @x")
    pub=f"s_or_b32 s12, s12, 1\nv_mov_b32 v23, s12\nbuffer_store_dword v23, v22, {RC}, 0 offen sc1 ; @pub"
    if OPT["pub0"]: a("s_mov_b32 s64, s40\ns_and_b32 s65, s41, 0xffff\n"+pub)
    a("buffer_load_dwordx4 v7, s[48:51], 0 offen lds ; @kv\ns_add_u32 m0, s4, 1024\ns_cmp_eq_u32 s3, 3")
    a("buffer_load_dwordx4 v58, s[48:51], 0 offen lds ; @kv\nbuffer_load_dwordx4 v58, s[48:51], 0 offen offset:1024 lds ; @kv\ns_cbranch_scc1 L_xld\nL_nox:\ns_mov_b32 m0, s5")
    COLD.insert(0,"L_xld:\ns_mov_b64 exec, 0xffffff\nbuffer_load_dwordx4 v58, s[48:51], 0 offen offset:2048 lds\ns_mov_b64 exec, -1\ns_mov_b32 m0, s5\nbuffer_load_dwordx4 v6, s[52:55], s11 offen offset:2048 lds\ns_branch L_nox")
    a(f"buffer_load_dwordx2 {P(TR)}, v59, {RB_}, 0 offen ; @kv")
    a("buffer_load_dwordx4 v6, s[52:55], s11 offen lds ; @kv\nbuffer_load_dwordx4 v6, s[52:55], s11 offen offset:1024 lds ; @kv")
    a(f"buffer_load_dwordx2 {P(TR+2)}, v59, {RB_}, 0 offen offset:2048 ; @kv\nbuffer_load_dwordx2 {P(TR+4)}, v{91 if OPT['k8'] else 59}, {RB_}, s10 offen ; @kv")
    if OPT["stamps"]: a("v_writelane_b32 v254, s12, 0")
    if not OPT["pub0"]: a("s_mov_b32 s64, s40\ns_and_b32 s65, s41, 0xffff\n"+pub)
    stamp(a,2,"P")
    if OPT["wso"]: a(f"s_add_u32 s{S_WS}, s{S_WS}, {OPT['wso']<<20}\ns_addc_u32 s{S_WS+1}, s{S_WS+1}, 0"); assert (OPT["wso"]<<20)+WS_END<=256<<20
    srd(a,44,S_WS,WS_END)
    a("s_and_b32 s5, s2, 7\ns_lshr_b32 s6, s2, 3")
    a("s_lshr_b32 s7, s6, 2\ns_lshr_b32 s8, s3, 1\ns_lshl1_add_u32 s9, s7, s8\ns_cmp_ge_u32 s9, 10\ns_addc_u32 s14, s9, 0\ns_cmp_ge_u32 s9, 3\ns_addc_u32 s14, s14, 0")
    a(f"s_lshl3_add_u32 s8, s8, 3\ns_cmp_eq_u32 s7, 7\ns_cselect_b32 s14, s8, s14\ns_and_b32 s4, s5, 1\ns_lshl4_add_u32 s{N2}, s4, s14")
    a(f"s_lshr_b32 s13, s5, 1\ns_mov_b32 s{KQ}, s13\ns_and_b32 s{K2+17}, s6, 3\ns_lshl_b32 s{LW}, s3, 12")
    srd(a,52,S_W2,4608*4096)
    if OPT["smove"]<2: a.extend(k2table())
    a("s_cmp_lt_u32 s6, 27\ns_cbranch_scc0 L_aux")
    if OPT["iw"]==1: a("s_branch L_org\nL_exit:\ns_endpgm\n.p2align 12\nL_org:")
    else: COLD.append("L_exit:\ns_endpgm")

def phaseA(a, tag, fill_ln, fill_kv, fill_post):
    X,T,M,RS,D=20,38,56,18,8
    L=flat([unpack(X+2*j,8+4*(j//3)+j%3) for j in range(9)])+ln_fused(X,T,M,RS,D,106)
    AW,AS,AH,AK,AO,AV,AZ,AK2,AV2=48,49,50,51,52,53,54,55,90; hf=OPT["hf"]; assert hf and atom("p1")
    a(f"s_mov_b32 s9, {LN_ST}\ns_mov_b32 s11, {KL if tag=='G' else KLX}")
    a(f"v_mul_u32_u24 v{AW}, {LN_STR}, v3\nv_mad_u32_u24 v{AW}, v4, 12, v{AW}\nv_add_u32 v{AW}, s9, v{AW}\nv_mov_b32 v47, {OOB}")
    a(f"v_lshlrev_b32 v3, 3, v3\ns_lshl_b32 s5, s{NONCE}, 6\ns_add_u32 s5, s5, {WS_STATS}\nv_cmp_eq_u32 vcc, 0, v4\nv_cndmask_b32 v{AS}, v47, v3, vcc")
    a(f"v_lshrrev_b32 v5, 4, v0\nv_and_b32 v4, 3, v2\nv_lshlrev_b32 v4, 3, v4\nv_lshl_add_u32 v5, v5, 5, v4\nv_bfe_u32 v6, v2, 2, 2\nv_mul_u32_u24 v4, {LN_STR}, v6\nv_mul_u32_u24 v6, 1152, v6")
    a(f"v_add3_u32 v{AH}, v4, v5, s9\nv_add3_u32 v{AK}, v6, v5, s11\ns_mul_i32 s4, s3, {2304-128}\nv_add_u32 v{AK2}, s4, v{AK}")
    a(f"v_lshlrev_b32 v{AO}, 4, v0\ns_add_u32 s7, s15, 4096\ns_add_u32 s8, s15, 8192\ns_cmp_eq_u32 s3, 0\ns_cselect_b32 s8, s8, {OOB}\nv_add_u32 v{AV}, {WS_KVT}, v{AO}\nv_mov_b32 v{AZ}, 0")
    a(f"s_mul_i32 s4, s3, 1028\ns_sub_u32 s4, {8192+12}, s4\nv_add_u32 v{AV2}, s4, v{AV}")
    a(f"s_bfe_u32 s6, s{NONCE}, 0x20001\ns_lshl_b32 s6, s6, 6\ns_lshr_b32 s9, s{NONCE}, 3\ns_lshl1_add_u32 s6, s9, s6\ns_and_b32 s9, s{NONCE}, 1\ns_add_u32 s6, s6, s9")
    a(f"s_lshl_b32 s4, s6, 2\ns_add_u32 s4, s4, {FLAG1}\nv_lshl_add_u32 v1, v0, 10, s4\ns_lshl_b32 s4, s{NONCE}, 2\ns_add_u32 s4, s4, {FLAGK}\nv_lshl_add_u32 v46, v0, 10, s4")
    a(f"v_cmp_gt_u32 vcc, {OPT['rep1']}, v0\nv_cndmask_b32 v1, v47, v1, vcc\nv_cmp_gt_u32 vcc, {OPT['repk']}, v0\nv_cndmask_b32 v46, v47, v46, vcc")
    stamp(a,3,"P")
    if OPT.get("fine")=="P":
        a("s_waitcnt vmcnt(12)"); stamp(a,4,"P")
        a("s_waitcnt vmcnt(9)"); stamp(a,5,"P")
        a("s_waitcnt vmcnt(6)"); stamp(a,6,"P")
        a("s_waitcnt vmcnt(4)"); stamp(a,7,"P")
        a("s_waitcnt vmcnt(1)"); stamp(a,8,"P")
        a("s_waitcnt vmcnt(0)"); stamp(a,9,"P")
    a("@W x"); stamp(a,1)
    a.extend(interleave(L,fill_ln,0,len(L)-4) if fill_ln else L)
    for j in range(9): a(f"ds_write_b32 v{AW}, v{D+j} offset:{384*(j//3)+4*(j%3)}")
    a(f"buffer_store_dwordx2 v[106:107], v{AS}, {WS}, s5 offen sc1 ; @st")
    a("@W - 0\ns_barrier")
    hrd=[[f"ds_read_b64_tr_b16 {P(20+4*i)}, v{AH} offset:{512*i} ; @ht{i}", f"ds_read_b64_tr_b16 {P(22+4*i)}, v{AH} offset:{512*i+4*LN_STR} ; @ht{i}"] for i in range(3)]
    so=("s15","s7","s8")
    hst=[f"@W - ht{i}\nbuffer_store_dwordx4 {Q(20+4*i)}, v{AO}, {WS}, {so[i]} offen sc1 ; @st" for i in range(3)]
    krd=[[f"ds_read_b64_tr_b16 {P(KR+10*i+2*q)}, v{AK} offset:{512*i+1152*(0,4,8,11,15)[q]} ; @kr{i}" for q in range(5)] for i in range(3)]
    k8=OPT["k8"]
    if k8: krd[2]=[f"ds_read_b64_tr_b16 {P(KR+20+2*q)}, v{AK2} offset:{1024+1152*(0,4,11)[q]} ; @kr2" for q in range(3)]
    nonce=f"buffer_load_dword v45, v{AZ}, {RC}, 0 offen sc1 ; @nonce"
    a.extend(flat(hrd)+hst+[nonce]); stamp(a,2)
    a("@W kv\ns_barrier"); a.extend(krd[0]+krd[1])
    def kvc(i):
        K=KR+10*i; V_=K+6; J=108; T=114; RE=116+8*(i&1); VU=132; O=160+4*i
        L=[f"v_alignbit_b32 v{T}, v{TR+2*i+1}, v{TR+2*i+1}, 16", f"v_alignbit_b32 v{T+1}, v{TR+2*i}, v{TR+2*i}, 16", f"@W - kr{i}"]
        if i==2 and k8:
            L+=[f"v_alignbit_b32 v{J+m}, v{K+m+1}, v{K+m}, 16" for m in range(2)]+[f"v_dot2_f32_bf16 v{RE+r}, v{(K,J)[r]}, v{T}, 0" for r in range(2)]+unpack(VU,K+4)
            L+=[f"v_dot2_f32_bf16 v{RE+r}, v{(K,J)[r]+1}, v{T+1}, v{RE+r}" for r in range(2)]+[f"v_pk_mul_f32 {P(RE)}, {P(RE)}, {P(VU)}", f"v_cvt_pk_bf16_f32 v{O}, v{RE+1}, v{RE}"]
            return L+[f"buffer_store_dword v{O}, v{AV2}, {WS}, s15 offen sc1 ; @stk"]
        L+=[f"v_alignbit_b32 v{J+m}, v{K+m+1}, v{K+m}, 16" for m in range(5)]
        L+=[f"v_dot2_f32_bf16 v{RE+r}, v{(J if r&1 else K)+(r>>1)}, v{T}, 0" for r in range(8)]
        L+=[f"v_dot2_f32_bf16 v{RE+r}, v{(J if r&1 else K)+(r>>1)+1}, v{T+1}, v{RE+r}" for r in range(8)]
        L+=flat([unpack(VU+2*m,V_+m) for m in range(4)])
        L+=[f"v_pk_mul_f32 {P(RE+2*m)}, {P(RE+2*m)}, {P(VU+2*m)}" for m in range(4)]
        L+=[f"v_cvt_pk_bf16_f32 v{O+p}, v{RE+7-2*p}, v{RE+6-2*p}" for p in range(4)]
        return L+[f"buffer_store_dwordx4 {Q(O)}, v{AV}, {WS}, {so[i]} offen sc1 ; @stk"]
    c0=kvc(0)
    pub=f"@W nonce\nv_readfirstlane_b32 s{NONCE}, v45\ns_cmp_eq_u32 s{NONCE}, 0\ns_cbranch_scc1 L_nw_{tag}\nL_ng_{tag}:\ns_barrier\nv_mov_b32 v3, s{NONCE}\nbuffer_store_dword v3, v1, {WS}, 0 offen sc1 ; @fl"
    L=c0[:8]+interleave(c0[8:],krd[2],0,24)+(kvc(2)+kvc(1) if k8==2 else kvc(1)+kvc(2))
    a.extend(interleave(L,fill_kv,10,OPT['kvend']) if fill_kv else L)
    stamp(a,3)
    k=OPT["npre"]; a.extend(fill_post[:k]); a(pub); stamp(a,15)
    a.extend(fill_post[k:])
    a(f"@W stk\ns_barrier\nbuffer_store_dword v3, v46, {WS}, 0 offen sc1 ; @fl")
    COLD.append(f"L_nw_{tag}:\ns_mov_b32 s5, 0\nL_nl_{tag}:\nbuffer_load_dword v45, v{AZ}, {RC}, 0 offen sc1\ns_waitcnt vmcnt(0)\nv_readfirstlane_b32 s{NONCE}, v45\n"
                f"s_cmp_lg_u32 s{NONCE}, 0\ns_cbranch_scc1 L_ng_{tag}\ns_add_u32 s5, s5, 1\ns_cmp_lt_u32 s5, {OPT['spinmax']}\ns_cbranch_scc1 L_nl_{tag}\ns_branch L_ng_{tag}")
    stamp(a,4)

def w2steps(S, n_issue, n_drain, pick):
    steps=[]; R=S["R"]
    def issue():
        t=S["issue"]; s=pick(t,S["free"]) if t<n_issue else None
        if s is None: return []
        S["free"].remove(s); S["slot"][t]=s; S["issue"]+=1
        return w2dma(t,s)
    while True:
        d=issue()
        if not d: break
        steps.append(d)
    prev=None
    while S["drain"]<n_drain:
        t=S["drain"]; S["drain"]+=1; dm=[]
        st=[f"@W w2_{t} "+(f"r2_{prev}" if prev is not None else "-")+"\ns_barrier"]
        if prev is not None: S["free"].append(S["slot"].pop(prev)); dm=issue()
        steps.append(st+interleave(R.reads(t,S["slot"][t]),dm)); prev=t
    if prev is not None:
        S["free"].append(S["slot"].pop(prev)); steps.append([f"@W - r2_{prev}\ns_barrier"]+issue())
    while S["issue"]<n_issue:
        d=issue(); assert d; steps.append(d)
    return steps

def roleG(a):
    a(f"s_mul_i32 s7, s6, 21846\ns_lshr_b32 s7, s7, 16\ns_mul_i32 s8, s7, 3\ns_sub_u32 s12, s6, s8\ns_mul_i32 s8, s13, 9\ns_add_u32 s{N1}, s8, s7\ns_lshl1_add_u32 s{M1}, s12, s4")
    a(f"s_mul_i32 s8, s{N1}, 6\ns_add_u32 s{TID}, s8, s{M1}")
    srd(a,48,S_W1,2048*4608*2)
    if OPT["hrot"]: a("s_add_u32 s12, s12, s7\ns_mul_i32 s8, s12, 21846\ns_lshr_b32 s8, s8, 16\ns_mul_i32 s8, s8, 3\ns_sub_u32 s12, s12, s8")
    KT=list(range(18,28))+list(range(76,82)); b=0
    a(f"s_mul_i32 s4, s4, {16*73728}")
    for W in [int(x) for x in str(OPT["w1w"]).split("_")]:
        a(f"s_mul_i32 s7, s12, {W*21846}\ns_lshr_b32 s7, s7, 16\ns_mul_i32 s7, s7, 73728\ns_add_u32 s5, s4, {b*73728}\ns_add_u32 s{KT[b]}, s7, s5\ns_add_u32 s8, s5, {W*73728}")
        for i in range(b+1,b+W): a(f"s_add_u32 s{KT[i]}, s{KT[i-1]}, 73728\ns_cmp_eq_u32 s{KT[i]}, s8\ns_cselect_b32 s{KT[i]}, s5, s{KT[i]}")
        b+=W
    assert b==16
    NW1=16
    a("v_lshrrev_b32 v24, 4, v2\nv_and_b32 v25, 15, v2\nv_lshlrev_b32 v26, 1, v24\nv_xor_b32 v25, v25, v26\nv_mul_u32_u24 v24, 9216, v24\nv_lshl_add_u32 v24, v25, 4, v24")
    a(f"s_mul_i32 s7, s3, {16*9216}\ns_lshl_b32 s8, s{N1}, 8\ns_add_u32 s7, s7, s8\nv_add_u32 v{VW1}, s7, v24\nv_add_u32 v{VW1+1}, {36864-1024}, v{VW1}")
    a(f"v_xor_b32 v24, 128, v{VW1}\nv_add_u32 v{VW1+2}, {2*(36864-1024)}, v24\nv_add_u32 v{VW1+3}, {36864-1024}, v{VW1+2}")
    def w1dma(q,slot):
        L=[f"s_add_u32 m0, s{LW}, {slot*SLOT}\ns_lshl_b32 s14, s{KT[q]}, 3"]
        return L+[f"buffer_load_dwordx4 v{VW1+r}, {RW1}, s14 offen offset:{1024*r} lds ; @w1_{q}" for r in range(4)]
    def w1reads(q,slot):
        L=[]
        for ks in range(2):
            for ft in range(2):
                for hf in range(2):
                    r0=16*(q&15)+8*ks+4*ft+2*hf
                    L.append(f"ds_read_b64_tr_b16 a[{r0}:{r0+1}], v{RW1B+2*(slot>>2)+ft} offset:{(slot&3)*SLOT+ks*8192+hf*1024} ; @r1_{q}")
        return L
    rb=["v_bfe_u32 v140, v2, 2, 2","v_lshrrev_b32 v141, 4, v2","v_lshl_add_u32 v142, v141, 3, v140","v_lshlrev_b32 v142, 8, v142","v_and_b32 v143, 3, v2","v_lshl_add_u32 v142, v143, 3, v142",
        "v_and_b32 v141, 1, v141","v_lshl_add_u32 v140, v141, 2, v140","s_lshl_b32 s7, s3, 1","v_xor_b32 v140, s7, v140",f"v_lshl_add_u32 v{RW1B}, v140, 5, v142",f"v_xor_b32 v{RW1B+1}, 32, v{RW1B}",
        f"v_add_u32 v{RW1B+2}, 0x10000, v{RW1B}",f"v_add_u32 v{RW1B+3}, 0x10000, v{RW1B+1}"]
    UA=240; BU=128; ACCF=192; XA=246; RH2=250
    NH=OPT['nh']; NWB=(163840-NH*HS)//SLOT; HB=NWB*SLOT
    rb.append(f"v_and_b32 v24, 15, v2\nv_lshrrev_b32 v25, 4, v2\nv_mul_u32_u24 v26, {U2_PL}, v25\nv_lshl_add_u32 v26, v24, 4, v26")
    rb.append(f"v_mul_u32_u24 v25, 1536, v25\nv_lshl_add_u32 v25, v24, 4, v25\nv_add_u32 v{RH}, {HB}, v25\nv_add_u32 v{RH2}, {3*HS}, v{RH}")
    rb.append(f"s_mul_i32 s7, s3, 18432\ns_xor_b32 s8, s{M1}, 1\ns_mul_i32 s8, s8, 1536\ns_add_u32 s7, s7, s8\nv_lshlrev_b32 v{XA}, 4, v2\nv_add_u32 v{VH}, s7, v{XA}")
    rb.append(f"v_lshrrev_b32 v25, 5, v2\nv_mul_u32_u24 v25, {9216-1536}, v25\nv_add_u32 v{VH+1}, v{VH}, v25\nv_add_u32 v{VH+2}, {9216-1536}, v{VH}\ns_mul_i32 s{LH}, s3, 3072\ns_add_u32 s{LH}, s{LH}, {HB}")
    uset=[f"s_mul_i32 s7, s{M1}, 6\ns_add_u32 s7, s7, {dt}\ns_mul_i32 s8, s7, 7282\ns_lshr_b32 s8, s8, 16\ns_mul_i32 s5, s8, 9\ns_sub_u32 s7, s7, s5\ns_lshl_b32 s7, s7, 2\n"
          f"s_mov_b32 s4, 0xeca86420\ns_mov_b32 s5, 3\ns_lshr_b64 s[4:5], s[4:5], s7\ns_and_b32 s4, s4, 15\ns_lshl4_add_u32 s4, s8, s4\nv_lshl_add_u32 v{UA+dt}, s4, 8, v{UA+5}" for dt in range(6)]
    rb.append(f"v_mov_b32 v{UA+5}, v26")
    if not OPT["rbl"]: a.extend(rb); rb=[]
    first=[]
    slot={q:s_ for q,s_ in enumerate(list(range(NWB,7))+list(range(NWB)))}
    for q in range(7):
        d=w1dma(q,slot[q]); first+=[d[0]+"\n"+d[1]]+d[2:]
    nln,nkv,npost=OPT["nln"],OPT["nkv"],OPT["npost"]
    phaseA(a,"G",first[:nln],first[nln:nln+nkv],first[nln+nkv:nln+nkv+npost]+(warm("G") if OPT["wg"]==0 else [])+(warm("D") if OPT["wd"]==1 else []))
    if OPT["iw"]==2: a("s_branch L_org\n.p2align 12\nL_org:")
    a("L_segG:")
    n0=OPT["n0"]
    a.extend(first[nln+nkv+npost:4*n0 if n0 else 28]); assert not n0 or nln+nkv+npost<=4*n0
    a.extend(rb)
    if OPT["wg"]==1: a.extend(warm("G"))
    if OPT["wd"]==2: a.extend(warm("D"))
    srd(a,56,S_B1,4608*2); srd(a,60,S_B2,4096)
    p1=poll_addr(f"s_and_b32 s4, s{M1}, 1\ns_lshl1_add_u32 s4, s3, s4\ns_lshl_b32 s4, s4, 5",32,FLAG1)
    if atom("p1"):
        assert OPT["hf"]; R1=OPT["rep1"]
        p1=[f"s_and_b32 s4, s{M1}, 1\ns_lshl1_add_u32 s4, s3, s4\ns_lshl_b32 s4, s4, 7\ns_bfe_u32 s5, s2, 0x10003\ns_lshl1_add_u32 s5, s{KQ}, s5\ns_lshr_b32 s5, s5, {3-(R1.bit_length()-1)}"]
        p1+=[f"s_lshl_b32 s5, s5, 10\ns_add_u32 s4, s4, s5\ns_add_u32 s4, s4, {FLAG1}", f"v_lshl_add_u32 v{PV}, v2, 2, s4", "v_cmp_gt_u32 vcc, 32, v2", f"v_mov_b32 v12, {OOB}", f"v_cndmask_b32 v{PV}, v12, v{PV}, vcc", f"v_mov_b32 v12, s{NONCE}\nv_cndmask_b32 v12, 0, v12, vcc"]
    setup=p1+[f"v_lshrrev_b32 v24, 4, v2\nv_lshlrev_b32 v25, 3, v24\ns_lshl_b32 s7, s{N1}, 8\ns_lshl_b32 s8, s3, 6\ns_add_u32 s7, s7, s8\n"
           f"buffer_load_dwordx2 {P(BIAS)}, v25, {RA}, s7 offen ; @bias\nbuffer_load_dwordx2 {P(BIAS+2)}, v25, {RA}, s7 offen offset:32 ; @bias"]+eprep()+w2setup()
    moved=[]
    if OPT["smove"]: moved=setup[8:]; setup=setup[:8]
    nA=OPT["nA"]; nd=max(2,nA-NWB+1)
    per=max(7,(len(setup)+nd-2)//(nd-1))
    assert nd-OPT["lead1"]>=1 and per*(nd-OPT["lead1"])>=7
    nq=7; freeq=[]
    if n0:
        nA,nd=n0,OPT["nd0"]; a.extend(setup); freeq=[(slot[q],-1) for q in range(n0,7)]; del first[4*n0:]
        if OPT["pp"]==0: a(poll_issue("p1G"))
        a("@W w1_1\ns_barrier"); a.extend(w1reads(0,slot[0])+w1reads(1,slot[1]))
        if OPT["pp"]==1: a(poll_issue("p1G"))
        for d in range(2,nd):
            a(f"@W w1_{d}\ns_barrier"); a.extend(w1reads(d,slot[d])); freeq.append((slot[d],-1))
            if OPT["pp"]==d: a(poll_issue("p1G"))
        a("@W - 0\ns_barrier"); assert nd<=n0 and OPT["pp"]<nd
        for _ in range(OPT["nrf"]):
            slot[nA]=freeq.pop(0)[0]; d=w1dma(nA,slot[nA]); first+=d; first[-5:]=[d[0]+"\n"+d[1]]+d[2:]; nA+=1
    for d in range(0 if not n0 else nd,nd):
        if d%2==0: stamp(a,1+d//2,"A")
        if d==nd-OPT["lead1"]: a(poll_issue("p1G"))
        a(f"@W w1_{d} 0\ns_barrier")
        dm=[]
        if freeq and nq<nA: slot[nq]=freeq.pop(0)[0]; dm=w1dma(nq,slot[nq]); nq+=1
        a.extend(interleave(w1reads(d,slot[d]),dm)); a.extend(setup[d*per:(d+1)*per])
        if slot[d]<NWB: freeq.append((slot[d],-1))
    assert n0 or (nq==nA and nd>7-NWB)
    if OPT["lead1"]==0 and not n0: a(poll_issue("p1G"))
    stamp(a,5)
    a(poll_check("p1G"))
    stamp(a,6); stamp(a,1,"B")
    R=W2R()
    stg=OPT["stg"]; seq=[divmod(j,2) for j in range(64)]
    seq[32-2*stg:32]=[(p,g_) for g_ in range(2) for p in range(16-stg,16)]
    juse=lambda p,f: f(j for j in range(64) if seq[j][0]==p)
    need={p:(juse(p,min)-2)//2 for p in range(1,32)}; avail={p:juse(p-NH,max)//2 for p in range(NH,32)}
    issued_at={q:-9 for q in range(nA)}
    nxt_issue,nxt_drain,acc=nA,nd,OPT.get("acc0",50)
    ep_dma={};ep_rd={};ep_wait={};ep_h={}
    bl=[[int(y) for y in x.split(".")] for x in str(OPT["bursts"]).split("_") if "." in x]
    bursts={x[0]:x[1] for x in bl}; bnn={x[0]:(x[2] if len(x)>2 else OPT["bn"]) for x in bl}
    bq={x[0]:(x[3] if len(x)>3 else OPT["quiet"]) for x in bl}
    quiet=-1; qfrom=-1; nh=OPT['h0']; lim=NW1+OPT['maxb']
    def issue(e):
        nonlocal nxt_issue
        s=freeq.pop(0)[0]; t=nxt_issue; slot[t]=s; issued_at[t]=e; nxt_issue+=1
        ep_dma.setdefault(e,[]).extend(w1dma(t,s) if t<NW1 else w2dma(t-NW1,s))
    for e in range(0,31):
        t=nxt_drain
        if t in issued_at and issued_at[t]+OPT["lat"]+(OPT["quiet"] if (t in bursts or t-1 in bursts) else 0)<=e and (t<NW1 or t<e):
            ep_rd[e]=w1reads(t,slot[t]) if t<NW1 else R.reads(t-NW1,slot[t])
            ep_wait[e]=f"w1_{t}" if t<NW1 else f"w2_{t-NW1}"
            assert t>=NW1 or 2*e+2<juse(t,min), (t,e)
            freeq.append((slot[t],e+2)); nxt_drain+=1
        if qfrom<e<=quiet: continue
        k=len([p for p in (nh,nh+1) if p<32 and avail.get(p,-1)<=e and (p==nh or avail.get(nh,-1)<=e)])
        ep_h[e]=list(range(nh,nh+k)); nh+=k
        assert all(need[p]>=e+2 for p in ep_h[e]), (e,ep_h[e])
        if (k==2 and e>=OPT["e01"]) or e<=quiet: continue
        ok=len([1 for s_,f in freeq if f<=e])
        if nxt_issue in bursts:
            if e>=bursts[nxt_issue] and ok>=bnn[nxt_issue] and nxt_issue<lim:
                qn=bq[nxt_issue]
                for _ in range(bnn[nxt_issue]): issue(e)
                quiet=e+qn+OPT.get("qlag",0); qfrom=e+OPT.get("qlag",0); acc=100
            continue
        acc+=OPT["rate"] if nxt_issue<NW1 else OPT["rate2"]
        if acc>=100 and ok and nxt_issue<lim and not (OPT["q0"]<=e<OPT["q1"]):
            issue(e); acc-=100
            if e<OPT["e2x"] and ok>1 and nxt_issue<NW1: issue(e)
        acc=min(acc,150)
    assert nh==32
    assert nxt_drain>=NW1
    print(f"; B schedule: issue epochs {[issued_at[t] for t in range(nA,nxt_issue)]}; w2 issued {nxt_issue-NW1}, drained {nxt_drain-NW1}; h {''.join(str(len(ep_h.get(e,[]))) for e in range(31))}", file=sys.stderr)
    def hdma(p):
        L=[f"s_add_u32 m0, s{LH}, {(p%NH)*HS}"]
        if p==16: L=[f"s_and_b32 s13, s{M1}, 1\ns_mul_i32 s13, s13, 3072", "s_sub_u32 s13, s13, 1536"]+[f"v_add_u32 v{VH+r}, s13, v{VH+r}" for r in range(3)]+L
        return L+[f"buffer_load_dwordx4 v{VH+r}, {WS}, s{KT[p&15]} offen offset:{1024*r} sc1 lds ; @h{p}" for r in range(3)]
    def hreads(j):
        p,ks=seq[j]
        pos=[(3*ks+(i>>1),i&1) for i in range(6)]
        return [f"ds_read_b128 {Q(HF+24*(j&1)+4*i)}, v{RH if p%NH<3 else RH2} offset:{(p%NH%3 if p%NH<6 else p%NH-3)*HS+k*6144+dt*256} ; @H{j}" for i,(dt,k) in enumerate(pos)]
    S=dict(R=R, slot={t-NW1:slot[t] for t in range(nxt_drain,nxt_issue)}, free=list(range(NWB,10))+[s for s,_ in freeq], issue=nxt_issue-NW1, drain=nxt_drain-NW1)
    RS0=10-OPT["nsl"]
    def tile(ring):
        fr=[s for s in ((8,9,7,6,5) if ring else range(RS0)) if s in S["free"] and (s>=RS0)==ring]
        if not fr or S["issue"]>=OPT["nC"]: return []
        t=S["issue"]; S["issue"]+=1
        if not ring:
            if "ord" not in S:
                S["ord"]=list(range(t,OPT["nC"])); c=OPT["cfirst"]
                if c in S["ord"]: S["ord"].remove(c); S["ord"].insert(OPT["cpos"],c)
            t=S["ord"].pop(0)
        S["free"].remove(fr[0]); S["slot"][t]=fr[0]; return w2dma(t,fr[0])
    hq=[hdma(p) for p in range(OPT['h0'])]; wq=[first[4*q:4*q+4] for q in range(n0,nA)] if n0 else []
    for c in str(OPT["ord"]):
        q_=hq if c=="h" else wq
        if q_: a.extend(q_.pop(0))
    a.extend(flat(hq)+flat(wq))
    a("@W h0 0\ns_barrier")
    a.extend(hreads(0))
    xs=[f"s_xor_b32 s7, s{TID}, 1\ns_lshl2_add_u32 s7, s7, s3", f"s_mul_i32 s9, s7, 6144\ns_add_u32 s9, s9, {WS_XB}", f"s_lshl_b32 s7, s7, 7\ns_add_u32 s6, s7, {WS_F4}",
        f"s_lshl2_add_u32 s7, s{TID}, s3\ns_mul_i32 s10, s7, 6144", f"s_add_u32 s10, s10, {WS_XB}\ns_lshl_b32 s7, s7, 7", f"s_add_u32 s7, s7, {WS_F4}\nv_mov_b32 v{PV}, s7",
        f"v_add_u32 v{XA+1}, 3072, v{XA}", "v_cmp_eq_u32 vcc, 0, v2", f"v_mov_b32 v{XA+2}, {OOB}", f"v_cndmask_b32 v{XA+2}, v{XA+2}, 0, vcc", f"v_mov_b32 v{XA+3}, s{NONCE}"]
    if atom("p5"): xs+=[f"v_add_u32 v{PV}, v{PV}, v{XA+2}", f"v_cndmask_b32 v12, 0, v{XA+3}, vcc"]
    snd=[[f"v_cvt_pk_bf16_f32 v{ACCF+8*dt+k}, v{ACCF+8*dt+2*k}, v{ACCF+8*dt+2*k+1}" for k in range(4)]+[f"buffer_store_dwordx4 {Q(ACCF+8*dt)}, v{XA+dt//3}, {WS}, s9 offen offset:{1024*(dt%3)} sc1 ; @bs"] for dt in range(6)]
    RV=160
    rcv=[poll_check("p5")]+[f"buffer_load_dwordx4 {Q(RV+4*dt)}, v{XA+dt//3}, {WS}, s10 offen offset:{1024*(dt%3)} sc1 ; @bl" for dt in range(6)]
    EX={}
    early=lines(uset)+xs+["@W bias"]+flat([unpack(BU+2*q,BIAS+q) for q in range(4)])
    if OPT["smove"]: early=lines(moved)+(k2table() if OPT["smove"]>=2 else [])+early
    early+=lines((flag2_prep(17) if OPT["rep"] else flag_prep(TID,FLAG2,17))+poll2_addr(15)+dsetA()+dsetE()+(dsetB() if OPT["hoist"] else []))
    e0,ne=OPT["je0"],OPT["jen"]; CL={}
    nc=len(early)*OPT["cfrac"]//100; restl=early[nc:]; early=early[:nc]; nr_=29-e0-ne
    for k in range(nr_): EX[e0+ne+k]=restl[k*len(restl)//nr_:(k+1)*len(restl)//nr_]
    print("; early instrs",nc,len(restl),file=sys.stderr)
    wts=[1+OPT["ramp"]*(ne-1-k)/max(1,ne-1)/10 for k in range(ne)]; cs=[int(round(len(early)*sum(wts[:k])/sum(wts))) for k in range(ne+1)]
    for k in range(ne): (CL if OPT["clump"] else EX)[e0+k]=early[cs[k]:cs[k+1]]
    g2=OPT["g2b"]
    for dt,j in enumerate(str(OPT["bsj"]).split("_")): assert int(j)>max(x for x in range(32) if seq[x][1]==dt//3) ; EX[int(j)]=EX.get(int(j),[])+snd[dt]
    EX[OPT["jbf"]]=[f"@W bs\nbuffer_store_dword v{XA+3}, v{XA+2}, {WS}, s6 offen sc1 ; @bf"]
    EX[OPT["jbp"]]=poll_issue("p5").split("\n")
    EX[OPT["jbl"]]=(split_check(rcv[0]) if g2 else rcv[:1])+rcv[1:4]; EX[OPT["jbl"]+1]=rcv[4:]
    ju=OPT["jbu"]; assert ju==57
    EX[ju]=["@W bl"]; BC=[]
    for j in range(64):
        p,ks=seq[j]; e=(j-1)//2; half=(j-1)%2
        mf=[]
        for d in range(3):
            dt=3*ks+d
            for f in range(2):
                ft=f^(dt&1); acc_=Q((ACCF if j<32 else ACC1)+8*dt+4*ft)
                for n_,k in enumerate((1,0) if f else (0,1)):
                    mf.append(f"v_mfma_f32_16x16x32_bf16 {acc_}, {Q(16*(p&15)+8*k+4*ft,'a')}, {Q(HF+24*(j&1)+8*d+4*k)}, "+(acc_ if (n_ or p%16) else "0" if p==0 else Q(BU+4*ft)))
        g=(Gaps2 if g2 else Gaps)(mf)
        if j%8==0: stamp(a,2+j//8,"B")
        if j%4==0 and j<48: stamp(a,1+j//4,"B1")
        if j%4==0 and j>=16: stamp(a,1+(j-16)//4,"B2")
        g.before(0,f"@W - H{j}")
        ks=j&1
        if ks==1:
            tg=[f"h{x}" for x in need if need[x]==e][-1:]+([ep_wait[e]] if e in ep_wait else [])
            g.put([(f"@W {','.join(tg)}\n" if tg else "")+"s_barrier"],0,1)
        hh=ep_h.get(e,[])
        dm=(hdma(hh[0]) if hh else []) if ks==1 else (hdma(hh[1]) if len(hh)>1 else ep_dma.get(e,[]))
        if len(hh)>1 and e in ep_dma:
            allv=hdma(hh[0])+hdma(hh[1])+ep_dma[e]; dm=allv[:len(allv)//2] if ks==1 else allv[len(allv)//2:]
        if j==63:
            dm=flat([tile(True) for _ in range(OPT['n63'])])
        if j<63: g.put(hreads(j+1),1,7)
        if e in ep_rd:
            if g2: g.fit(flat([x.split("\n") for x in ep_rd[e][4*half:4*half+4]]),OPT["rd0"],12)
            else: g.put(ep_rd[e][4*half:4*half+4],7,11)
        if dm:
            if g2>1: g.fit([far(x,1) if (k and "m0," in dm[k-1]) else x for k,x in enumerate(dm)],ks,12,spread=0.3)
            else: g.put(dm,1 if ks==1 else 0,12)
        if j>ju:
            dt=3*(1-ks)+(j-58)//2; L_=[]
            for ft in range(2):
                q=2*dt+ft; A=ACC1+4*q; t=ACCF+4*ft
                L_+=unpack(t,RV+2*q)+unpack(t+2,RV+2*q+1)+[f"v_add_f32 v{A+r}, v{A+r}, v{t+r}" for r in range(4)]
            g.fit(L_,2,11)
        if EX.get(j): g.fit(EX[j],4 if j in (31,32,32-stg) else 0,12)
        if CL.get(j):
            c_=OPT["clump"]; n_=len(CL[j])
            for i in range(c_): g.g[(2*i+1)*12//(2*c_)]+=CL[j][i*n_//c_:(i+1)*n_//c_]
        if OPT.get("gnop") and OPT.get("gn0",0)<=j<OPT["gnop"]:
            for i in range(0,12,OPT.get("gns",3)): g.g[i].append("s_nop 7")
        if OPT.get("gcut") and j<OPT.get("gcj",64): g.mf=[m if (i%OPT["gcut"]) else "s_nop 0" for i,m in enumerate(g.mf)]
        if g2: BC.append(g.over())
        g.emit(a)
    if g2: print("; B cost/kstep"," ".join(f"{x:.0f}" for x in BC),file=sys.stderr)
    stamp(a,7); stamp(a,10,"B"); stamp(a,13,"B2")
    c=0.7978845608028654*2*1.4426950408889634
    BU=HF
    V=[f"v_mov_b32 v{BU+8}, {f2h(-c)}", f"s_mov_b32 s10, {f2h(-c*0.044715)}", f"s_lshl_b32 s9, s{N1}, 2\ns_add_u32 s9, s9, s3\ns_mul_i32 s9, s9, {U2_KS}\ns_add_u32 s9, s9, {WS_U2}"]
    for g in range(3):
        A=ACC1+16*g; T=GT; O=HF+16+8*g
        V+=[f"v_pk_mul_f32 {P(T+2*j)}, {P(A+2*j)}, {P(A+2*j)}" for j in range(8)]
        V+=[f"v_pk_fma_f32 {P(T+2*j)}, {P(T+2*j)}, s[10:11], {P(BU+8)} op_sel_hi:[1,0,0]" for j in range(8)]
        V+=[f"v_pk_mul_f32 {P(T+2*j)}, {P(T+2*j)}, {P(A+2*j)}" for j in range(8)]
        V+=[f"v_exp_f32 v{T+j}, v{T+j}" for j in range(16)]
        V+=[f"v_pk_add_f32 {P(T+2*j)}, {P(T+2*j)}, 1.0 op_sel_hi:[1,0]" for j in range(8)]
        V+=[f"v_rcp_f32 v{T+j}, v{T+j}" for j in range(16)]
        V+=[f"v_pk_mul_f32 {P(A+2*j)}, {P(A+2*j)}, {P(T+2*j)}" for j in range(8)]
        V+=[f"v_cvt_pk_bf16_f32 v{O+j}, v{A+2*j}, v{A+2*j+1}" for j in range(8)]
        V+=[f"buffer_store_dwordx4 {Q(O+4*h)}, v{UA+2*g+h}, {WS}, s9 offen sc1 ; @ust" for h in range(2)]
    a("@W - 0")
    fill=flat([tile(True) for _ in range(OPT["nin"])])
    a.extend(interleave(V,fill,0,len(V)-40) if fill else V)
    stamp(a,8)
    if OPT["wd"]==0: a.extend(warm("D"))
    old=sorted(S["slot"]); pe=OPT["pe"]; flag=f"buffer_store_dword v{XA+3}, v17, {WS}, 0 offen sc1 ; @fl"
    if OPT["cw"]: a(f"@W w2_{old[-1]}\ns_barrier")
    else:
        a("@W ust\ns_barrier\n"+flag); stamp(a,9)
        if pe==0: a(poll_issue("p2G"))
    stamp(a,1,"C")
    new=flat([tile(False) for _ in range(OPT["nc1"])])
    rd=flat([R.reads(t,S["slot"][t]) for t in old])
    a.extend(interleave(rd,new,len(rd)*OPT["c1s"]//100,len(rd)*OPT["c1e"]//100) if new else rd); stamp(a,2,"C")
    a.extend(kutable())
    if OPT["cw"]: a(f"@W ust r2_{old[-1]}\ns_barrier\n"+flag); stamp(a,9)
    else: a(f"@W - r2_{old[-1]}\ns_barrier")
    stamp(a,3,"C")
    for t in old: S["free"].append(S["slot"].pop(t))
    S["drain"]=old[-1]+1
    k=0
    while True:
        if pe==k+1: a(poll_issue("p2G"))
        d=tile(False)
        if not d: break
        a.extend(d); k+=1; stamp(a,3+k,"C")
    if pe>k+1: a(poll_issue("p2G"))
    assert S["issue"]==OPT["nC"]
    print("; C: drained",old,"resident",S["slot"], file=sys.stderr)
    stamp(a,13,"C")
    return S

CV_IMG=36864; CV_H0=2*CV_IMG; CV_COPY=4160; CV_BUF=2*CV_COPY
def roleX_A(a):
    if OPT["iw"]==1: a(".p2align 12")
    a("L_aux:")
    if OPT["smove"]>=2: a.extend(k2table())
    a(f"s_lshl2_add_u32 s7, s5, s6\ns_add_u32 s7, s7, 188\ns_add_u32 s8, s5, 248\ns_cmp_eq_u32 s6, 27\ns_cselect_b32 s{TID}, s8, s7")
    srd(a,48,S_SSM,576*4096)
    a(f"v_lshlrev_b32 v240, 4, v2\ns_mul_i32 s{LH}, s3, {2*CV_BUF}\ns_add_u32 s{LH}, s{LH}, {CV_H0}\ns_sub_u32 s{N1}, s{TID}, 216")
    a(f"s_lshl_b32 s{M1}, s{N1}, 4\ns_add_u32 s{M1}, s{M1}, s3\ns_lshl_b32 s12, s{M1}, 12\ns_lshl_b32 s{M1}, s{M1}, 1")
    d=cv_hdma(0); d=[d[0]+"\n"+d[1]]+d[2:]; k=OPT["cvs"]
    phaseA(a,"X",d[:k],[],d[k:]+warm("X"))
    a("L_segX:")
    if OPT["pfw"]:
        n=OPT["pfw"]; st=2 if n<=3 else 1; k=-(-n*64*18//(20*64)); srd(a,64,S_W1,2048*4608*2)
        a(f"s_lshr_b32 s4, s2, 3\ns_sub_u32 s4, s4, 27\ns_lshl2_add_u32 s4, s4, s3\ns_mul_i32 s4, s4, {64*k}\ns_and_b32 s7, s2, 1\ns_lshl_b32 s7, s7, 10\ns_add_u32 s7, s7, {64*OPT['pf0']}\ns_mul_i32 s7, s7, 9216\ns_mul_i32 s8, s{KQ}, 2304\ns_add_u32 s7, s7, s8")
        for i in range(k):
            a(f"v_add_u32 v24, s4, v2\nv_min_u32 v24, {n*64*18-1}, v24\nv_mul_u32_u24 v25, 3641, v24\nv_lshrrev_b32 v25, 16, v25\nv_mul_u32_u24 v31, 18, v25\nv_sub_u32 v24, v24, v31\ns_add_u32 s4, s4, 64")
            if st==2: a("v_and_b32 v31, 0xffc0, v25\nv_add_u32 v25, v25, v31")
            a(f"v_mul_u32_u24 v25, 9216, v25\nv_lshl_add_u32 v24, v24, 7, v25\nbuffer_load_dword v255, v24, {RC}, s7 offen ; @pf")
    a(f"s_cmp_lt_u32 s{TID}, 252\ns_cbranch_scc0 L_idle")
def xsetup():
    t=Asm(); srd(t,60,S_B2,4096)
    return warm("D")+[i.text for i in t.L]+eprep()+w2setup()+dsetA()+kutable()
def nX(): return OPT["nX"]
XS={}
def cv_hdma(c):
    L=[f"s_add_u32 m0, s{LH}, {(c&1)*CV_BUF+32}\ns_add_u32 s13, s12, {16384*c}"]
    return L+[f"buffer_load_dwordx4 v240, {RW1}, s13 offen offset:{1024*i} lds ; @hc{c}" for i in range(4)]
def conv(a):
    ACC=32; S0=64; T=192; U=208; BT=212
    VHD,BA,FX,EB,YO,DR,AB,BB,DV,VK=240,241,242,243,8,9,236,244,248,15
    R=W2R()
    srd(a,56,S_D,576*2)
    def dload(c): return f"v_mov_b32 v{DR}, {8*c}\nbuffer_load_ushort v{DR}, v{DR}, {RA}, s{M1} offen ; @hd{c}"
    a(dload(0))
    fold=OPT["fold"]
    def dbuild(): return [] if fold else [f"v_lshl_or_b32 v{DR}, v{DR}, 16, v{DR}"]+[f"v_and_b32 v{DV+k}, v{DR}, v{U+k}" for k in range(4)]
    if not fold:
        a(f"v_and_b32 v196, 15, v2\nv_lshrrev_b32 v197, 4, v2\nv_lshlrev_b32 v197, 3, v197\nv_add_u32 v196, v196, v197\nv_sub_u32 v196, 15, v196")
        a("v_and_b32 v197, 1, v196\nv_lshlrev_b32 v197, 4, v197\nv_mov_b32 v198, 0xffff\nv_lshlrev_b32 v197, v197, v198\nv_ashrrev_i32 v196, 1, v196")
        for k in range(4): a(f"v_cmp_eq_u32 vcc, {k}, v196\nv_cndmask_b32 v{U+k}, 0, v197, vcc")
    a.extend(poll1_addr())
    a(f"v_add_u32 v{BA}, s{LH}, v{VHD}\nv_cmp_eq_u32 vcc, 0, v2\nv_mov_b32 v196, 4136\nv_cndmask_b32 v196, v196, 30, vcc\nv_add_u32 v{FX}, s{LH}, v196")
    a(f"v_bfe_u32 v196, v2, 3, 2\nv_mul_u32_u24 v196, {CV_COPY}, v196\nv_and_b32 v197, 7, v2\nv_lshl_add_u32 v196, v197, 2, v196\nv_add_u32 v200, s{LH}, v196")
    a("v_mov_b32 v196, 0\nv_mov_b32 v197, 0\nv_mov_b32 v198, 0\nv_mov_b32 v199, 0\nds_write_b32 v200, v196\nv_lshlrev_b32 v201, 4, v0")
    a(f"ds_write_b128 v201, v[196:199]\nds_write_b128 v201, v[196:199] offset:{CV_IMG}")
    def brd(c):
        o=(c&1)*CV_BUF+32
        return flat([[f"ds_read_b128 {Q(BT+6*i)}, v{BA} offset:{o+1024*i} ; @b{c}", f"ds_read_b32 v{BT+6*i+4}, v{BA} offset:{o+1024*i+16} ; @b{c}"] for i in range(4)])
    def bwr(c):
        o=(c&1)*CV_BUF+CV_COPY; L=[f"ds_write_b16 v{FX}, v{BT} offset:{o}"]
        if fold: L=[f"@W hd{c}", f"v_lshlrev_b32 v{DR}, 16, v{DR}", f"v_lshlrev_b32 v{U}, 16, v{BT}", f"v_add_f32 v{DR}, v{DR}, v{U}", f"v_cvt_pk_bf16_f32 v{DR}, v{DR}, v{DR}",
                    f"ds_write_b16 v{FX}, v{DR} offset:{o}", f"ds_write_b16 v{FX}, v{DR} offset:{o-CV_COPY+2}"]
        for i in range(4):
            t=BT+6*i
            L+=[f"v_alignbit_b32 v{t+k}, v{t+k+1}, v{t+k}, 16" for k in range(4)]+[f"ds_write_b128 v{BA}, {Q(t)} offset:{o+32+1024*i} ; @bw"]
        return L
    if OPT["kp"]==0: a(poll_issue("p1X"))
    a("@W hc0"); a.extend(brd(0))
    a(f"v_lshrrev_b32 v202, 3, v2\nv_and_b32 v203, 7, v2\nv_lshrrev_b32 v204, 1, v202\nv_xor_b32 v203, v203, v204\nv_mul_u32_u24 v202, 9216, v202")
    a(f"v_lshl_add_u32 v{VK}, v203, 4, v202\nv_xor_b32 v{VK+1}, 64, v{VK}")
    a(f"v_and_b32 v202, 15, v2\nv_add_u32 v202, 1, v202\nv_and_b32 v203, 1, v202\nv_mul_u32_u24 v203, {CV_COPY}, v203\nv_lshrrev_b32 v202, 1, v202\nv_lshl_add_u32 v203, v202, 2, v203")
    a(f"v_lshrrev_b32 v204, 4, v2\nv_lshl_add_u32 v203, v204, 4, v203\nv_add_u32 v{AB}, s{LH}, v203")
    for p in range(1,4): a(f"v_add_u32 v{AB+p}, 1024, v{AB+p-1}")
    if OPT["kp"]==1: a(poll_issue("p1X"))
    a("@W - b0"); a.extend(bwr(0))
    if OPT["kp"]==2: a(poll_issue("p1X"))
    for v in range(4):
        a(f"v_and_b32 v202, 15, v2\nv_lshlrev_b32 v202, 1, v202\nv_sub_u32 v202, v202, v204\nv_add_u32 v202, {17-4*v}, v202")
        a(f"v_bfe_u32 v203, v202, 1, 3\nv_xor_b32 v203, s3, v203\nv_lshlrev_b32 v203, 4, v203\nv_lshl_add_u32 v{BB+v}, v202, 7, v203")
    a(f"v_and_b32 v202, 15, v2\nv_lshlrev_b32 v202, 5, v202\nv_lshl_add_u32 v{YO}, v204, 3, v202")
    a(f"s_mul_i32 s7, s3, {64*9216}\ns_lshl_b32 s8, s{N1}, 8\ns_add_u32 s7, s7, s8\ns_add_u32 s10, s7, {WS_KVT}\ns_lshl_b32 s9, s3, 13\ns_add_u32 s9, s9, 4096")
    def rdA(G,c):
        g0=G&7; r=S0+64*(G&1)+4*c; o=(64*g0+512*(c&1))//4; tg=f"f{G}" if c==0 else f"g{G}"
        return [f"ds_read2_b32 {P(r)}, v{AB+(c>>1)} offset0:{o} offset1:{o+1} ; @{tg}", f"ds_read2_b32 {P(r+2)}, v{AB+(c>>1)} offset0:{o+2} offset1:{o+3} ; @{tg}"]
    def rdB(G):
        g0=G&7
        return [f"ds_read_b128 {Q(S0+64*(G&1)+32+4*c)}, v{BB+(g0&3)} offset:{4096*c+(0 if g0>>2 else 2048)} ; @f{G}" for c in range(8)]
    def reads(G):
        if OPT["cch"]:
            L=flat([[rdB(G)[c]]+rdA(G,c) for c in range(8)])
            return [re.sub(r"@[fg]","@f" if i<12 else "@g",x) for i,x in enumerate(L)]
        return rdA(G,0)+rdB(G)+flat([rdA(G,c) for c in range(1,8)])
    a.extend(flat([rdA(0,c) for c in range(8)]))
    if OPT["kp"]==3: a(poll_issue("p1X"))
    if not fold: a("@W hd0"); a.extend(dbuild())
    stamp(a,5)
    a(poll_check("p1X"))
    if not (atom("p1") and OPT["kvb"]): a("s_barrier")
    stamp(a,6); stamp(a,1,"B")
    def kvdma(img):
        return [f"s_add_u32 m0, s9, {img*CV_IMG+i*1024}\ns_add_u32 s13, s10, {i*8*9216+img*128}\nbuffer_load_dwordx4 v{VK+(i&1)}, {WS}, s13 offen sc1 lds ; @kvi{img}" for i in range(8)]
    a.extend(kvdma(0)+xsetup()+R.goto(2))
    a("@W kvi0 0\ns_barrier")
    a.extend(rdB(0))
    def epi(ch,q):
        A=ACC+4*q; k=T+2*q
        return [f"v_cvt_pk_bf16_f32 v{k}, v{A}, v{A+1}", f"v_cvt_pk_bf16_f32 v{k+1}, v{A+2}, v{A+3}",
                f"buffer_store_dwordx2 {P(k)}, v{YO}, {WS}, s6 offen offset:{512*q} sc1 ; @yst"]
    GS=[]
    for G in range(32):
        ch,rho=divmod(G,8); s=S0+64*(G&1)
        def M(c,q):
            if c<0: return f"v_mfma_f32_16x16x32_bf16 {Q(ACC+4*q)}, {Q(DV)}, {Q(s+32+4*q)}, 0"
            z=fold and rho==0 and q not in seen; seen.add(q)
            return f"v_mfma_f32_16x16x32_bf16 {Q(ACC+4*q)}, {Q(s+4*c)}, {Q(s+32+4*(q-c))}, "+("0" if z else Q(ACC+4*q))
        qmaj = rho==7 or (rho==0 and ch>0); c0=-1 if (rho==0 and not fold) else 0; seen=set(); GP=Gaps2 if OPT["g2c"] else Gaps
        g=GP([M(c,q) for q in range(7,-1,-1) for c in range(c0,q+1)] if qmaj else [M(c,q) for c in range(c0,8) for q in range(max(c,0),8)])
        if OPT["cch"] and not qmaj: seen=set(); g=GP([M(c,q) for q in range(8) for c in ([-1] if c0 else [])+(list(range(q+1)) if q&1==0 else list(range(q,-1,-1)))])
        n=len(g.mf); GS.append(g)
        if qmaj: g.before(0,f"@W - g{G}")
        elif OPT["cch"]: g.before(0,f"@W - f{G}"); g.before(10-4*c0,f"@W - g{G}")
        else: g.before(0,f"@W - f{G}"); g.before(n-28,f"@W - g{G}")
    def late():
      for G,g in enumerate(GS):
        ch,rho=divmod(G,8); n=len(g.mf)
        if ch<3:
            r=[f"@W - b{ch+1}"]+bwr(ch+1)
            rb=OPT["cvb"]
            if rho==rb: g.fit([f"@W hc{ch+1}"]+brd(ch+1),16,36)
            k=len(r)-10
            if rho==rb+1: g.fit(r[:k],4,36)
            if rho==rb+2: g.fit(r[k:]+([] if fold else [f"@W hd{ch+1}"])+dbuild(),0,36)
            if rho==6:
                g.fit([f"v_xor_b32 v{BB+v}, 64, v{BB+v}" for v in range(4)]+([f"v_add_u32 v{BB+v}, {CV_IMG}, v{BB+v}" for v in range(4)] if ch==1 else []),18,36)
                g.fit([f"v_add_u32 v{AB+p}, {CV_BUF if ch%2==0 else -CV_BUF}, v{AB+p}" for p in range(4)],29,36)
        if rho==6: g.fit([f"s_add_u32 s6, s12, {WS_YC+16384*ch}"],0,36)
        if rho==7: g.fit(epi(ch,7),12,20); g.fit(epi(ch,6),20,28); g.fit(epi(ch,5),28,36)
        if rho==0 and ch>0:
            e1,e2=(20,32) if fold else (23,38)
            g.fit(epi(ch-1,4)+epi(ch-1,3)+epi(ch-1,2),0,e1); g.fit(epi(ch-1,1)+epi(ch-1,0),e1,e2)
        if G<31:
            rr=reads(G+1)
            if rho==6:
                if OPT["cch"]:
                    rr=[x for x in rr if "b128" in x]+[x for x in rr if "b128" not in x]; rr=[re.sub(r"@f","@g",x) for x in rr]
                g.fit(rr[:10],0,14); g.fit(rr[10:],14,29)
            else: g.fit(rr,0,n-7 if rho==7 else n-1)
    def place(items, start, length):
        for k,it in enumerate(items):
            x=start+length*k/len(items); G=int(x); g=GS[G]; g.g[int((x-G)*len(g.mf))].append(it)
    flatg=[(G,i) for G,g in enumerate(GS) for i in range(len(g.mf))]; used=set()
    def nextgap(pre, item, start):
        G=int(start); p=flatg.index((G,int((start-G)*len(GS[G].mf))))
        while p in used or p+1 in used: p+=1
        used.update((p,p+1))
        GS[flatg[p][0]].g[flatg[p][1]].append(pre); GS[flatg[p+1][0]].g[flatg[p+1][1]].append(item)
    plan=[[int(y) for y in x.split(".")] for x in str(OPT["cvp"]).split("_")]; assert len(plan)==nX()
    B={102:[[],[],[]],149:[["kvi1"],[],[]],171:[[],[],[]]}; last={}
    for t,(sl,st,dr) in enumerate(plan):
        if dr: B.setdefault(dr,[[],[],[]])[0].append(f"w2_{t}")
        else: XS[t]=sl; assert sl<2 and t>=nX()-2
        assert (sl!=3 or dr<=97) and (sl>1 or st>171) and (not dr or t==0 or dr>=plan[t-1][2]+4)
    for t,(sl,st,dr) in enumerate(plan):
        if sl in last:
            d0=plan[last[sl]][2]+4; assert d0<=st-1,(t,sl); c=[b for b in B if d0<=b<=st-1]
            B.setdefault(max(c) if c else st-1,[[],[],[]])[1].append(last[sl])
        last[sl]=t
    if 3 in last: B[102][1].append(last[3])
    for t,(sl,st,dr) in enumerate(plan):
        if dr: B[dr][2]=flat([x.split("\n") for x in R.reads(t,sl)])
    for b,(vt,lt,rd) in sorted(B.items()): place([f"@W {','.join(vt) or '-'} {f'r2_{max(lt)}' if lt else '-'}\ns_barrier"]+rd,b/10,0.36)
    for t,(sl,st,dr) in enumerate(plan):
        d=w2dma(t,sl); m0,so=d[0].split("\n",1); place([so],st/10,1); ln=min(OPT["cvn"],(plan[t+1][1] if t+1<len(plan) else 319)-st)/10
        for r in range(4): nextgap(m0,d[1+r],st/10+0.03+ln*r/4)
    print("; conv barriers",len(B),file=sys.stderr)
    for ch in range(3):
        d=cv_hdma(ch+1); m0,so=d[0].split("\n",1); st=8*ch+OPT["cvd"]/10
        place([so],st+0.1,1)
        for r in range(4): nextgap(m0,d[1+r],st+0.15+0.22*r)
        place([dload(ch+1)],st+1.25,1)
    for i,it in enumerate(kvdma(1)):
        pre,ld=it.rsplit("\n",1); nextgap(pre,ld,11.2+0.25*i)
    place(lines(poll2_addr()),30.05,0.9)
    late()
    print("; conv overload", " ".join(f"{g.over():.0f}" for g in GS), file=sys.stderr)
    for G,g in enumerate(GS):
        if G%4==0: stamp(a,2+G//4,"B")
        if 8<=G<=20: stamp(a,G-7,"V")
        if 20<=G: stamp(a,G-19,"W")
        if OPT.get("cvcut"): g.mf=[m if (i%OPT["cvcut"]) else "s_nop 0" for i,m in enumerate(g.mf)]
        g.emit(a)
    a(poll_issue("p2X"))
    for q in range(4,-1,-1): a.extend(epi(3,q))
    stamp(a,7); stamp(a,10,"B"); stamp(a,13,"W")
    a.extend(R.goto(0))
    a("@W - 0\ns_barrier")
    stamp(a,9)
def idle(a):
    a("L_idle:")
    a("s_waitcnt vmcnt(0)\ns_barrier")
    a.extend(xsetup())
    R=W2R()
    if OPT["ipc"]:
        n=OPT["ipc"]*16
        a(f"s_sub_u32 s4, s{TID}, 252\ns_mul_i32 s4, s4, 1152\ns_mul_i32 s5, s3, {n}\ns_add_u32 s4, s4, s5\ns_add_u32 s4, s4, {1152-4*n}\ns_lshl_b32 s4, s4, 12\ns_add_u32 s4, s4, 384\nv_lshlrev_b32 v24, 10, v2")
        for i in range(n//16): a(f"buffer_load_dword v255, v24, {RW2}, s4 offen ; @pf\ns_add_u32 s4, s4, 65536")
    if OPT["ipf"]:
        n=OPT["ipf"]*16
        a(f"s_sub_u32 s4, s{TID}, 252\ns_mul_i32 s4, s4, 1152\ns_mul_i32 s5, s3, {n}\ns_add_u32 s4, s4, s5\ns_add_u32 s4, s4, {1152-4*n}\ns_lshl_b32 s4, s4, 12\nv_and_b32 v25, 7, v2\nv_cmp_eq_u32 vcc, 3, v25\nv_subbrev_co_u32 v24, vcc, 0, v2, vcc\nv_lshlrev_b32 v24, 7, v24")
        for i in range(n//2): a(f"buffer_load_dword v255, v24, {RW2}, s4 offen ; @pf\ns_add_u32 s4, s4, 8192"+("\ns_waitcnt vmcnt(24)" if i>24 else ""))
    n=nX(); S=dict(R=R,slot={},free=list(range(10)),issue=0,drain=0)
    for s in w2steps(S,n,n-2,lambda t,free: (XS[t] if t>=n-2 else ([s for s in free if s>1] or [None])[0])): a.extend(s)
    a.extend(R.goto(0))
    a.extend(warm("D"))
    a.extend(poll2_addr())
    if OPT["isl"]:
        a(f"s_mov_b32 s5, 0\nL_iw:\ns_sleep {OPT['isl']}\n{poll_op('p2X')}\ns_waitcnt vmcnt(0)\nv_cmp_eq_u32 vcc, 0, v13\ns_mov_b64 s[6:7], vcc\nv_cmp_ne_u32 vcc, v13, v{PV+1}\ns_andn2_b64 s[8:9], exec, vcc\ns_andn2_b64 s[8:9], s[8:9], s[6:7]"
          f"\ns_cbranch_scc1 L_ix\ns_cmp_eq_u64 s[6:7], exec\ns_cbranch_scc1 L_ix\ns_add_u32 s5, s5, 1\ns_cmp_lt_u32 s5, {OPT['spinmax']}\ns_cbranch_scc1 L_iw\nL_ix:")
    a(poll_issue("p2X"))
    a("s_branch L_DX")

def dsetA():
    L=[f"v_and_b32 v24, 15, v2\nv_lshrrev_b32 v25, 4, v2\nv_mul_u32_u24 v25, {U2_PL}, v25\nv_lshl_add_u32 v24, v24, 4, v25",
       f"s_mul_i32 s7, s{KQ}, 36\ns_and_b32 s8, s3, 1\ns_add_u32 s7, s7, s8\ns_mul_i32 s7, s7, {U2_KS}\n"+MP.format(8)+f"\ns_lshl_b32 s8, s8, 12\ns_add_u32 s7, s7, s8\ns_add_u32 s7, s7, {WS_U2}\nv_add_u32 v{VA+4}, s7, v24"]
    L+=[f"s_xor_b32 s7, s{KQ}, {b}\nv_lshl_add_u32 v{VA+b}, s7, 10, v{VA+4}" for b in range(4)]
    L.append(f"v_lshlrev_b32 v{RR}, 4, v2\nv_add_u32 v{RR}, {(10-OPT['nsl'])*SLOT}, v{RR}\nv_add_u32 v1, 0x10000, v{RR}")
    return L
def dsetE():
    t=Asm(); srd(t,56,S_Q,NB_SD)
    return [i.text for i in t.L]+[f"s_mov_b32 s{SC16}, {16*1152}\ns_mov_b32 s{SST}, {WS_STATS}"]
def dsetB():
    t=Asm(); srd(t,64,S_OUT,NB_SD); L=[i.text for i in t.L]
    L+=[f"v_lshlrev_b32 v{L16}, 4, v2", w2base(7)+f"\nv_subrev_u32 v{YP}, s7, v{VW2}\nv_subrev_u32 v{YP+1}, s7, v{VW2+1}"]
    L+=[MP.format(4)+f"\ns_mul_i32 s4, s4, 9\ns_lshl1_add_u32 s7, s{KQ}, s4\ns_and_b32 s8, s3, 1\ns_add_u32 s7, s7, s8\ns_lshl_b32 s{SY0}, s7, 16\ns_add_u32 s{SY0}, s{SY0}, {WS_YC}\ns_add_u32 s4, s4, 8\ns_lshl_b32 s{SY8}, s4, 16\ns_add_u32 s{SY8}, s{SY8}, {WS_YC}",
        f"s_sub_u32 s4, s4, s7\ns_lshl_b32 s4, s4, 7\ns_lshl_b32 s7, s7, 7\ns_add_u32 s7, s7, {FLAGY}\nv_bfe_u32 v24, v2, 2, 1\nv_mul_u32_u24 v24, s4, v24\nv_and_b32 v25, 3, v2\nv_lshl_add_u32 v24, v25, 2, v24\nv_add_u32 v{PY}, s7, v24"]
    XA,XB,XZ,X8=(WS_X4+k*(3<<20) for k in range(4))
    L+=[f"s_lshl2_add_u32 s7, s2, s3\ns_mul_i32 s8, s7, 3072\ns_add_u32 s{SMA}, s8, {XA}\ns_add_u32 s{SMB}, s8, {XB}\ns_add_u32 s{SMZ}, s8, {XZ}\ns_lshl_b32 s{SM8}, s7, 12\ns_add_u32 s{SM8}, s{SM8}, {X8}"]
    L+=[f"s_xor_b32 s8, s7, {8*b}\ns_mul_i32 s8, s8, 3072\ns_add_u32 s{d}, s8, {x}" for b,d,x in ((1,SYA,XA),(2,SYB,XB),(3,SZ,XZ))]
    L+=[f"s_andn2_b32 s7, s7, 24\ns_lshl3_add_u32 s7, s3, s7\ns_lshl2_add_u32 s8, s7, s{KQ}\ns_lshl_b32 s8, s8, 10\ns_add_u32 s{SR0}, s8, {X8}\ns_xor_b32 s8, s8, 4096\ns_add_u32 s{SR1}, s8, {X8}",
        f"s_xor_b32 s8, s3, s{KQ}\ns_cmp_lt_u32 s8, 2\ns_cselect_b32 s{SM8}, s{SM8}, {OOB}\ns_cselect_b32 s{SY8}, s{SY8}, {OOB}\ns_cselect_b32 s{ST8}, s{NONCE}, 0",
        f"s_mov_b32 s38, {f2h(-1.4426950408889634)}"]
    L+=[f"s_and_b32 s8, s8, 1\ns_mul_i32 s41, s8, 96\ns_and_b32 s43, s{LW}, 4096"]
    if len(OPT["np"])<3: L+=[f"v_lshlrev_b32 v24, 10, v2\nv_add_u32 v24, s{SM8}, v24\ns_add_u32 s7, s{SMA}, 2048\nv_mov_b32 v25, s{ST8}\nv_cmp_gt_u32 vcc, 4, v2\nv_cndmask_b32 v{PE1}, 0, v25, vcc\nv_mov_b32 v25, {OOB}\nv_cndmask_b32 v{PA1}, v25, v24, vcc",
        f"v_writelane_b32 v{PA1}, s7, 4\nv_writelane_b32 v{PE1}, s{NONCE}, 4\nv_min_u32 v{PA2}, 1, v2\nv_lshlrev_b32 v{PA2}, 30, v{PA2}\nv_mov_b32 v{PE2}, 0\nv_writelane_b32 v{PE2}, s{NONCE}, 0"]
    return L
FLAGY=FLAG2+16384
A8,AB=32,(88,40,56,72)
XP,STT,B2,X8=88,96,102,142
def eloads():
    L=[f"v_lshrrev_b32 v30, 2, v{SA}", f"v_lshrrev_b32 v31, 2, v{SA8}"]
    L+=[f"buffer_load_dwordx4 {Q(XP+4*j)}, v{XO}, {RA}, {('0',f's{SC16}')[j]} offen ; @ex" for j in range(2)]+[f"buffer_load_dwordx2 {P(X8)}, v{XO+1}, {RA}, 0 offen ; @ex"]
    L+=[f"buffer_load_dwordx2 {P(STT+2*n)}, v{SA if n<2 else SA8}, {WS}, s{SST} offen offset:{128*(n&1)} sc1 ; @ex" for n in range(3)]
    L+=[f"buffer_load_ushort v{B2+n if n<2 else B8}, v{30+(n>>1)}, {RB_}, 0 offen offset:{32*(n&1)} ; @eb" for n in range(3)]
    return L
def phaseD(a, ac, role, S):
    R=S["R"]; NSL=OPT["nsl"]; RS0=10-NSL; YSL=RS0-1; assert YSL>=4 and OPT["fpl"]==2
    a(f"L_D{role}:")
    us=OPT["usk"]; r1=[("R",0),(1,0),(1,1)]; blk=lambda b:[(b,0),(b,1)]
    groups=[(b,r,u) for rows,ur in ((r1+blk(2),range(us)),(r1,range(us,9)),(blk(2),range(us,9)),(blk(3),range(9)),(blk(0),range(9))) for u in ur for b,r in rows]
    need=[min(i for i,x in enumerate(groups) if x[2]==u) for u in range(9)]
    GS=need[8]//4*4; end={b:max(i for i,x in enumerate(groups) if x[0]==b)+1 for b in ("R",0,1,2,3)}; beg={b:min(i for i,x in enumerate(groups) if x[0]==b) for b in (0,3)}
    def acc(b,r): return A8 if b=="R" else AB[b]+8*r
    mf=[]
    for g_,(b,r,u) in enumerate(groups):
        for n_,nt in enumerate((1,0) if g_&1 else (0,1)):
            c=Q(acc(b,r)+4*nt)
            for i,k in enumerate((3,2,1,0) if n_ else (0,1,2,3)):
                kind,r0=w2reg(2*u+(k>>1))
                mf.append(f"v_mfma_f32_16x16x32_bf16 {c}, {Q(AF+16*(g_&1)+4*k)}, {Q(r0+8*(k&1)+4*nt,kind)}, "+("0" if (i==0 and u==0 and b in ("R",1,2)) else c))
    g=Gaps2(mf); fit0=g.fit
    def fit(L,s_,e_): assert not s_<8*GS<e_, ("list crosses the role boundary",L[:2]); fit0(L,s_,e_)
    g.fit=fit
    def G(x): return int(round(8*x))
    def udma(g_):
        b,r,u=groups[g_]; e=g_//4; o=768 if b=="R" else 512*r
        return [f"s_add_u32 m0, s{LW}, {(RS0+e%NSL)*SLOT+1024*(g_%4)-o}", f"buffer_load_dwordx4 v{VA+(4 if b=='R' else b)}, {WS}, s{KU+u} offen offset:{o} sc1 lds ; @u{e}"]
    def urd(g_): return [f"ds_read_b128 {Q(AF+16*(g_&1)+4*k)}, v{RR if g_//4%NSL<4 else 1} offset:{(g_//4%NSL%4)*SLOT+4096*k+1024*(g_%4)} ; @f{g_}{'ab'[k>>1]}" for k in range(4)]
    PD=(0,1,2,4,5,6,8,9)
    def send(b,so):
        L=[]
        for d in range(8):
            L.append(f"v_cvt_pk_bf16_f32 v{SB+PD[d]}, v{AB[b]+2*d}, v{AB[b]+2*d+1}")
            if d in (2,5,7): L.append(far(f"buffer_store_dwordx4 {Q(SB+PD[d]//4*4)}, v{L16}, {WS}, s{so} offen offset:{PD[d]//4*1024} sc1 ; @xs",1))
        return L
    def rld(h,dst,so,n,tg=True): return [far(f"buffer_load_dwordx4 {Q(dst+4*p)}, v{L16}, {WS}, s{so} offen offset:{1024*p} sc1"+(f" ; @r{h}" if tg else ""),1) for p in range(n)]
    def rchk(h,dst,so,n,tag):
        t=[f"v_bitop3_b32 v{dst+3}, v{dst+3}, v{dst+7}, s{tag} bitop3:0x7e"]+[f"v_bitop3_b32 v{dst+3}, v{dst+3}, v{dst+4*p+3}, s{tag} bitop3:0xf6" for p in range(2,n)]+[f"v_cmp_ne_u32 vcc, 0, v{dst+3}"]
        if ac is not None: COLD.append(f"L_xs_{h}:\ns_mov_b32 s5, 0\nL_xt_{h}:\n"+"\n".join(rld(h,dst,so,n,False))+"\ns_waitcnt vmcnt(0)\n"+"\n".join(t)
            +f"\ns_cbranch_vccz L_xo_{h}\ns_add_u32 s5, s5, 1\ns_cmp_lt_u32 s5, {OPT['spinmax']}\ns_cbranch_scc1 L_xt_{h}\ns_branch L_xo_{h}")
        return [f"@W r{h}"]+t[:-1]+split_check(t[-1]+("" if OPT.get("nochk") else f"\ns_cbranch_vccnz L_xs_{h}")+f"\nL_xo_{h}:")
    def apoll(h,va,so,off,tg=True): return [f"v_mov_b32 v{PD_}, 0", far(f"buffer_atomic_add v{PD_}, v{va}, {WS}, {so} offen offset:{off} sc0 sc1"+(f" ; @q{h}" if tg else ""),1)]
    def achk(h,va,so,off,ve):
        t=f"v_cmp_ne_u32 vcc, v{ve}, v{PD_}"
        if ac is not None: COLD.append(f"L_as_{h}:\ns_mov_b32 s5, 0\nL_at_{h}:\n"+"\n".join(apoll(h,va,so,off,False))+f"\ns_waitcnt vmcnt(0)\n{t}"
            +f"\ns_cbranch_vccz L_ao_{h}\ns_add_u32 s5, s5, 1\ns_cmp_lt_u32 s5, {OPT['spinmax']}\ns_cbranch_scc1 L_at_{h}\ns_branch L_ao_{h}")
        return [f"@W q{h}"]+split_check(t+("" if OPT.get("nochk") else f"\ns_cbranch_vccnz L_as_{h}")+f"\nL_ao_{h}:")
    def unp(dst,src,ds=range(8)): return flat([unpack(dst+2*d,src+PD[d]) for d in ds])
    late=(dsetE() if role=="X" else [])+(dsetB() if (role=="X" or not OPT["hoist"]) else [])
    stamp(a,10)
    a(poll_check("p2"+role))
    if OPT["pw0"]: a("s_barrier")
    stamp(a,11); stamp(a,1,"D"); stamp(a,1,"D1")
    F0=OPT["f0"]
    for x in range(F0): a.extend(udma(x))
    a.extend(late)
    a.extend([f"v_mov_b32 v{SB+k}, s{NONCE}" for k in (3,7,10,11)])
    a("@W u0\ns_barrier"); a.extend(urd(0))
    nxt=F0; m0busy=set(); quiet=set(flat([list(range(*[int(y) for y in x.split(".")])) for x in str(OPT["uq"]).split("_") if "." in x]))
    for g_ in range(81):
        g.before(8*g_,f"@W - f{g_}a"); g.before(8*g_+2,f"@W - f{g_}b")
        bar=(g_+1)%4==0
        if bar: g.g[8*g_+2].append(f"@W u{(g_+1)//4} -\ns_barrier")
        if g_<80:
            for k,x in enumerate(urd(g_+1)): g.g[8*g_+(3 if bar else OPT["rg"])+k].append(x)
        k=0
        while nxt<81 and k<OPT["ncat"] and nxt//4<=g_//4+NSL-1 and nxt<=g_+OPT["lag"] and g_ not in quiet:
            d=udma(nxt); p=8*g_+(0,6)[k]; assert nxt//4*4-1-g_>=5, (nxt,g_)
            g.g[p].append(d[0]); g.g[p+1].append(d[1]); m0busy.update((p,p+1)); nxt+=1; k+=1
    assert nxt==81
    def addw(e,tag):
        f=g.g[8*(4*e-1)+2]; i=[k for k,x in enumerate(f) if x.startswith(f"@W u{e}") or x.startswith(f"@W w")][0]; w,rest=f[i].split("\n",1); p=w.split()
        if tag[0]=="r": p[2]=tag if p[2]=="-" else p[2]+","+tag
        else: p[1]+=","+tag
        f[i]=" ".join(p)+"\n"+rest
    free=[(s_,0) for s_ in sorted(S["free"]) if s_<YSL+(not OPT["yin"])]; slot=S["slot"]; assert all(s_<RS0 for s_ in slot.values()), slot
    at={t:1+OPT["jd0"] for t in slot}; ti,td=S["issue"],S["drain"]; log=[[],[]]; yfree=0
    ji=[int(x) for x in str(OPT["ji"+role]).split("_") if x!=""]
    def due(t): return min((need[t//2]-3)//4,GS//4-1)
    for e in range(GS//4):
        L=[]; k=0
        while td<NT and at.get(td,99)<=e and (k<OPT["nd"] or any(due(t)-e<t-td+1 for t in range(td,NT))) and k<2:
            assert e<=due(td), (td,e); k+=1
            addw(e,f"w2_{td}"); L+=flat([x.split("\n") for x in R.reads(td,slot[td])]); log[1].append(e)
            addw(e+1,f"r2_{td}")
            if slot[td]!=YSL or not OPT["yin"]: free.append((slot[td],e+1))
            else: yfree=4*e+4
            td+=1
        if L: g.fit(L,32*e-5,32*e+26)
        if ti<NT and e>=ji[len(log[0])] and free and free[0][1]<=e:
            s_,_=free.pop(0); slot[ti]=s_; d=w2dma(ti,s_); m0,so=d[0].split("\n"); n_=1
            ps=[p for p in range(max(0,32*e-5),32*(e+n_)-7) if p not in m0busy and p+1 not in m0busy]
            g.g[ps[0]].append(so)
            for r in range(4):
                want=ps[0]+r*(ps[-1]-ps[0])//4; p=[x for x in ps if x>=want and x not in m0busy and x+1 not in m0busy][0]
                g.g[p].append(m0); g.g[p+1].append(d[1+r]); m0busy.update((p,p+1))
            at[ti]=e+n_+OPT["jlat"]; log[0].append(e); ti+=1
    assert td==NT,(td,ti,log)
    print(f"; D {role}: issue {log[0]} drain {log[1]}",file=sys.stderr)
    for u in range(9):
        if 2*u+1>=S["drain"] and need[u]<GS: g.pre[8*need[u]][0]+=f",r2_{2*u+1}"
    if R.win!=YSL>>2: g.fit(R.goto(YSL>>2),G(GS)-5,G(GS))
    if role=="X":
        g.fit([f"s_sub_u32 s4, s{TID}, 216\ns_lshl_b32 s7, s4, 7", f"s_lshl2_add_u32 s7, s3, s7\ns_add_u32 s7, s7, {FLAGY}", f"s_cmp_lt_u32 s4, 36\ns_cselect_b32 s7, s7, {OOB}",
           f"v_min_u32 v{PV}, 1, v2", f"v_lshlrev_b32 v{PV}, 30, v{PV}", f"v_mov_b32 v{PV+1}, s{NONCE}", f"buffer_store_dword v{PV+1}, v{PV}, {WS}, s7 offen sc1 ; @yf"],0,12)
    E1=end[1]; ga=min(E1+9,45)
    AUTO=dict(gb2=f"{GS-16}_{GS-12}", gbv=f"{GS-6}_{GS}", gx=f"{GS-12}_{GS}", gxv=f"{E1+5}_{E1+15}", gy=GS, gyc=GS+7 if E1-GS>8 else E1+13, gyr=56, gyv="57_64",
              gap=10*ga, gal=10*(ga+7), nal=5, gac=max(56,ga+15), g8c=64, g8f=76, gbp=540 if ga<43 else 570, gbl=600 if ga<43 else 622, nbl=2 if ga<43 else 1)
    O=lambda k: OPT[k] if OPT.get(k,-1)!=-1 else AUTO[k]
    def rng(k): return [G(int(x)) for x in str(O(k)).split("_")]
    def at_(k,L,n=1): g.fit(L,G(O(k)/10),G(O(k)/10+n))
    rs=flat([[f"v_cvt_pk_bf16_f32 v{SB+4*q+h}, v{A8+4*q+2*h}, v{A8+4*q+2*h+1}" for h in range(2)]+[far(f"buffer_store_dwordx4 {Q(SB+4*q)}, v{L16}, {WS}, s{so} offen sc1 ; @xs",1)] for q,so in enumerate((SR0,SR1))])
    sent={}
    for bs,L,sp in ((("R",1),rs+send(1,SYA),O("sp1")/10),((2,),send(2,SYB),O("sp2")/10),((3,),send(3,SZ),O("sp3")/10)):
        t=end[bs[-1]]+0.5+O("s2d")*(bs==(2,)); assert GS<=t; pc=[]
        for x in L:
            pc.append(x)
            if "store" in x: g.fit(pc,G(t),G(t+min(sp,1.5))); pc=[]; t+=sp
        for b in bs: sent[b]=t-sp+min(sp,1.5)
    p1,p2,p3=("a",PA1,"0",12),("b",PA2,f"s{SMB}",2060),("z",PA2,f"s{SMZ}",2060)
    E=AB[0]; T1,T2,T3=AB[1:]
    def get(p,ve,kp,kl,n,L,t):
        if p[0] not in OPT["np"]: at_(kp,apoll(*p),0.5); L=achk(*p,ve)+L; assert O(kp)>=10*t
        at_(kl,L,n); assert O(kl)>=10*t
    get(p1,PE1,"gap","gal",O("nal"),rld("a",T1,SMA,3)+rld("8",RVS,SM8,4),max(sent[1],sent["R"]))
    g.fit(rchk("a",T1,SMA,3,NONCE)+unp(E,T1),G(O("gac")),G(beg[0])-1)
    get(p2,PE2,"gbp","gbl",O("nbl"),rld("b",T2,SMB,3),sent[2])
    get(p3,PE2,"gzp","gzl",1,rld("z",T3,SMZ,3),sent[3])
    assert O("gbp")>=O("gal")+5 and O("gzp")>=O("gbl")+5
    gb=O("gbc"); assert gb>=beg[0] and gb>=O("gac")+4
    g.fit(rchk("b",T2,SMB,3,NONCE)+unp(T1,T2),G(gb),G(gb+3))
    for r in range(2):
        g_=[x for x in range(gb+3,80) if groups[x-1][:2]==(0,r) and groups[x][:2]==(0,1-r)][0]
        g.fit([f"v_add_f32 v{E+8*r+k}, v{E+8*r+k}, v{T1+8*r+k}" for k in ((0,1,2,3,4,5,6,7) if g_&1 else (4,5,6,7,0,1,2,3))],G(g_)+2,G(g_)+7)
    zt=[str(x) for x in rchk("z",T3,SMZ,3,NONCE)]+unp(T1,T3)
    of=OPT["ostore"]
    assert (O("gy")>=GS)==(O("gyc")>=GS)==(not OPT["yin"])
    g.fit([poll_issue("p3" if O("gy")>=GS else "p3"+role)],G(O("gy")),G(O("gy")+1))
    g.fit(split_check(poll_check("p3" if O("gyc")>=GS else "p3"+role)),G(O("gyc")),G(O("gyc")+1))
    p=G(O("gyc")+1); assert O("gyc")+1>=yfree
    for q,so in enumerate((SY0,SY8)):
        while any(x in m0busy for x in (p,p+1,p+2)): p+=1
        g.g[p].append(f"s_add_u32 m0, s{LW}, {YSL*SLOT+2048*q}"); m0busy.update((p,p+1,p+2))
        assert (p+2<8*GS)==(O("gyc")<GS)
        for r in range(2): g.g[p+1+r].append(f"buffer_load_dwordx4 v{YP+r}, {WS}, s{so} offen offset:{1024*r} sc1 lds ; @ey")
    assert O("gyr")%4==0 and O("gyr")>=GS and p+3<G(O("gyr")-1); addw(O("gyr")//4,"ey")
    def xq(q,h): return XP+4*(q&1)+2*(q>>1)+h if q<4 else X8+h
    def st(q): return STT+2*(q&1 if q<4 else 2)
    def yq(q,h): return (12,24,28,190,X8)[q]+h
    assert rng("gxv")[1]<=G(O("gyr")) and G(O("gyr")+1)<=rng("gyv")[0] and rng("gyv")[1]<=G(O("g8c")) and rng("gxv")[1]<=G(O("gac"))
    el=eloads(); g.fit(el[:2]+el[-3:],*rng("gb2")); g.fit(el[2:-3],*rng("gx")); assert rng("gx")[1]<=rng("gxv")[0]
    g.fit(["@W eb"]+[f"v_lshlrev_b32 v{T3+k}, 16, v{B2+(k>>2&1)}" for k in range(16)]+[f"v_lshlrev_b32 v{B8}, 16, v{B8}"],*rng("gbv")); assert rng("gb2")[1]<=rng("gbv")[0] and rng("gbv")[1]<G(beg[3])
    xv=["@W ex"]+[f"v_mul_f32 v{STT+2*n}, v{STT+2*n}, v{STT+2*n+1}" for n in range(3)]+[f"v_permlane16_swap_b32 v{XP+4*j+h}, v{XP+4*j+2+h}" for j in range(2) for h in range(2)]
    xv+=flat([unpack(XF+4*q+2*h,xq(q,h)) for q in range(5) for h in range(2)])+[f"v_fma_f32 v{NN+j}, v{XF+j}, v{st(j//4)+1}, -v{st(j//4)}" for j in range(20)]
    g.fit(xv,*rng("gxv"))
    yr=[f"v_xor_b32 v{RB8}, s41, v{RB2}",f"v_add_u32 v{RB8}, s43, v{RB8}"]+[f"ds_read_b64_tr_b16 {P(yq(q,0))}, v{RB2+(q&1) if q<4 else RB8} offset:{(YSL&3)*SLOT+(4096*(q>>1) if q<4 else 2048)} ; @ry" for q in range(5)]
    g.fit(yr,G(O("gyr")),G(O("gyr")+1))
    tv=(8,30)
    yv=["@W - ry"]+flat([unpack(tv[h],yq(q,h))+[f"v_mul_f32 v{NN+4*q+2*h+k}, v{NN+4*q+2*h+k}, v{tv[h]+k}" for k in (1,0)] for q in range(5) for h in range(2)])
    g.fit(yv,*rng("gyv"))
    A=A8; r=A8+4; n=NN+16
    e8=rchk("8",RVS,SM8,4,ST8)+unpack(A,RVS)+unpack(A+2,RVS+1)+[f"v_add_f32 v{A+k}, v{A+k}, v{B8}" for k in range(4)]
    for q in range(1,4): e8+=unpack(r,RVS+4*q)+unpack(r+2,RVS+4*q+1)+[f"v_add_f32 v{A+k}, v{A+k}, v{r+k}" for k in range(4)]
    e8+=[f"v_mul_f32 v{r+k}, s38, v{A+k}" for k in range(4)]+[f"v_exp_f32 v{r+k}, v{r+k}" for k in range(4)]+[f"v_mul_f32 v{n+k}, v{n+k}, v{A+k}" for k in range(4)]
    e8+=[f"v_add_f32 v{r+k}, 1.0, v{r+k}" for k in range(4)]+[f"v_rcp_f32 v{r+k}, v{r+k}" for k in range(4)]+[f"v_fma_f32 v{n+k}, v{n+k}, v{r+k}, v{XF+16+k}" for k in range(4)]
    e8+=[f"v_cvt_pk_bf16_f32 v{X8}, v{n}, v{n+1}",f"v_cvt_pk_bf16_f32 v{X8+1}, v{n+2}, v{n+3}",f"buffer_store_dwordx2 {P(X8)}, v{XO+1}, {RC}, 0 offen {of} ; @o8"]
    g.fit(e8[:-1],G(O("g8c")),G(O("g8f")))
    g.fit(e8[-1:],G(max(O("g8f"),O("gzl")//10+2)),G(81))
    g.finish()
    if ac is not None: print("; D cost/group"," ".join(f"{sum(g.load(i) for i in range(8*k,8*k+8)):.0f}" for k in range(81)),file=sys.stderr)
    for i,(m,p_,f) in enumerate(zip(g.mf,g.pre,g.g)):
        if i==8*GS:
            if ac is None: a("s_branch L_Dc"); return
            a=ac; a("L_Dc:")
        if i and i%72==0: stamp(a,1+i//72,"D")
        if i%32==0 and i<12*32: stamp(a,2+i//32,"D1")
        if i%32==0 and i>=9*32: stamp(a,1+i//32-9,"D2")
        a.extend(p_); a(m); a.extend(f)
    stamp(a,12); stamp(a,10,"D"); stamp(a,13,"D2")
    def fin(nt):
        two=lambda f: flat([f(E+4*q,T2+4*q,NN+4*q,q) for q in (nt,nt+2)])
        s1=two(lambda A,r,n,t:[f"v_pk_add_f32 {P(A)}, {P(A)}, {P(T1+4*t)}",f"v_pk_add_f32 {P(A+2)}, {P(A+2)}, {P(T1+4*t+2)}"])
        s1+=two(lambda A,r,n,t:[f"v_pk_mul_f32 {P(r)}, {P(A)}, s[38:39] op_sel_hi:[1,0]",f"v_pk_mul_f32 {P(r+2)}, {P(A+2)}, s[38:39] op_sel_hi:[1,0]"])
        s1+=two(lambda A,r,n,t:[f"v_exp_f32 v{r+k}, v{r+k}" for k in range(4)])
        s1+=two(lambda A,r,n,t:[f"v_pk_mul_f32 {P(n)}, {P(n)}, {P(A)}",f"v_pk_mul_f32 {P(n+2)}, {P(n+2)}, {P(A+2)}"])
        s1+=two(lambda A,r,n,t:[f"v_pk_add_f32 {P(r)}, {P(r)}, 1.0 op_sel_hi:[1,0]",f"v_pk_add_f32 {P(r+2)}, {P(r+2)}, 1.0 op_sel_hi:[1,0]"])
        s1+=two(lambda A,r,n,t:[f"v_rcp_f32 v{r+k}, v{r+k}" for k in range(4)])
        s1+=two(lambda A,r,n,t:[f"v_pk_fma_f32 {P(n)}, {P(n)}, {P(r)}, {P(XF+4*t)}",f"v_pk_fma_f32 {P(n+2)}, {P(n+2)}, {P(r+2)}, {P(XF+4*t+2)}"])
        o=E+4*nt; n0,n1=NN+4*nt,NN+4*nt+8
        s1+=[f"v_cvt_pk_bf16_f32 v{o}, v{n0}, v{n0+1}",f"v_cvt_pk_bf16_f32 v{o+2}, v{n1}, v{n1+1}",f"v_cvt_pk_bf16_f32 v{o+1}, v{n0+2}, v{n0+3}",f"v_cvt_pk_bf16_f32 v{o+3}, v{n1+2}, v{n1+3}",
             f"v_permlane16_swap_b32 v{o}, v{o+2}",f"v_permlane16_swap_b32 v{o+1}, v{o+3}",f"buffer_store_dwordx4 {Q(o)}, v{XO}, {RC}, {('0',f's{SC16}')[nt]} offen {of}"]
        return s1
    a.extend(zt+fin(0)+fin(1))
    stamp(a,13)
    if OPT["stamps"]:
        a("s_waitcnt vmcnt(0)"); stamp(a,14); stamps_out(a)
    if OPT.get("probe") is not None:
        a("s_waitcnt vmcnt(0)"); stamp(a,14)
        if OPT["probe"]==0: a(f"s_mov_b32 s28, s{NONCE}")
        if OPT.get("prole")=="G": a(f"s_cmp_lt_u32 s{TID}, 216\ns_cselect_b32 s28, s28, s{NONCE}")
        if OPT.get("prole")=="X": a(f"s_sub_u32 s4, s{TID}, 216\ns_cmp_lt_u32 s4, 36\ns_cselect_b32 s28, s28, s{NONCE}")
        a("s_add_u32 s28, s28, 6000\ns_mov_b32 s5, 0\nL_spin:\ns_memrealtime s[0:1]\ns_waitcnt lgkmcnt(0)\ns_sub_u32 s4, s0, s28\ns_add_u32 s5, s5, 1\ns_cmp_gt_u32 s5, 20000\ns_cbranch_scc1 L_spe\ns_cmp_lt_i32 s4, 0\ns_cbranch_scc1 L_spin\nL_spe:")
    a("s_endpgm\nL_segE:")

def check_vcc(seg):
    last=None
    for ins in seg.L:
        if "vcc" in ins.w: assert last is None or "#" not in last, (last,ins.text); last=ins.text
        if ins.op.startswith("s_cbranch_vcc"):
            assert last is not None and ("#" not in last or last.split("#")[1]==ins.text.split()[1]), (last,ins.text); last=None
def check_m0(seg):
    cur=None
    for ins in seg.L:
        if "m0" in ins.w: cur=ins.text.split(",")[1].strip()
        if ins.kind=="vmem" and " lds" in ins.text:
            tg=ins.text.split("@")[1]; want={"w":f"s{LW}","h":f"s{LH}","k":"s9"}[tg[0]]
            assert cur==want,(ins.text,cur)
def build(**kw):
    OPT.update(kw)
    hdr=open("cdna_kernels/"+NAME+".s.ref").read().split("; Override launch")[0]
    segs=s0,sG,sDG,sD,sXA,sC,sDX,sI=[Asm() for _ in range(8)]
    p0(s0); R=roleG(sG); roleX_A(sXA); conv(sC); idle(sI); phaseD(sDG,sD,"G",R); n=nX(); phaseD(sDX,None,"X",dict(R=W2R(),slot=dict(XS),free=list(range(2,10)),issue=n,drain=n-2))
    for seg in segs:
        for ins in seg.L:
            m=re.search(r";\s*@(\S+)",ins.text)
            if OPT.get("drop"):
                if ins.kind=="vmem" and m and re.fullmatch(OPT["drop"],m.group(1)): ins.__init__("")
                elif ins.text.startswith("@W"):
                    p=ins.text.split(); tg=[t for t in p[1].split(",") if not re.fullmatch(OPT["drop"],t)]
                    ins.__init__(" ".join(["@W",",".join(tg) or "-"]+p[2:]))
            if OPT.get("dropds") and ins.kind=="ds" and m and re.fullmatch(OPT["dropds"],m.group(1)): ins.__init__("ds_nop ; @"+m.group(1))
            if OPT.get("nt") and ins.kind=="vmem" and m and re.fullmatch(OPT["nt"],m.group(1)):
                ins.__init__(ins.text.replace(" lds ;"," nt lds ;") if " lds ;" in ins.text else ins.text.replace(" ;"," nt ;"))
            if OPT.get("nosc1") and ins.kind=="vmem" and m and re.fullmatch(OPT["nosc1"],m.group(1)): ins.__init__(ins.text.replace(" sc1",""))
    for seg in segs: check_vcc(seg)
    paths=[[s0,sG,sDG,sD],[s0,sXA,sC,sDX,sD],[s0,sXA,sI,sDX,sD]]
    resolve_vm(paths)
    if not OPT.get('drop'): check_pending(paths)
    a=Asm(); a.L=flat([s.L for s in segs]); c=Asm(); c.extend(COLD)
    if OPT["iw"]:
        k=[i for i,x in enumerate(a.L) if x.text==".p2align 12"][0]; a.L=a.L[:k]+c.L+a.L[k:]
    else: a.L+=c.L
    a("L_end:"); a.fix()
    check_m0(sC)
    if OPT["iw"]:
        def disp(cnt):
            d=Asm()
            for nm in "GXD":
                d(f"L_wc_{nm}:")
                for w in range(4):
                    tgt=f"L_pl_{nm}_{w}" if w<cnt[nm] else "L_wret"
                    d(f"s_cmp_eq_u32 s3, {w}\ns_cbranch_scc1 {tgt}" if w<3 else f"s_branch {tgt}")
            d("L_wret:\ns_setpc_b64 s[82:83]")
            return d.L
        k=[i for i,x in enumerate(a.L) if x.text==".p2align 12"][0]
        L,cnt=page_landings(a.L[:k]+disp(dict(G=0,X=0,D=0))+a.L[k:],"L_org",[("G","L_segG","L_Dc"),("X","L_segX","L_idle"),("D","L_Dc","L_segE")])
        n=len(disp(cnt)); a.L=L[:k]+disp(cnt)+L[k+n:]
        print("; landings",cnt,file=sys.stderr)
    return (hdr+"; @launch grid=(256,1,1) block=(256,1,1) lds=163840\n"+'.amdgcn_target "amdgcn-amd-amdhsa--gfx950"\n.text\n'+a.text()
            +'.section .rodata,"a"\n'+kdesc(KN,256,256))
if __name__=="__main__":
    kw={}
    for x in sys.argv[2:]:
        k,v=x.split("=",1); kw[k]=int(v) if v.lstrip("-").isdigit() else v
    open(sys.argv[1],"w").write(build(**kw))
```

```python
import sys, struct, re
from asmlib import *
from layout import *
WS_XB=WS_U; WS_F4=WS_U2+144*U2_KS; WS_X4=WS_F4+1024*128; WS_HP=WS_X4+(13<<20); HG=11264; WS_KP=WS_HP+256*HG; WS_END=WS_KP+256*HG
NAME="recurrent_scan__ssm_conv_h3__mixer_token_mlp__prompt"
KN=NAME+"_kernel"
OPT=dict(stamps=0, nln=4, nkv=0, npost=10, nA=10, rate=100, lat=3, lead1=2, lead2=2, cflag=0, nin=0, spinmax=100000, sleep=0,
         fpl=2, hrot=1, ostore="sc1", cpl=5, cpr=0, w1w='3_3_4_6', rate2=100, q0=0, q1=0, bsj='31_32_33_34_35_36', g2b=1, stg=0, rd0=7, pfw=0, pf0=10, jbf=42, jbp=49, jbl=53, jbu=57, nh=6,
         bursts='16.8_17.12_18.19_19.23', maxb=8, quiet=2, cvs=0, kp=3, bn=1, h0=4, iw=1, kvend=60, n63=2, cch=1, smove=2, je0=0, jen=16, clump=1, ramp=20, cfrac=100,
         rgm=1, w2w='14_4', wd=2, wg=0, hoist=1, pw0=1, hf=1, hp=2, kvf=0, lne=100, ap1=0, ap2=0, jm=0, ce=0, gpf=0, fol=0, wso=0, k8=0, rbl=1, kvb=1, pub0=1, ct=0, ap='12', rep=8, ppl=0, psl=3, isl=16, ipf=0, ipc=4, rep1=8, repk=4, npre=10, n0=7, nd0=5, pp=3, nrf=0, e01=2, e2x=0, ord='h',
         nsl=4, lag=15, f0=8, ncat=2, rg=2, nC=16, nc1=2, cfirst=-1, cpos=0, c1s=0, c1e=100, cw=1, pe=3, jlat=1, jd0=0, nd=1, jiG='2_3', jiX='2_3_4', usk=0, uq='50.55',
         nX=18, cvn=13, cvb=4, cvd=1, px=320, cvp='9.0.36_3.20.56_9.41.76_3.61.94_9.81.116_9.121.156_9.161.192_0.175.207_1.188.220_9.202.234_0.215.247_1.228.260_9.242.274_0.255.287_1.268.300_9.282.314_0.295.0_1.307.0', fold=1, g2c=1,
         gbc=73, gzp=700, gzl=730, yin=0, np='az', cpo='a8', gz2=0, sp1=20, sp2=15, sp3=5, s2d=0, gap=445, gal=500, nal=3, gac=61, gbp=570, gbl=625, nbl=1, gyc=33, gyr=44, gyv='45_54', gx='12_24')
def f2h(x): return "0x%08x"%struct.unpack("<I",struct.pack("<f",x))[0]
S_Q,S_K,S_V,S_SK,S_SSM,S_D,S_BX,S_W1,S_B1,S_W2,S_B2,S_OUT,S_DBG,S_WS=16,18,20,22,24,26,28,30,32,34,36,38,40,42
WS="s[44:47]"; RW1="s[48:51]"; RW2="s[52:55]"; RA="s[56:59]"; RB_="s[60:63]"; RC="s[64:67]"
NONCE,N1,M1,N2,KQ,LW,LH,TID=68,69,70,71,72,73,74,75
K1,K2,KA=76,84,18
NB_SD=2048*576*2
FLAG1=WS_FLAGS; FLAG2=WS_FLAGS+32768; FLAGK=WS_FLAGS+65536
SLOT=16384; HR=7*SLOT; HS=12288
LN_STR=1216; LN_ST=144896; KV_ST=LN_ST+8*LN_STR
OOB="0x40000000"
def P(r): return f"v[{r}:{r+1}]"
def Q(r,k="v"): return f"{k}[{r}:{r+3}]"
def flat(x): return sum(x,[])
def hphys(d,o,t):
    return [f"v_lshrrev_b32 v{t}, 7, v{o}", f"v_mul_u32_u24 v{t+1}, 9363, v{t}", f"v_lshrrev_b32 v{t+1}, 16, v{t+1}", f"v_mad_i32_i24 v{t}, v{t+1}, -7, v{t}", f"v_cmp_lt_u32 vcc, 2, v{t}",
            f"v_addc_co_u32 v{t+1}, vcc, 0, v{t+1}, vcc", f"v_lshl_add_u32 v{d}, v{t+1}, 7, v{o}"]
def lines(items):
    out=[]
    for it in items:
        l=it.split("\n"); last=max([i for i,x in enumerate(l) if x.startswith(("s_cselect","s_addc","s_subb"))],default=-1); i=0
        while i<len(l):
            j=i
            if l[i].startswith(("s_cmp","s_bitcmp")):
                j=i+1
                while j+1<=last and not l[j+1].startswith(("s_cmp","s_bitcmp")): j+=1
            out.append("\n".join(l[i:j+1])); i=j+1
    return out

def stamp(a,c,fine=None):
    if OPT.get("probe") is not None:
        if fine is None and c==OPT["probe"]: a("s_memrealtime s[28:29]\ns_waitcnt lgkmcnt(0)")
        return
    if OPT.get("fine") and fine!=OPT["fine"] and c!=14: return
    if fine and not OPT.get("fine"): return
    if OPT["stamps"]:
        a(f"s_memrealtime s[28:29]\ns_memtime s[0:1]\ns_waitcnt lgkmcnt(0)\nv_writelane_b32 v254, s28, {c}\nv_writelane_b32 v254, s0, {16+c}")
def stamps_out(a):
    a(f"s_lshl_b32 s4, s{TID}, 2\ns_add_u32 s4, s4, s3\ns_lshl_b32 s4, s4, 7\ns_add_u32 s4, s4, {WS_STAMP}\nv_lshlrev_b32 v255, 2, v2\ns_mov_b64 exec, 0xffffffff")
    a(f"buffer_store_dword v254, v255, {WS}, s4 offen")

def unpack(dst,src): return [f"v_and_b32 v{dst+1}, 0xffff0000, v{src}", f"v_lshlrev_b32 v{dst}, 16, v{src}"]
def reduce32(r,t):
    L=[f"v_add_f32_dpp v{r}, v{r}, v{r} row_ror:{sh} row_mask:0xf bank_mask:0xf" for sh in (8,4,2,1)]
    return L+[f"v_mov_b32 v{t}, v{r}", f"v_permlane16_swap_b32 v{r}, v{t}", f"v_add_f32 v{r}, v{r}, v{t}"]
def rbf(r): return [f"v_cvt_pk_bf16_f32 v{r}, v{r}, v{r}", f"v_lshlrev_b32 v{r}, 16, v{r}"]
NEG1="op_sel_hi:[1,0] neg_lo:[0,1] neg_hi:[0,1]"
def ln_fused(X,T,M,RS,D,ST):
    L=[f"v_pk_add_f32 {P(T+2*i)}, {P(X+4*i)}, {P(X+4*i+2)}" for i in range(4)]
    L+=[f"v_pk_add_f32 {P(T)}, {P(T)}, {P(T+2)}", f"v_pk_add_f32 {P(T+4)}, {P(T+4)}, {P(T+6)}", f"v_pk_add_f32 {P(T)}, {P(T)}, {P(X+16)}", f"v_pk_add_f32 {P(T)}, {P(T)}, {P(T+4)}"]
    L+=[f"v_add_f32 v{M}, v{T}, v{T+1}"]+reduce32(M,M+1)+[f"v_mul_f32 v{M}, 0x3ae38e39, v{M}"]
    L+=[f"v_pk_add_f32 {P(X+2*j)}, {P(X+2*j)}, {P(M)} {NEG1}" for j in range(9)]
    L+=[f"v_pk_mul_f32 {P(T)}, {P(X)}, {P(X)}", f"v_pk_mul_f32 {P(T+2)}, {P(X+2)}, {P(X+2)}"]
    L+=[f"v_pk_fma_f32 {P(T+2*(j&1))}, {P(X+2*j)}, {P(X+2*j)}, {P(T+2*(j&1))}" for j in range(2,9)]
    L+=[f"v_pk_add_f32 {P(T)}, {P(T)}, {P(T+2)}", f"v_add_f32 v{RS}, v{T}, v{T+1}"]+reduce32(RS,RS+1)
    L+=[f"v_mul_f32 v{RS}, 0x3ae38e39, v{RS}"]
    L+=[f"v_cvt_pk_bf16_f32 v{T}, v{M}, v{RS}", f"v_lshlrev_b32 v{ST}, 16, v{T}", f"v_and_b32 v{T}, 0xffff0000, v{T}",
        f"v_add_f32 v{T}, 0x3727c5ac, v{T}", f"v_sub_f32 v{M}, v{M}, v{ST}"]+rbf(T)+[f"v_sqrt_f32 v{T}, v{T}"]+rbf(T)+[f"v_rcp_f32 v{ST+1}, v{T}"]
    L+=[f"v_mul_f32 v{M}, v{M}, v{ST+1}", f"v_mul_f32 v{RS}, v{RS}, v{ST+1}", f"v_mul_f32 v{RS}, v{RS}, v{ST+1}",
        f"v_cvt_pk_bf16_f32 v{T}, v{M}, v{RS}", f"v_lshlrev_b32 v{T+1}, 16, v{T}", f"v_and_b32 v{T}, 0xffff0000, v{T}",
        f"v_add_f32 v{T}, 0x3727c5ac, v{T}", f"v_sub_f32 v{M}, v{M}, v{T+1}"]+rbf(T)+[f"v_sqrt_f32 v{T}, v{T}"]+rbf(T)+[f"v_rcp_f32 v{T}, v{T}"]
    L+=[f"v_mul_f32 v{RS}, v{ST+1}, v{T}", f"v_mul_f32 v{M}, v{M}, v{T}"]
    L+=[f"v_pk_fma_f32 {P(X+2*j)}, {P(X+2*j)}, {P(RS)}, {P(M)} op_sel_hi:[1,0,0]" for j in range(9)]
    L+=[f"v_cvt_pk_bf16_f32 v{D+j}, v{X+2*j}, v{X+2*j+1}" for j in range(9)]
    return L

VW2,RB2,RR,VA,SA,B8,PV,XO=4,10,14,19,26,27,28,252
AF,L16,PA1,PE1,PA2,PE2,PD_,XF,NN,YP,RB8,SA8,PY,SB,RVS,WV=104,136,137,138,139,140,141,144,164,184,186,18,188,192,204,220
SYA,SZ,SR0,SR1,SMA,SM8,ST8,SY0,SC16,SST,SMB,SMZ,SYB,SY8=30,31,32,33,34,35,36,37,40,42,11,12,15,16
KU=18
ACC1,HF,BIAS,VW1,RW1B,VH,RH,GT=32,80,144,148,152,156,159,160
NT=18
MP="s_bfe_u32 s{}, s2, 0x20003"

def w2reg(t): return ("a",16*t) if t<16 else ("v",WV+16*(t-16))
def w2dma(t,slot):
    L=[f"s_add_u32 m0, s{LW}, {slot*SLOT}\ns_lshl_b32 s14, s{K2+t}, 18"]
    return L+[f"buffer_load_dwordx4 v{VW2+r}, {RW2}, s14 offen offset:{1024*r} lds ; @w2_{t}" for r in range(4)]
class W2R:
    def __init__(self): self.win=0
    def goto(self,w):
        d=(w-self.win)*65536; self.win=w
        return [f"v_add_u32 v{RB2+nt}, {d}, v{RB2+nt}" for nt in range(2)] if d else []
    def reads(self,t,slot):
        kind,r0=w2reg(t); adj=self.goto(slot>>2); L=[]
        for nt in range(2):
            for ks in range(2):
                for hf in range(2):
                    r=r0+8*ks+4*nt+2*hf
                    s=f"ds_read_b64_tr_b16 {kind}[{r}:{r+1}], v{RB2+nt} offset:{(slot&3)*SLOT+4096*ks+2048*hf} ; @r2_{t}"
                    L.append((adj[nt]+"\n" if adj and ks+hf==0 else "")+s)
        return L
def w2setup():
    L=["v_lshrrev_b32 v24, 3, v2","v_and_b32 v25, 7, v2","v_bfe_u32 v31, v2, 4, 2","v_lshlrev_b32 v31, 1, v31","v_xor_b32 v25, v25, v31","v_lshlrev_b32 v24, 12, v24","v_lshl_add_u32 v24, v25, 4, v24",
       w2base(7)+f"\ns_lshl_b32 s8, s{N2}, 7\ns_add_u32 s7, s7, s8\nv_add_u32 v{VW2}, s7, v24"]
    L+=[f"v_add_u32 v{VW2+i}, {32768-1024}, v{VW2+i-1}" for i in range(1,4)]
    L+=["v_lshrrev_b32 v24, 2, v2","v_lshlrev_b32 v24, 7, v24","v_and_b32 v25, 3, v2","v_lshl_add_u32 v24, v25, 3, v24",f"s_and_b32 s7, s{LW}, 8192\nv_add_u32 v24, s7, v24","v_bfe_u32 v31, v2, 3, 2",
        "s_and_b32 s7, s3, 1\ns_lshl_b32 s7, s7, 1\nv_xor_b32 v31, s7, v31",f"v_lshl_add_u32 v{RB2}, v31, 5, v24",f"v_xor_b32 v{RB2+1}, 32, v{RB2}"]
    return L
def w2base(d): return f"s_mul_i32 s{d}, s{KQ}, 36\ns_bitcmp1_b32 s3, 0\ns_addc_u32 s{d}, s{d}, 0\ns_lshl_b32 s{d}, s{d}, 17"
def k2table():
    q=K2+17; L=[MP.format(q)+f"\ns_mul_i32 s{q}, s{q}, 3"]
    if OPT["fol"]:
        nl=lambda j: j%9 if OPT["jm"] else j//3
        f=[[([k for k in range(4) if 4*c+k<27 and (p+nl(4*c+k))%4==1]+[7])[0] for c in range(8)] for p in range(4)]
        t=[sum(x<<(3*c) for c,x in enumerate(r)) for r in f]
        L=[f"s_mov_b32 s7, {t[0]}"]+[f"s_cmp_eq_u32 s{KQ}, {p}\ns_cselect_b32 s7, {t[p]}, s7" for p in (1,2,3)]
        L+=[f"s_lshr_b32 s8, s2, 5\ns_mul_i32 s8, s8, 3\ns_lshr_b32 s7, s7, s8\ns_and_b32 s7, s7, 7\n"+MP.format(8),
            f"s_cmp_gt_u32 s8, s7\ns_subb_u32 s{q}, s8, 0", f"s_lshl_b32 s{q}, s{q}, 2", f"s_cmp_eq_u32 s8, s7\ns_cselect_b32 s{q}, {OPT['fol']-1}, s{q}", "s_mul_i32 s8, s8, 3", f"s_cmp_eq_u32 s7, 7\ns_cselect_b32 s{q}, s8, s{q}"]
    b=0; ws=[int(x) for x in str(OPT["w2w"]).split("_")]; assert sum(ws)==18 and ws[-1]>1
    for W in ws:
        L.append(f"s_mul_i32 s{K2+b}, s{K2+17}, {W*21846}\ns_lshr_b32 s{K2+b}, s{K2+b}, 18\ns_add_u32 s{K2+b}, s{K2+b}, {b}")
        L+=[f"s_add_u32 s{K2+i}, s{K2+i-1}, 1\ns_cmp_eq_u32 s{K2+i}, {b+W}\ns_cselect_b32 s{K2+i}, {b}, s{K2+i}" for i in range(b+1,b+W)]
        b+=W
    return L
def kutable():
    return ["s_bitcmp1_b32 s3, 1\n"+"\n".join(f"s_cselect_b32 s{KU+u}, s{K2+2*u+1}, s{K2+2*u}\ns_mul_i32 s{KU+u}, s{KU+u}, {2*U2_KS}" for u in range(9))]
def eprep():
    return [f"v_and_b32 v24, 15, v2\ns_lshl_b32 s7, s{N2}, 6\nv_add_u32 v24, s7, v24\ns_and_b32 s8, s3, 1\ns_lshl_b32 s4, s8, 5\nv_add_u32 v25, s4, v24\nv_lshlrev_b32 v{SA}, 3, v25",
            f"v_mul_u32_u24 v25, 1152, v25\nv_bfe_u32 v31, v2, 4, 1\nv_lshl_add_u32 v25, v31, 5, v25\nv_lshrrev_b32 v31, 5, v2\nv_lshl_add_u32 v25, v31, 4, v25\n"+MP.format(7)+"\ns_mul_i32 s7, s7, 288",
            f"s_lshl_b32 s4, s{KQ}, 6\ns_add_u32 s4, s4, s7\nv_add_u32 v{XO}, s4, v25\ns_xor_b32 s8, s3, s{KQ}\ns_and_b32 s4, s{KQ}, 1\ns_lshl1_add_u32 s4, s4, s8\nv_lshl_add_u32 v24, s4, 4, v24",
            f"s_add_u32 s7, s7, 256\ns_cmp_lt_u32 s8, 2\ns_cselect_b32 s7, s7, {OOB}\nv_lshlrev_b32 v{SA8}, 3, v24\nv_mul_u32_u24 v24, 1152, v24\nv_lshrrev_b32 v31, 4, v2\nv_lshl_add_u32 v24, v31, 3, v24\nv_add_u32 v{XO+1}, s7, v24"]

COLD=[]
def flag_prep(idx_sgpr, base, v=1):
    f=OPT["fpl"]
    return [f"s_lshr_b32 s4, s{idx_sgpr}, {f}\ns_lshl_b32 s4, s4, 7\ns_and_b32 s5, s{idx_sgpr}, {(1<<f)-1}\ns_lshl2_add_u32 s4, s5, s4\ns_add_u32 s4, s4, {base}",
            f"v_min_u32 v{v}, 1, v0\nv_lshlrev_b32 v{v}, 30, v{v}\nv_add_u32 v{v}, s4, v{v}"]
def flag_store(a): a(f"v_mov_b32 v3, s{NONCE}\nbuffer_store_dword v3, v1, {WS}, 0 offen sc1 ; @fl")
def pv(tag): return PY if tag[:2]=="p3" else 15 if tag=="p2G" else PV
def poll_addr(first_expr, n, base, v=PV):
    f=OPT["fpl"]
    return [first_expr+f"\nv_min_u32 v{v}, {n-1}, v2", f"v_add_u32 v{v}, s4, v{v}", f"v_and_b32 v{v+1}, {(1<<f)-1}, v{v}", f"v_lshrrev_b32 v{v}, {f}, v{v}",
            f"v_lshlrev_b32 v{v}, 7, v{v}", f"v_lshl_add_u32 v{v}, v{v+1}, 2, v{v}", f"v_add_u32 v{v}, {base}, v{v}"]
def atom(tag): return tag[1] in str(OPT["ap"])
def pexp(tag): return f"s{NONCE}" if tag=="p1X" else {"1":"v12","2":"v13","5":"v12"}[tag[1]]
def poll_op(tag):
    v=pv(tag)
    return f"v_mov_b32 v{v+1}, 0\nbuffer_atomic_add v{v+1}, v{v}, {WS}, 0 offen sc0 sc1" if atom(tag) else f"buffer_load_dword v{v+1}, v{v}, {WS}, 0 offen sc1"
def poll_issue(tag): return poll_op(tag)+f" ; @{tag}"
def poll_check(tag):
    v=pv(tag); sl=f"s_sleep {OPT['sleep']}\n" if OPT["sleep"] else ""; ex=pexp(tag) if atom(tag) else "s83" if (tag[:2]=="p2" and OPT["pw0"]==1) else f"s{NONCE}"
    pre=""
    if tag=="p2G" and OPT["ct"]:
        pre=f"v_and_b32 v24, 31, v2\nv_lshlrev_b32 v24, 12, v24\n"+w2base(4)+f"\ns_lshl_b32 s7, s{N2}, 7\ns_add_u32 s4, s4, s7\nv_add_u32 v24, s4, v24\nv_lshrrev_b32 v25, 5, v2\n"
        for t in range(18-OPT["ct"],18,2): pre+=f"s_sub_u32 s4, s{K2+t+1}, s{K2+t}\nv_mul_i32_i24 v31, s4, v25\nv_add_u32 v31, s{K2+t}, v31\nv_lshl_add_u32 v31, v31, 18, v24\nbuffer_load_dword v255, v31, {RW2}, 0 offen\n"
    if tag[:2]=="p2" and OPT["pw0"]==2: pre+=f"s_cmp_lg_u32 s3, 0\ns_cbranch_scc1 L_rx_{tag}\n"
    n=OPT["ppl"] if (tag[:2]=="p2" and atom(tag)) else 0
    if n and not any(c.startswith(f"L_rs_{tag}:") for c in COLD):
        op=lambda k: f"v_mov_b32 v{RVS+k}, 0\nbuffer_atomic_add v{RVS+k}, v{v}, {WS}, 0 offen sc0 sc1\ns_sleep {OPT['psl']}\n"
        COLD.append(f"L_rs_{tag}:\ns_mov_b32 s5, 0\n"+"".join(op(k) for k in range(n-1))+f"L_rt_{tag}:\n"
            +"".join(op((k+n-1)%n)+f"s_waitcnt vmcnt({n-1})\nv_cmp_ne_u32 vcc, {ex}, v{RVS+k}\ns_cbranch_vccz L_ok_{tag}\n" for k in range(n))
            +f"s_add_u32 s5, s5, 1\ns_cmp_lt_u32 s5, {OPT['spinmax']}\ns_cbranch_scc1 L_rt_{tag}\ns_branch L_ok_{tag}")
    if not any(c.startswith(f"L_rs_{tag}:") for c in COLD): COLD.append(f"L_rs_{tag}:\n{pre}s_mov_b32 s5, 0\nL_rt_{tag}:\ns_mov_b64 exec, vcc\n{sl}"
            f"{poll_op(tag)}\ns_waitcnt vmcnt(0)\nv_cmp_ne_u32 vcc, {ex}, v{v+1}\ns_cbranch_vccz L_rx_{tag}\n"
            f"s_add_u32 s5, s5, 1\ns_cmp_lt_u32 s5, {OPT['spinmax']}\ns_cbranch_scc1 L_rt_{tag}\nL_rx_{tag}:\ns_mov_b64 exec, -1\ns_branch L_ok_{tag}")
    return f"@W {tag}\nv_cmp_ne_u32 vcc, {ex}, v{v+1}\ns_cbranch_vccnz L_rs_{tag}\nL_ok_{tag}:"
def split_check(c):
    l=c.split("\n"); k=[i for i,x in enumerate(l) if x.startswith("s_cbranch_vcc")]
    if not k: return l[:-2]+["\n".join(l[-2:])]
    k=k[0]; return l[:k-1]+[l[k-1]+" ; #"+l[k].split()[1], far("\n".join(l[k:]))]
def poll1_addr():
    if atom("p1"):
        return [f"s_lshr_b32 s4, s2, 1\ns_and_b32 s4, s4, {OPT['repk']-1}\ns_lshl2_add_u32 s4, s4, s3\ns_lshl_b32 s4, s4, 8\ns_add_u32 s4, s4, {FLAGK}\nv_lshl_add_u32 v{PV}, v2, 2, s4"]
    return poll_addr("s_lshl_b32 s4, s3, 6",64,FLAGK if OPT["hf"] else FLAG1)
def flag2_prep(v):
    R=OPT["rep"]; k=R.bit_length()-1
    return [f"s_mul_i32 s4, s{M1}, 43691\ns_lshr_b32 s4, s4, 16\ns_mul_i32 s5, s{M1}, 21846\ns_lshr_b32 s5, s5, 16\ns_mul_i32 s5, s5, 3\ns_sub_u32 s5, s{M1}, s5",
            f"s_lshl2_add_u32 s4, s{KQ}, s4\ns_lshl_b32 s4, s4, {7+k}\ns_mul_i32 s7, s{KQ}, 9\ns_sub_u32 s7, s{N1}, s7\ns_lshl3_add_u32 s4, s7, s4\ns_add_u32 s4, s4, {FLAG2}",
            f"s_cmp_eq_u32 s5, 1\ns_cselect_b32 s7, {2*R}, {R}", f"s_cmp_lg_u32 s5, 0\ns_cselect_b32 s5, 4, 0",
            f"v_lshlrev_b32 v{v}, 7, v0\nv_add_u32 v{v}, s4, v{v}\nv_cmp_gt_u32 vcc, {R}, v0\nv_mov_b32 v24, s5\nv_cndmask_b32 v24, 0, v24, vcc\nv_add_u32 v{v}, v{v}, v24",
            f"v_cmp_gt_u32 vcc, s7, v0\nv_mov_b32 v24, {OOB}\nv_cndmask_b32 v{v}, v24, v{v}, vcc"]
def poll2_addr(v=PV):
    if OPT["rep"]:
        R=OPT["rep"]; k=R.bit_length()-1; assert atom("p2") and OPT["pw0"]==1
        L=[MP.format(4)+f"\ns_lshl2_add_u32 s4, s{KQ}, s4\ns_lshl_b32 s4, s4, {k}"]
        if R>1: L+=[f"s_lshr_b32 s5, s2, 4\ns_and_b32 s5, s5, {R-2}\ns_add_u32 s4, s4, s5\ns_and_b32 s5, s2, 1\ns_add_u32 s4, s4, s5"]
        return L+[f"s_lshl_b32 s4, s4, 7\ns_add_u32 s4, s4, {FLAG2}\nv_lshl_add_u32 v{v}, v2, 2, s4",
                  f"s_cmp_eq_u32 s3, 0\ns_cselect_b32 s4, 18, 0\nv_cmp_gt_u32 vcc, s4, v2\nv_mov_b32 v13, {OOB}\nv_cndmask_b32 v{v}, v13, v{v}, vcc\nv_mov_b32 v13, s{NONCE}\nv_cndmask_b32 v13, 0, v13, vcc"]
    L=poll_addr(f"s_mul_i32 s4, s{KQ}, 54\n"+MP.format(5)+"\ns_mul_i32 s5, s5, 3\ns_lshr_b32 s5, s5, 1\ns_add_u32 s4, s4, s5",18,FLAG2,v)
    L=L[:1]+[f"v_lshrrev_b32 v{v+1}, 1, v{v}", f"v_lshl_add_u32 v{v}, v{v+1}, 2, v{v}"]+L[1:]
    if atom("p2"):
        assert OPT["pw0"]
        L+=[(f"s_cmp_eq_u32 s3, 0\ns_cselect_b32 s4, 18, 0" if OPT["pw0"]==1 else "s_mov_b32 s4, 18")+f"\nv_cmp_gt_u32 vcc, s4, v2\nv_mov_b32 v13, {OOB}\nv_cndmask_b32 v{v}, v13, v{v}, vcc\nv_mov_b32 v13, s{NONCE}\nv_cndmask_b32 v13, 0, v13, vcc"]
    elif OPT["pw0"]==1: L+=[f"s_cmp_eq_u32 s3, 0\ns_cselect_b32 s83, s{NONCE}, 0\ns_cselect_b32 s4, 0, {OOB}\nv_add_u32 v{v}, s4, v{v}"]
    return L

def warm(name):
    if not OPT["iw"]: return []
    return [f"s_mov_b64 exec, 0\ns_call_b64 s[82:83], L_wc_{name}\ns_mov_b64 exec, -1"]

KR,VR,TR=60,82,98
KL=HR; VL=HR+12672; KLX=8192
def p0(a):
    a(f".globl {KN}\n.p2align 8\n.type {KN},@function\n{KN}:")
    a("s_cmp_lt_u32 s2, 256\ns_cbranch_scc0 L_exit")
    a("s_load_dwordx2 s[56:57], s[0:1], 0\ns_load_dwordx2 s[48:49], s[0:1], 8\ns_load_dwordx2 s[52:53], s[0:1], 16\ns_load_dwordx2 s[60:61], s[0:1], 24")
    a("s_load_dwordx16 s[16:31], s[0:1], 0\ns_load_dwordx8 s[32:39], s[0:1], 64\ns_load_dwordx4 s[40:43], s[0:1], 96\ns_memrealtime s[12:13]")
    a("v_lshrrev_b32 v1, 6, v0\nv_and_b32 v2, 63, v0")
    nl=OPT["cpl"]; red=OPT["cpr"]
    a(f"s_getpc_b64 s[6:7]\nL_pc:\ns_lshr_b32 s4, s2, 1\ns_and_b32 s4, s4, {(128>>red)-4}\nv_add_u32 v22, s4, v1\nv_lshl_add_u32 v22, v2, {7-red}, v22\nv_lshlrev_b32 v22, 7, v22")
    a(f"v_min_u32 v22, L_end-L_pc-4, v22\ns_mov_b64 exec, {(1<<nl)-1}\nglobal_load_dword v255, v22, s[6:7] ; @code\ns_mov_b64 exec, -1\nv_readfirstlane_b32 s3, v1")
    if OPT["rgm"]: a(f"s_and_b32 s4, s2, 7\ns_lshr_b32 s5, s2, 3\ns_lshl_b32 s4, s4, 5\ns_add_u32 s{NONCE}, s4, s5")
    else: a(f"s_mov_b32 s{NONCE}, s2")
    a(f"v_lshrrev_b32 v3, 5, v0\nv_and_b32 v4, 31, v0\nv_mul_u32_u24 v5, 1152, v3\nv_mad_u32_u24 v5, v4, 12, v5\ns_mul_i32 s15, s{NONCE}, 9216")
    a(f"s_mul_i32 s4, s3, 3072\ns_add_u32 s5, s4, s15\ns_sub_u32 s5, s5, 3456\nv_lshlrev_b32 v6, 4, v2\nv_add_u32 v7, s5, v6\nv_add_u32 v58, 1024, v7")
    a(f"s_add_u32 s4, s4, {KL}\ns_lshl_b32 s5, s3, 11\ns_add_u32 s11, s5, s15\ns_add_u32 s5, s5, {VL}\ns_cmp_lt_u32 s2, 216\ns_cselect_b32 s9, 0, {KL-KLX}\ns_sub_u32 s4, s4, s9\ns_sub_u32 s5, s5, s9\ns_mov_b32 m0, s4")
    for r,nb in ((56,NB_SD),(48,NB_SD),(52,NB_SD),(60,576*8)): a(f"s_mov_b32 s{r+2}, {nb}\ns_mov_b32 s{r+3}, 0x20000")
    a("v_lshlrev_b32 v59, 3, v0\ns_movk_i32 s10, 4096\nv_lshlrev_b32 v91, 3, v2\nv_or_b32 v22, s2, v0\nv_lshlrev_b32 v22, 8, v22\ns_mov_b32 s66, 256\ns_mov_b32 s67, 0x20000")
    a("s_waitcnt lgkmcnt(0)")
    stamp(a,1,"P")
    xld=[f"buffer_load_dwordx3 v[{8+4*j}:{10+4*j}], v5, {RA}, s15 offen offset:{384*j} ; @x" for j in range(3)]
    if not OPT["kvf"]: a.extend(xld)
    pub=f"s_or_b32 s12, s12, 1\nv_mov_b32 v23, s12\nbuffer_store_dword v23, v22, {RC}, 0 offen sc1 ; @pub"
    if OPT["pub0"]: a("s_mov_b32 s64, s40\ns_and_b32 s65, s41, 0xffff\n"+pub)
    a("buffer_load_dwordx4 v7, s[48:51], 0 offen lds ; @kv\ns_add_u32 m0, s4, 1024\ns_cmp_eq_u32 s3, 3")
    a("buffer_load_dwordx4 v58, s[48:51], 0 offen lds ; @kv\nbuffer_load_dwordx4 v58, s[48:51], 0 offen offset:1024 lds ; @kv\ns_cbranch_scc1 L_xld\nL_nox:\ns_mov_b32 m0, s5")
    COLD.insert(0,"L_xld:\ns_mov_b64 exec, 0xffffff\nbuffer_load_dwordx4 v58, s[48:51], 0 offen offset:2048 lds\ns_mov_b64 exec, -1\ns_mov_b32 m0, s5\nbuffer_load_dwordx4 v6, s[52:55], s11 offen offset:2048 lds\ns_branch L_nox")
    a(f"buffer_load_dwordx2 {P(TR)}, v59, {RB_}, 0 offen ; @kv")
    a("buffer_load_dwordx4 v6, s[52:55], s11 offen lds ; @kv\nbuffer_load_dwordx4 v6, s[52:55], s11 offen offset:1024 lds ; @kv")
    a(f"buffer_load_dwordx2 {P(TR+2)}, v59, {RB_}, 0 offen offset:2048 ; @kv\nbuffer_load_dwordx2 {P(TR+4)}, v{91 if OPT['k8'] else 59}, {RB_}, s10 offen ; @kv")
    if OPT["kvf"]: a.extend(xld)
    if OPT["stamps"]: a("v_writelane_b32 v254, s12, 0")
    if not OPT["pub0"]: a("s_mov_b32 s64, s40\ns_and_b32 s65, s41, 0xffff\n"+pub)
    stamp(a,2,"P")
    if OPT["wso"]: a(f"s_add_u32 s{S_WS}, s{S_WS}, {OPT['wso']<<20}\ns_addc_u32 s{S_WS+1}, s{S_WS+1}, 0"); assert (OPT["wso"]<<20)+WS_END<=256<<20
    srd(a,44,S_WS,WS_END)
    a("s_and_b32 s5, s2, 7\ns_lshr_b32 s6, s2, 3")
    a("s_lshr_b32 s7, s6, 2\ns_lshr_b32 s8, s3, 1\ns_lshl1_add_u32 s9, s7, s8\ns_cmp_ge_u32 s9, 10\ns_addc_u32 s14, s9, 0\ns_cmp_ge_u32 s9, 3\ns_addc_u32 s14, s14, 0")
    a(f"s_lshl3_add_u32 s8, s8, 3\ns_cmp_eq_u32 s7, 7\ns_cselect_b32 s14, s8, s14\ns_and_b32 s4, s5, 1\ns_lshl4_add_u32 s{N2}, s4, s14")
    a(f"s_lshr_b32 s13, s5, 1\ns_mov_b32 s{KQ}, s13\ns_lshl_b32 s{LW}, s3, 12")
    srd(a,52,S_W2,4608*4096)
    if OPT["smove"]<2: a.extend(k2table())
    a("s_cmp_lt_u32 s6, 27\ns_cbranch_scc0 L_aux")
    if OPT["iw"]==1: a("s_branch L_org\nL_exit:\ns_endpgm\n.p2align 12\nL_org:")
    else: COLD.append("L_exit:\ns_endpgm")

def phaseA(a, tag, fill_ln, fill_kv, fill_post):
    X,T,M,RS,D=20,38,56,18,8
    L=flat([unpack(X+2*j,8+4*(j//3)+j%3) for j in range(9)])+ln_fused(X,T,M,RS,D,106)
    AW,AS,AH,AK,AO,AV,AZ,AK2,AV2=48,49,50,51,52,53,54,55,90; hf=OPT["hf"]; assert hf and atom("p1")
    a(f"s_mov_b32 s9, {LN_ST}\ns_mov_b32 s11, {KL if tag=='G' else KLX}")
    a(f"v_mul_u32_u24 v{AW}, {LN_STR}, v3\nv_mad_u32_u24 v{AW}, v4, 12, v{AW}\nv_add_u32 v{AW}, s9, v{AW}\nv_mov_b32 v47, {OOB}")
    a(f"v_lshlrev_b32 v3, 3, v3\ns_lshl_b32 s5, s{NONCE}, 6\ns_add_u32 s5, s5, {WS_STATS}\nv_cmp_eq_u32 vcc, 0, v4\nv_cndmask_b32 v{AS}, v47, v3, vcc")
    a(f"v_lshrrev_b32 v5, 4, v0\nv_and_b32 v4, 3, v2\nv_lshlrev_b32 v4, 3, v4\nv_lshl_add_u32 v5, v5, 5, v4\nv_bfe_u32 v6, v2, 2, 2\nv_mul_u32_u24 v4, {LN_STR}, v6\nv_mul_u32_u24 v6, 1152, v6")
    a(f"v_add3_u32 v{AH}, v4, v5, s9\nv_add3_u32 v{AK}, v6, v5, s11\ns_mul_i32 s4, s3, {2304-128}\nv_add_u32 v{AK2}, s4, v{AK}")
    a(f"v_lshlrev_b32 v{AO}, 4, v0\ns_add_u32 s7, s15, 4096\ns_add_u32 s8, s15, 8192\ns_cmp_eq_u32 s3, 0\ns_cselect_b32 s8, s8, {OOB}\nv_add_u32 v{AV}, {WS_KVT}, v{AO}\nv_mov_b32 v{AZ}, 0")
    hp=OPT["hp"]; AP=93
    if hp:
        for i in range(3): a(f"v_add_u32 v4, {4096*i}, v{AO}"); a.extend(hphys(AP+i,4,5))
        a(f"s_mul_i32 s10, s{NONCE}, {HG}\ns_add_u32 s10, s10, {WS_HP}\ns_cmp_eq_u32 s3, 0\ns_cselect_b32 s83, s10, {OOB}")
    if hp>1: assert not OPT["k8"]; a(f"s_add_u32 s7, s10, {WS_KP-WS_HP}\ns_add_u32 s8, s83, {WS_KP-WS_HP}")
    a(f"s_mul_i32 s4, s3, 1028\ns_sub_u32 s4, {8192+12}, s4\nv_add_u32 v{AV2}, s4, v{AV}")
    a(f"s_bfe_u32 s6, s{NONCE}, 0x20001\ns_lshl_b32 s6, s6, 6\ns_lshr_b32 s9, s{NONCE}, 3\ns_lshl1_add_u32 s6, s9, s6\ns_and_b32 s9, s{NONCE}, 1\ns_add_u32 s6, s6, s9")
    a(f"s_lshl_b32 s4, s6, 2\ns_add_u32 s4, s4, {FLAG1}\nv_lshl_add_u32 v1, v0, 10, s4\ns_lshl_b32 s4, s{NONCE}, 2\ns_add_u32 s4, s4, {FLAGK}\nv_lshl_add_u32 v46, v0, 10, s4")
    a(f"v_cmp_gt_u32 vcc, {OPT['rep1']}, v0\nv_cndmask_b32 v1, v47, v1, vcc\nv_cmp_gt_u32 vcc, {OPT['repk']}, v0\nv_cndmask_b32 v46, v47, v46, vcc")
    stamp(a,3,"P")
    if OPT.get("fine")=="P":
        a("s_waitcnt vmcnt(12)"); stamp(a,4,"P")
        a("s_waitcnt vmcnt(9)"); stamp(a,5,"P")
        a("s_waitcnt vmcnt(6)"); stamp(a,6,"P")
        a("s_waitcnt vmcnt(4)"); stamp(a,7,"P")
        a("s_waitcnt vmcnt(1)"); stamp(a,8,"P")
        a("s_waitcnt vmcnt(0)"); stamp(a,9,"P")
    kvf=OPT["kvf"]
    ln=["@W x"]+(interleave(L,fill_ln,0,(len(L)-4)*OPT["lne"]//100) if fill_ln else L)+[f"ds_write_b32 v{AW}, v{D+j} offset:{384*(j//3)+4*(j%3)}" for j in range(9)]
    ln+=[f"buffer_store_dwordx2 v[106:107], v{AS}, {WS}, s5 offen sc1 ; @st"]
    hrd=[[f"ds_read_b64_tr_b16 {P(20+4*i)}, v{AH} offset:{512*i} ; @ht{i}", f"ds_read_b64_tr_b16 {P(22+4*i)}, v{AH} offset:{512*i+4*LN_STR} ; @ht{i}"] for i in range(3)]
    so=("s15","s7","s8")
    hst=[f"@W - ht{i}\nbuffer_store_dwordx4 {Q(20+4*i)}, v{AP+i if hp else AO}, {WS}, {('s10','s10','s83')[i] if hp else so[i]} offen sc1 ; @st" for i in range(3)]
    krd=[[f"ds_read_b64_tr_b16 {P(KR+10*i+2*q)}, v{AK} offset:{512*i+1152*(0,4,8,11,15)[q]} ; @kr{i}" for q in range(5)] for i in range(3)]
    k8=OPT["k8"]
    if k8: krd[2]=[f"ds_read_b64_tr_b16 {P(KR+20+2*q)}, v{AK2} offset:{1024+1152*(0,4,11)[q]} ; @kr2" for q in range(3)]
    nonce=f"buffer_load_dword v45, v{AZ}, {RC}, 0 offen sc1 ; @nonce"
    def kvc(i):
        K=KR+10*i; V_=K+6; J=108; T=114; RE=116+8*(i&1); VU=132; O=160+4*i
        L=[f"v_alignbit_b32 v{T}, v{TR+2*i+1}, v{TR+2*i+1}, 16", f"v_alignbit_b32 v{T+1}, v{TR+2*i}, v{TR+2*i}, 16", f"@W - kr{i}"]
        if i==2 and k8:
            L+=[f"v_alignbit_b32 v{J+m}, v{K+m+1}, v{K+m}, 16" for m in range(2)]+[f"v_dot2_f32_bf16 v{RE+r}, v{(K,J)[r]}, v{T}, 0" for r in range(2)]+unpack(VU,K+4)
            L+=[f"v_dot2_f32_bf16 v{RE+r}, v{(K,J)[r]+1}, v{T+1}, v{RE+r}" for r in range(2)]+[f"v_pk_mul_f32 {P(RE)}, {P(RE)}, {P(VU)}", f"v_cvt_pk_bf16_f32 v{O}, v{RE+1}, v{RE}"]
            return L+[f"buffer_store_dword v{O}, v{AV2}, {WS}, s15 offen sc1 ; @stk"]
        L+=[f"v_alignbit_b32 v{J+m}, v{K+m+1}, v{K+m}, 16" for m in range(5)]
        L+=[f"v_dot2_f32_bf16 v{RE+r}, v{(J if r&1 else K)+(r>>1)}, v{T}, 0" for r in range(8)]
        L+=[f"v_dot2_f32_bf16 v{RE+r}, v{(J if r&1 else K)+(r>>1)+1}, v{T+1}, v{RE+r}" for r in range(8)]
        L+=flat([unpack(VU+2*m,V_+m) for m in range(4)])
        L+=[f"v_pk_mul_f32 {P(RE+2*m)}, {P(RE+2*m)}, {P(VU+2*m)}" for m in range(4)]
        L+=[f"v_cvt_pk_bf16_f32 v{O+p}, v{RE+7-2*p}, v{RE+6-2*p}" for p in range(4)]
        return L+[f"buffer_store_dwordx4 {Q(O)}, v{AP+i if hp>1 else AV}, {WS}, {('s7','s7','s8')[i] if hp>1 else so[i]} offen sc1 ; @stk"]
    c0=kvc(0)
    pub=f"@W nonce\nv_readfirstlane_b32 s{NONCE}, v45\ns_cmp_eq_u32 s{NONCE}, 0\ns_cbranch_scc1 L_nw_{tag}\nL_ng_{tag}:\ns_barrier\nv_mov_b32 v3, s{NONCE}\nbuffer_store_dword v3, v1, {WS}, 0 offen sc1 ; @fl"
    L=c0[:8]+interleave(c0[8:],krd[2],0,24)+(kvc(2)+kvc(1) if k8==2 else kvc(1)+kvc(2))
    kv=["@W kv\ns_barrier"]+krd[0]+krd[1]+(interleave(L,fill_kv,10,OPT['kvend']) if fill_kv else L); k=OPT["npre"]
    if kvf:
        a(kv[0]); stamp(a,1); a.extend(kv[1:]+[nonce.replace("v45","v92")]); stamp(a,2)
        a.extend(ln); a(pub.replace("@W nonce","@W nonce 0").replace("v45","v92").replace("v3, v1,","v3, v46,")); stamp(a,15)
        a.extend(flat(hrd)+hst); stamp(a,3)
        a.extend(fill_post); a(f"@W st\ns_barrier\nbuffer_store_dword v3, v1, {WS}, 0 offen sc1 ; @fl")
    else:
        a(ln[0]); stamp(a,1); a.extend(ln[1:]+["@W - 0\ns_barrier"]+flat(hrd)+hst+[nonce]); stamp(a,2)
        a.extend(kv); stamp(a,3)
        a.extend(fill_post[:k]); a(pub); stamp(a,15); a.extend(fill_post[k:])
        a(f"@W stk\ns_barrier\nbuffer_store_dword v3, v46, {WS}, 0 offen sc1 ; @fl")
    COLD.append(f"L_nw_{tag}:\ns_mov_b32 s5, 0\nL_nl_{tag}:\nbuffer_load_dword v45, v{AZ}, {RC}, 0 offen sc1\ns_waitcnt vmcnt(0)\nv_readfirstlane_b32 s{NONCE}, v45\n"
                f"s_cmp_lg_u32 s{NONCE}, 0\ns_cbranch_scc1 L_ng_{tag}\ns_add_u32 s5, s5, 1\ns_cmp_lt_u32 s5, {OPT['spinmax']}\ns_cbranch_scc1 L_nl_{tag}\ns_branch L_ng_{tag}")
    stamp(a,4)

def w2steps(S, n_issue, n_drain, pick):
    steps=[]; R=S["R"]
    def issue():
        t=S["issue"]; s=pick(t,S["free"]) if t<n_issue else None
        if s is None: return []
        S["free"].remove(s); S["slot"][t]=s; S["issue"]+=1
        return w2dma(t,s)
    while True:
        d=issue()
        if not d: break
        steps.append(d)
    prev=None
    while S["drain"]<n_drain:
        t=S["drain"]; S["drain"]+=1; dm=[]
        st=[f"@W w2_{t} "+(f"r2_{prev}" if prev is not None else "-")+"\ns_barrier"]
        if prev is not None: S["free"].append(S["slot"].pop(prev)); dm=issue()
        steps.append(st+interleave(R.reads(t,S["slot"][t]),dm)); prev=t
    if prev is not None:
        S["free"].append(S["slot"].pop(prev)); steps.append([f"@W - r2_{prev}\ns_barrier"]+issue())
    while S["issue"]<n_issue:
        d=issue(); assert d; steps.append(d)
    return steps

def roleG(a):
    if OPT["jm"]: a("s_mul_i32 s12, s6, 7282\ns_lshr_b32 s12, s12, 16\ns_mul_i32 s8, s12, 9\ns_sub_u32 s7, s6, s8")
    else: a("s_mul_i32 s7, s6, 21846\ns_lshr_b32 s7, s7, 16\ns_mul_i32 s8, s7, 3\ns_sub_u32 s12, s6, s8")
    if OPT["ce"]:
        pm=[sorted(range(9),key=lambda n:(p+n)%4!=1) for p in range(4)]; t=[sum(x<<(4*i) for i,x in enumerate(r[:8])) for r in pm]
        a(f"s_mov_b32 s8, {t[0]:#x}"+"".join(f"\ns_cmp_eq_u32 s13, {p}\ns_cselect_b32 s8, {t[p]:#x}, s8" for p in (3,2,1))+"\ns_cselect_b32 s9, 7, 8\ns_lshl_b32 s5, s7, 2\ns_lshr_b32 s8, s8, s5\ns_and_b32 s8, s8, 15\ns_cmp_eq_u32 s7, 8\ns_cselect_b32 s7, s9, s8")
        assert [r[8] for r in pm]==[8,7,8,8]
    a(f"s_mul_i32 s8, s13, 9\ns_add_u32 s{N1}, s8, s7\ns_lshl1_add_u32 s{M1}, s12, s4")
    a(f"s_mul_i32 s8, s{N1}, 6\ns_add_u32 s{TID}, s8, s{M1}")
    srd(a,48,S_W1,2048*4608*2)
    if OPT["hrot"]: a("s_add_u32 s12, s12, s7\ns_mul_i32 s8, s12, 21846\ns_lshr_b32 s8, s8, 16\ns_mul_i32 s8, s8, 3\ns_sub_u32 s12, s12, s8")
    KT=list(range(18,28))+list(range(76,82)); b=0
    KQ_=1 if OPT["hp"] else 73728
    a(f"s_mul_i32 s4, s4, {16*KQ_}")
    for W in [int(x) for x in str(OPT["w1w"]).split("_")]:
        a(f"s_mul_i32 s7, s12, {W*21846}\ns_lshr_b32 s7, s7, 16\ns_mul_i32 s7, s7, {KQ_}\ns_add_u32 s5, s4, {b*KQ_}\ns_add_u32 s{KT[b]}, s7, s5\ns_add_u32 s8, s5, {W*KQ_}")
        for i in range(b+1,b+W): a(f"s_add_u32 s{KT[i]}, s{KT[i-1]}, {KQ_}\ns_cmp_eq_u32 s{KT[i]}, s8\ns_cselect_b32 s{KT[i]}, s5, s{KT[i]}")
        b+=W
    assert b==16
    NW1=16
    a("v_lshrrev_b32 v24, 4, v2\nv_and_b32 v25, 15, v2\nv_lshlrev_b32 v26, 1, v24\nv_xor_b32 v25, v25, v26\nv_mul_u32_u24 v24, 9216, v24\nv_lshl_add_u32 v24, v25, 4, v24")
    a(f"s_mul_i32 s7, s3, {16*9216}\ns_lshl_b32 s8, s{N1}, 8\ns_add_u32 s7, s7, s8\nv_add_u32 v{VW1}, s7, v24\nv_add_u32 v{VW1+1}, {36864-1024}, v{VW1}")
    a(f"v_xor_b32 v24, 128, v{VW1}\nv_add_u32 v{VW1+2}, {2*(36864-1024)}, v24\nv_add_u32 v{VW1+3}, {36864-1024}, v{VW1+2}")
    def w1dma(q,slot):
        L=[f"s_add_u32 m0, s{LW}, {slot*SLOT}\ns_mul_i32 s14, s{KT[q]}, {8*73728//KQ_}"]
        return L+[f"buffer_load_dwordx4 v{VW1+r}, {RW1}, s14 offen offset:{1024*r} lds ; @w1_{q}" for r in range(4)]
    def w1reads(q,slot):
        L=[]
        for ks in range(2):
            for ft in range(2):
                for hf in range(2):
                    r0=16*(q&15)+8*ks+4*ft+2*hf
                    L.append(f"ds_read_b64_tr_b16 a[{r0}:{r0+1}], v{RW1B+2*(slot>>2)+ft} offset:{(slot&3)*SLOT+ks*8192+hf*1024} ; @r1_{q}")
        return L
    rb=["v_bfe_u32 v140, v2, 2, 2","v_lshrrev_b32 v141, 4, v2","v_lshl_add_u32 v142, v141, 3, v140","v_lshlrev_b32 v142, 8, v142","v_and_b32 v143, 3, v2","v_lshl_add_u32 v142, v143, 3, v142",
        "v_and_b32 v141, 1, v141","v_lshl_add_u32 v140, v141, 2, v140","s_lshl_b32 s7, s3, 1","v_xor_b32 v140, s7, v140",f"v_lshl_add_u32 v{RW1B}, v140, 5, v142",f"v_xor_b32 v{RW1B+1}, 32, v{RW1B}",
        f"v_add_u32 v{RW1B+2}, 0x10000, v{RW1B}",f"v_add_u32 v{RW1B+3}, 0x10000, v{RW1B+1}"]
    UA=240; BU=128; ACCF=192; XA=246; RH2=250
    NH=OPT['nh']; NWB=(163840-NH*HS)//SLOT; HB=NWB*SLOT
    rb.append(f"v_and_b32 v24, 15, v2\nv_lshrrev_b32 v25, 4, v2\nv_mul_u32_u24 v26, {U2_PL}, v25\nv_lshl_add_u32 v26, v24, 4, v26")
    rb.append(f"v_mul_u32_u24 v25, 1536, v25\nv_lshl_add_u32 v25, v24, 4, v25\nv_add_u32 v{RH}, {HB}, v25\nv_add_u32 v{RH2}, {3*HS}, v{RH}")
    rb.append(f"s_mul_i32 s7, s3, 18432\ns_xor_b32 s8, s{M1}, 1\ns_mul_i32 s8, s8, 1536\ns_add_u32 s7, s7, s8\nv_lshlrev_b32 v{XA}, 4, v2\nv_add_u32 v{VH}, s7, v{XA}")
    rb.append(f"v_lshrrev_b32 v25, 5, v2\nv_mul_u32_u24 v25, {9216-1536}, v25\nv_add_u32 v{VH+1}, v{VH}, v25\nv_add_u32 v{VH+2}, {9216-1536}, v{VH}\ns_mul_i32 s{LH}, s3, 3072\ns_add_u32 s{LH}, s{LH}, {HB}")
    VH2=(8,9,3); hs=[]
    if OPT["hp"]:
        for hf_,dst in ((1,(VH,VH+1,VH+2)),(0,VH2)):
            hs.append(f"s_xor_b32 s8, s{M1}, {hf_}\ns_mul_i32 s8, s8, 1536\ns_mul_i32 s7, s3, {2*HG}\ns_add_u32 s7, s7, {WS_HP}")
            for r in range(3):
                hs.append(f"v_add_u32 v24, {1024*r}, v{XA}\nv_cmp_lt_u32 vcc, 1535, v24\nv_cndmask_b32 v25, 0, 1, vcc\nv_mad_i32_i24 v24, v25, -1536, v24\nv_add_u32 v24, s8, v24".replace("v_mad_i32_i24 v24, v25, -1536, v24","v_mul_u32_u24 v30, 1536, v25\nv_sub_u32 v24, v24, v30"))
                hs+=hphys(24,24,30)+[f"v_mul_u32_u24 v25, {HG}, v25\nv_add3_u32 v24, v24, v25, s7\nv_subrev_u32 v{dst[r]}, {1024*r}, v24"]
    uset=[f"s_mul_i32 s7, s{M1}, 6\ns_add_u32 s7, s7, {dt}\ns_mul_i32 s8, s7, 7282\ns_lshr_b32 s8, s8, 16\ns_mul_i32 s5, s8, 9\ns_sub_u32 s7, s7, s5\ns_lshl_b32 s7, s7, 2\n"
          f"s_mov_b32 s4, 0xeca86420\ns_mov_b32 s5, 3\ns_lshr_b64 s[4:5], s[4:5], s7\ns_and_b32 s4, s4, 15\ns_lshl4_add_u32 s4, s8, s4\nv_lshl_add_u32 v{UA+dt}, s4, 8, v{UA+5}" for dt in range(6)]
    rb.append(f"v_mov_b32 v{UA+5}, v26")
    if not OPT["rbl"]: a.extend(rb); rb=[]
    first=[]
    slot={q:s_ for q,s_ in enumerate(list(range(NWB,7))+list(range(NWB)))}
    for q in range(7):
        d=w1dma(q,slot[q]); first+=[d[0]+"\n"+d[1]]+d[2:]
    nln,nkv,npost=OPT["nln"],OPT["nkv"],OPT["npost"]
    phaseA(a,"G",*((first[nkv:nln+nkv],first[:nkv]) if OPT["kvf"] else (first[:nln],first[nln:nln+nkv])),first[nln+nkv:nln+nkv+npost]+(warm("G") if OPT["wg"]==0 else [])+(warm("D") if OPT["wd"]==1 else []))
    if OPT["iw"]==2: a("s_branch L_org\n.p2align 12\nL_org:")
    a("L_segG:")
    n0=OPT["n0"]
    a.extend(first[nln+nkv+npost:4*n0 if n0 else 28]); assert not n0 or nln+nkv+npost<=4*n0
    a.extend(rb)
    if OPT["wg"]==1: a.extend(warm("G"))
    if OPT["wd"]==2: a.extend(warm("D"))
    srd(a,56,S_B1,4608*2); srd(a,60,S_B2,4096)
    p1=poll_addr(f"s_and_b32 s4, s{M1}, 1\ns_lshl1_add_u32 s4, s3, s4\ns_lshl_b32 s4, s4, 5",32,FLAG1)
    if atom("p1"):
        assert OPT["hf"]; R1=OPT["rep1"]
        p1=[f"s_and_b32 s4, s{M1}, 1\ns_lshl1_add_u32 s4, s3, s4\ns_lshl_b32 s4, s4, 7\ns_bfe_u32 s5, s2, 0x10003\ns_lshl1_add_u32 s5, s{KQ}, s5\ns_lshr_b32 s5, s5, {3-(R1.bit_length()-1)}"]
        p1+=[f"s_lshl_b32 s5, s5, 10\ns_add_u32 s4, s4, s5\ns_add_u32 s4, s4, {FLAG1}", f"v_lshl_add_u32 v{PV}, v2, 2, s4", "v_cmp_gt_u32 vcc, 32, v2", f"v_mov_b32 v12, {OOB}", f"v_cndmask_b32 v{PV}, v12, v{PV}, vcc", f"v_mov_b32 v12, s{NONCE}\nv_cndmask_b32 v12, 0, v12, vcc"]
    setup=p1+[f"v_lshrrev_b32 v24, 4, v2\nv_lshlrev_b32 v25, 3, v24\ns_lshl_b32 s7, s{N1}, 8\ns_lshl_b32 s8, s3, 6\ns_add_u32 s7, s7, s8\n"
           f"buffer_load_dwordx2 {P(BIAS)}, v25, {RA}, s7 offen ; @bias\nbuffer_load_dwordx2 {P(BIAS+2)}, v25, {RA}, s7 offen offset:32 ; @bias"]+eprep()+w2setup()
    moved=[]
    if OPT["smove"]: moved=setup[8:]; setup=setup[:8]
    nA=OPT["nA"]; nd=max(2,nA-NWB+1)
    per=max(7,(len(setup)+nd-2)//(nd-1))
    assert nd-OPT["lead1"]>=1 and per*(nd-OPT["lead1"])>=7
    nq=7; freeq=[]
    if n0:
        nA,nd=n0,OPT["nd0"]; a.extend(setup); freeq=[(slot[q],-1) for q in range(n0,7)]; del first[4*n0:]
        if OPT["pp"]==0: a(poll_issue("p1G"))
        a("@W w1_1\ns_barrier"); a.extend(w1reads(0,slot[0])+w1reads(1,slot[1]))
        if OPT["pp"]==1: a(poll_issue("p1G"))
        for d in range(2,nd):
            a(f"@W w1_{d}\ns_barrier"); a.extend(w1reads(d,slot[d])); freeq.append((slot[d],-1))
            if OPT["pp"]==d: a(poll_issue("p1G"))
        PRE=Asm(); a.L.append(PRE); a("@W - 0\ns_barrier"); assert nd<=n0 and OPT["pp"]<nd
        for _ in range(OPT["nrf"]):
            slot[nA]=freeq.pop(0)[0]; d=w1dma(nA,slot[nA]); first+=d; first[-5:]=[d[0]+"\n"+d[1]]+d[2:]; nA+=1
    for d in range(0 if not n0 else nd,nd):
        if d%2==0: stamp(a,1+d//2,"A")
        if d==nd-OPT["lead1"]: a(poll_issue("p1G"))
        a(f"@W w1_{d} 0\ns_barrier")
        dm=[]
        if freeq and nq<nA: slot[nq]=freeq.pop(0)[0]; dm=w1dma(nq,slot[nq]); nq+=1
        a.extend(interleave(w1reads(d,slot[d]),dm)); a.extend(setup[d*per:(d+1)*per])
        if slot[d]<NWB: freeq.append((slot[d],-1))
    assert n0 or (nq==nA and nd>7-NWB)
    if OPT["lead1"]==0 and not n0: a(poll_issue("p1G"))
    a.extend(hs)
    PRE1=Asm(); a.L.append(PRE1)
    stamp(a,5)
    a(poll_check("p1G"))
    stamp(a,6); stamp(a,1,"B")
    R=W2R()
    stg=OPT["stg"]; seq=[divmod(j,2) for j in range(64)]
    seq[32-2*stg:32]=[(p,g_) for g_ in range(2) for p in range(16-stg,16)]
    juse=lambda p,f: f(j for j in range(64) if seq[j][0]==p)
    need={p:(juse(p,min)-2)//2 for p in range(1,32)}; avail={p:juse(p-NH,max)//2 for p in range(NH,32)}
    issued_at={q:-9 for q in range(nA)}
    nxt_issue,nxt_drain,acc=nA,nd,OPT.get("acc0",50)
    ep_dma={};ep_rd={};ep_wait={};ep_h={}
    bl=[[int(y) for y in x.split(".")] for x in str(OPT["bursts"]).split("_") if "." in x]
    bursts={x[0]:x[1] for x in bl}; bnn={x[0]:(x[2] if len(x)>2 else OPT["bn"]) for x in bl}
    bq={x[0]:(x[3] if len(x)>3 else OPT["quiet"]) for x in bl}
    quiet=-1; qfrom=-1; nh=OPT['h0']; lim=NW1+OPT['maxb']
    def issue(e):
        nonlocal nxt_issue
        s=freeq.pop(0)[0]; t=nxt_issue; slot[t]=s; issued_at[t]=e; nxt_issue+=1
        ep_dma.setdefault(e,[]).extend(w1dma(t,s) if t<NW1 else w2dma(t-NW1,s))
    for e in range(0,31):
        t=nxt_drain
        if t in issued_at and issued_at[t]+OPT["lat"]+(OPT["quiet"] if (t in bursts or t-1 in bursts) else 0)<=e and (t<NW1 or t<e):
            ep_rd[e]=w1reads(t,slot[t]) if t<NW1 else R.reads(t-NW1,slot[t])
            ep_wait[e]=f"w1_{t}" if t<NW1 else f"w2_{t-NW1}"
            assert t>=NW1 or 2*e+2<juse(t,min), (t,e)
            freeq.append((slot[t],e+2)); nxt_drain+=1
        if qfrom<e<=quiet: continue
        k=len([p for p in (nh,nh+1) if p<32 and avail.get(p,-1)<=e and (p==nh or avail.get(nh,-1)<=e)])
        ep_h[e]=list(range(nh,nh+k)); nh+=k
        assert all(need[p]>=e+2 for p in ep_h[e]), (e,ep_h[e])
        if (k==2 and e>=OPT["e01"]) or e<=quiet: continue
        ok=len([1 for s_,f in freeq if f<=e])
        if nxt_issue in bursts:
            if e>=bursts[nxt_issue] and ok>=bnn[nxt_issue] and nxt_issue<lim:
                qn=bq[nxt_issue]
                for _ in range(bnn[nxt_issue]): issue(e)
                quiet=e+qn+OPT.get("qlag",0); qfrom=e+OPT.get("qlag",0); acc=100
            continue
        acc+=OPT["rate"] if nxt_issue<NW1 else OPT["rate2"]
        if acc>=100 and ok and nxt_issue<lim and not (OPT["q0"]<=e<OPT["q1"]):
            issue(e); acc-=100
            if e<OPT["e2x"] and ok>1 and nxt_issue<NW1: issue(e)
        acc=min(acc,150)
    assert nh==32
    assert nxt_drain>=NW1
    print(f"; B schedule: issue epochs {[issued_at[t] for t in range(nA,nxt_issue)]}; w2 issued {nxt_issue-NW1}, drained {nxt_drain-NW1}; h {''.join(str(len(ep_h.get(e,[]))) for e in range(31))}", file=sys.stderr)
    def hdma(p):
        L=[f"s_add_u32 m0, s{LH}, {(p%NH)*HS}"]
        if OPT["hp"]: return [L[0]+f"\ns_mul_i32 s13, s{KT[p&15]}, {8*HG}"]+[f"buffer_load_dwordx4 v{VH+r if p<16 else VH2[r]}, {WS}, s13 offen offset:{1024*r} sc1 lds ; @h{p}" for r in range(3)]
        if p==16: L=[f"s_and_b32 s13, s{M1}, 1\ns_mul_i32 s13, s13, 3072", "s_sub_u32 s13, s13, 1536"]+[f"v_add_u32 v{VH+r}, s13, v{VH+r}" for r in range(3)]+L
        return L+[f"buffer_load_dwordx4 v{VH+r}, {WS}, s{KT[p&15]} offen offset:{1024*r} sc1 lds ; @h{p}" for r in range(3)]
    def hreads(j):
        p,ks=seq[j]
        pos=[(3*ks+(i>>1),i&1) for i in range(6)]
        return [f"ds_read_b128 {Q(HF+24*(j&1)+4*i)}, v{RH if p%NH<3 else RH2} offset:{(p%NH%3 if p%NH<6 else p%NH-3)*HS+k*6144+dt*256} ; @H{j}" for i,(dt,k) in enumerate(pos)]
    S=dict(R=R, slot={t-NW1:slot[t] for t in range(nxt_drain,nxt_issue)}, free=list(range(NWB,10))+[s for s,_ in freeq], issue=nxt_issue-NW1, drain=nxt_drain-NW1)
    RS0=10-OPT["nsl"]
    def tile(ring):
        fr=[s for s in ((8,9,7,6,5) if ring else range(RS0)) if s in S["free"] and (s>=RS0)==ring]
        if not fr or S["issue"]>=OPT["nC"]: return []
        t=S["issue"]; S["issue"]+=1
        if not ring:
            if "ord" not in S:
                S["ord"]=list(range(t,OPT["nC"])); c=OPT["cfirst"]
                if c in S["ord"]: S["ord"].remove(c); S["ord"].insert(OPT["cpos"],c)
            t=S["ord"].pop(0)
        S["free"].remove(fr[0]); S["slot"][t]=fr[0]; return w2dma(t,fr[0])
    pack=[]
    if OPT["gpf"]:
        assert OPT["ce"] and not OPT["jm"]; np_=OPT["gpf"]
        pack=[f"s_cmp_eq_u32 s{KQ}, 1\ns_cselect_b32 s5, 9, 6\ns_lshr_b32 s4, s2, 3\ns_sub_u32 s4, s4, s5\ns_mul_i32 s7, s4, {(65536+np_-1)//np_}\ns_lshr_b32 s7, s7, 16\ns_mul_i32 s8, s7, {np_}\ns_sub_u32 s8, s4, s8",
              f"s_mul_i32 s8, s8, {64*(2 if np_<=3 else 1)}\ns_lshl4_add_u32 s8, s3, s8\ns_and_b32 s5, s2, 1\ns_lshl_b32 s5, s5, 10\ns_add_u32 s8, s8, s5\ns_add_u32 s8, s8, {64*OPT['pf0']}\ns_mul_i32 s8, s8, 9216",
              f"s_sub_u32 s5, 1, s{KQ}\ns_and_b32 s5, s5, 3\ns_lshl2_add_u32 s7, s7, s5\ns_mul_i32 s5, s{KQ}, 9\ns_add_u32 s5, s5, s7\ns_lshl_b32 s5, s5, 8\ns_add_u32 s8, s8, s5",
              f"s_cmp_lt_u32 s7, 9\ns_cselect_b32 s8, s8, {OOB}\ns_cmp_lt_u32 s4, 27\ns_cselect_b32 s15, s8, {OOB}",
              "v_min_u32 v30, 31, v2\nv_lshrrev_b32 v31, 1, v30\nv_mul_u32_u24 v31, 9216, v31\nv_and_b32 v30, 1, v30\nv_lshl_add_u32 v30, v30, 7, v31",
              f"buffer_load_dword v255, v30, {RW1}, s15 offen ; @pf"]
        PRE.extend(pack[:-1])
    hq=[hdma(p) for p in range(OPT['h0'])]; wq=[first[4*q:4*q+4] for q in range(n0,nA)] if n0 else []
    for c in str(OPT["ord"]):
        q_=hq if c=="h" else wq if c=="w" else [pack[-1:]]
        if c=="p": pack=[]
        if q_: a.extend(q_.pop(0))
    a.extend(flat(hq)+flat(wq)+pack[-1:])
    PRE2=Asm(); a.L.append(PRE2)
    a("@W h0 0\ns_barrier")
    a.extend(hreads(0))
    xs=[f"s_xor_b32 s7, s{TID}, 1\ns_lshl2_add_u32 s7, s7, s3", f"s_mul_i32 s9, s7, 6144\ns_add_u32 s9, s9, {WS_XB}", f"s_lshl_b32 s7, s7, 7\ns_add_u32 s6, s7, {WS_F4}",
        f"s_lshl2_add_u32 s7, s{TID}, s3\ns_mul_i32 s10, s7, 6144", f"s_add_u32 s10, s10, {WS_XB}\ns_lshl_b32 s7, s7, 7", f"s_add_u32 s7, s7, {WS_F4}\nv_mov_b32 v{PV}, s7",
        f"v_add_u32 v{XA+1}, 3072, v{XA}", "v_cmp_eq_u32 vcc, 0, v2", f"v_mov_b32 v{XA+2}, {OOB}", f"v_cndmask_b32 v{XA+2}, v{XA+2}, 0, vcc", f"v_mov_b32 v{XA+3}, s{NONCE}"]
    if atom("p5"): xs+=[f"v_add_u32 v{PV}, v{PV}, v{XA+2}", f"v_cndmask_b32 v12, 0, v{XA+3}, vcc"]
    snd=[[f"v_cvt_pk_bf16_f32 v{ACCF+8*dt+k}, v{ACCF+8*dt+2*k}, v{ACCF+8*dt+2*k+1}" for k in range(4)]+[f"buffer_store_dwordx4 {Q(ACCF+8*dt)}, v{XA+dt//3}, {WS}, s9 offen offset:{1024*(dt%3)} sc1 ; @bs"] for dt in range(6)]
    RV=160
    rcv=[poll_check("p5")]+[f"buffer_load_dwordx4 {Q(RV+4*dt)}, v{XA+dt//3}, {WS}, s10 offen offset:{1024*(dt%3)} sc1 ; @bl" for dt in range(6)]
    EX={}
    early=lines(uset)+xs+["@W bias"]+flat([unpack(BU+2*q,BIAS+q) for q in range(4)])
    if OPT["smove"]: early=lines(moved)+(k2table() if OPT["smove"]>=2 else [])+early
    early+=lines((flag2_prep(17) if OPT["rep"] else flag_prep(TID,FLAG2,17))+poll2_addr(15)+dsetA()+dsetE()+(dsetB() if OPT["hoist"] else []))
    k1,k2=OPT["ap1"],OPT["ap2"]
    kx=[i for i,x in enumerate(early) if f"v{PV}, s7" in x][0]; k1=min(k1,kx)
    PRE1.extend(early[:k1]); PRE2.extend(early[k1:k1+k2]); early=early[k1+k2:]
    a.L=flat([x.L if isinstance(x,Asm) else [x] for x in a.L])
    e0,ne=OPT["je0"],OPT["jen"]; CL={}
    nc=len(early)*OPT["cfrac"]//100; restl=early[nc:]; early=early[:nc]; nr_=29-e0-ne
    for k in range(nr_): EX[e0+ne+k]=restl[k*len(restl)//nr_:(k+1)*len(restl)//nr_]
    print("; early instrs",nc,len(restl),file=sys.stderr)
    wts=[1+OPT["ramp"]*(ne-1-k)/max(1,ne-1)/10 for k in range(ne)]; cs=[int(round(len(early)*sum(wts[:k])/sum(wts))) for k in range(ne+1)]
    for k in range(ne): (CL if OPT["clump"] else EX)[e0+k]=early[cs[k]:cs[k+1]]
    g2=OPT["g2b"]
    for dt,j in enumerate(str(OPT["bsj"]).split("_")): assert int(j)>max(x for x in range(32) if seq[x][1]==dt//3) ; EX[int(j)]=EX.get(int(j),[])+snd[dt]
    EX[OPT["jbf"]]=[f"@W bs\nbuffer_store_dword v{XA+3}, v{XA+2}, {WS}, s6 offen sc1 ; @bf"]
    EX[OPT["jbp"]]=poll_issue("p5").split("\n")
    EX[OPT["jbl"]]=(split_check(rcv[0]) if g2 else rcv[:1])+rcv[1:4]; EX[OPT["jbl"]+1]=rcv[4:]
    ju=OPT["jbu"]; assert ju==57
    EX[ju]=["@W bl"]; BC=[]
    for j in range(64):
        p,ks=seq[j]; e=(j-1)//2; half=(j-1)%2
        mf=[]
        for d in range(3):
            dt=3*ks+d
            for f in range(2):
                ft=f^(dt&1); acc_=Q((ACCF if j<32 else ACC1)+8*dt+4*ft)
                for n_,k in enumerate((1,0) if f else (0,1)):
                    mf.append(f"v_mfma_f32_16x16x32_bf16 {acc_}, {Q(16*(p&15)+8*k+4*ft,'a')}, {Q(HF+24*(j&1)+8*d+4*k)}, "+(acc_ if (n_ or p%16) else "0" if p==0 else Q(BU+4*ft)))
        g=(Gaps2 if g2 else Gaps)(mf)
        if j%8==0: stamp(a,2+j//8,"B")
        if j%4==0 and j<48: stamp(a,1+j//4,"B1")
        if j%4==0 and j>=16: stamp(a,1+(j-16)//4,"B2")
        g.before(0,f"@W - H{j}")
        ks=j&1
        if ks==1:
            tg=[f"h{x}" for x in need if need[x]==e][-1:]+([ep_wait[e]] if e in ep_wait else [])
            g.put([(f"@W {','.join(tg)}\n" if tg else "")+"s_barrier"],0,1)
        hh=ep_h.get(e,[])
        dm=(hdma(hh[0]) if hh else []) if ks==1 else (hdma(hh[1]) if len(hh)>1 else ep_dma.get(e,[]))
        if len(hh)>1 and e in ep_dma:
            allv=hdma(hh[0])+hdma(hh[1])+ep_dma[e]; dm=allv[:len(allv)//2] if ks==1 else allv[len(allv)//2:]
        if j==63:
            dm=flat([tile(True) for _ in range(OPT['n63'])])
        if j<63: g.put(hreads(j+1),1,7)
        if e in ep_rd:
            if g2: g.fit(flat([x.split("\n") for x in ep_rd[e][4*half:4*half+4]]),OPT["rd0"],12)
            else: g.put(ep_rd[e][4*half:4*half+4],7,11)
        if dm:
            if g2>1: g.fit([far(x,1) if (k and "m0," in dm[k-1]) else x for k,x in enumerate(dm)],ks,12,spread=0.3)
            else: g.put(dm,1 if ks==1 else 0,12)
        if j>ju:
            dt=3*(1-ks)+(j-58)//2; L_=[]
            for ft in range(2):
                q=2*dt+ft; A=ACC1+4*q; t=ACCF+4*ft
                L_+=unpack(t,RV+2*q)+unpack(t+2,RV+2*q+1)+[f"v_add_f32 v{A+r}, v{A+r}, v{t+r}" for r in range(4)]
            g.fit(L_,2,11)
        if EX.get(j): g.fit(EX[j],4 if j in (31,32,32-stg) else 0,12)
        if CL.get(j):
            c_=OPT["clump"]; n_=len(CL[j])
            for i in range(c_): g.g[(2*i+1)*12//(2*c_)]+=CL[j][i*n_//c_:(i+1)*n_//c_]
        if OPT.get("gnop") and OPT.get("gn0",0)<=j<OPT["gnop"]:
            for i in range(0,12,OPT.get("gns",3)): g.g[i].append("s_nop 7")
        if OPT.get("gcut") and j<OPT.get("gcj",64): g.mf=[m if (i%OPT["gcut"]) else "s_nop 0" for i,m in enumerate(g.mf)]
        if g2: BC.append(g.over())
        g.emit(a)
    if g2: print("; B cost/kstep"," ".join(f"{x:.0f}" for x in BC),file=sys.stderr)
    stamp(a,7); stamp(a,10,"B"); stamp(a,13,"B2")
    c=0.7978845608028654*2*1.4426950408889634
    BU=HF
    V=[f"v_mov_b32 v{BU+8}, {f2h(-c)}", f"s_mov_b32 s10, {f2h(-c*0.044715)}", f"s_lshl_b32 s9, s{N1}, 2\ns_add_u32 s9, s9, s3\ns_mul_i32 s9, s9, {U2_KS}\ns_add_u32 s9, s9, {WS_U2}"]
    for g in range(3):
        A=ACC1+16*g; T=GT; O=HF+16+8*g
        V+=[f"v_pk_mul_f32 {P(T+2*j)}, {P(A+2*j)}, {P(A+2*j)}" for j in range(8)]
        V+=[f"v_pk_fma_f32 {P(T+2*j)}, {P(T+2*j)}, s[10:11], {P(BU+8)} op_sel_hi:[1,0,0]" for j in range(8)]
        V+=[f"v_pk_mul_f32 {P(T+2*j)}, {P(T+2*j)}, {P(A+2*j)}" for j in range(8)]
        V+=[f"v_exp_f32 v{T+j}, v{T+j}" for j in range(16)]
        V+=[f"v_pk_add_f32 {P(T+2*j)}, {P(T+2*j)}, 1.0 op_sel_hi:[1,0]" for j in range(8)]
        V+=[f"v_rcp_f32 v{T+j}, v{T+j}" for j in range(16)]
        V+=[f"v_pk_mul_f32 {P(A+2*j)}, {P(A+2*j)}, {P(T+2*j)}" for j in range(8)]
        V+=[f"v_cvt_pk_bf16_f32 v{O+j}, v{A+2*j}, v{A+2*j+1}" for j in range(8)]
        V+=[f"buffer_store_dwordx4 {Q(O+4*h)}, v{UA+2*g+h}, {WS}, s9 offen sc1 ; @ust" for h in range(2)]
    a("@W - 0")
    fill=flat([tile(True) for _ in range(OPT["nin"])])
    if OPT.get("nogelu"): V=[x for x in V if not x.startswith(("v_exp","v_rcp","v_pk"))]
    a.extend(interleave(V,fill,0,len(V)-40) if fill else V)
    stamp(a,8)
    if OPT["wd"]==0: a.extend(warm("D"))
    old=sorted(S["slot"]); pe=OPT["pe"]; flag=f"buffer_store_dword v{XA+3}, v17, {WS}, 0 offen sc1 ; @fl"
    if OPT["cw"]: a(f"@W w2_{old[-1]}\ns_barrier")
    else:
        a("@W ust\ns_barrier\n"+flag); stamp(a,9)
        if pe==0: a(poll_issue("p2G"))
    stamp(a,1,"C")
    new=flat([tile(False) for _ in range(OPT["nc1"])])
    rd=flat([R.reads(t,S["slot"][t]) for t in old])
    a.extend(interleave(rd,new,len(rd)*OPT["c1s"]//100,len(rd)*OPT["c1e"]//100) if new else rd); stamp(a,2,"C")
    a.extend(kutable())
    if OPT["cw"]: a(f"@W ust r2_{old[-1]}\ns_barrier\n"+flag); stamp(a,9)
    else: a(f"@W - r2_{old[-1]}\ns_barrier")
    stamp(a,3,"C")
    for t in old: S["free"].append(S["slot"].pop(t))
    S["drain"]=old[-1]+1
    k=0
    while True:
        if pe==k+1: a(poll_issue("p2G"))
        d=tile(False)
        if not d: break
        a.extend(d); k+=1; stamp(a,3+k,"C")
    if pe>k+1: a(poll_issue("p2G"))
    assert S["issue"]==OPT["nC"]
    print("; C: drained",old,"resident",S["slot"], file=sys.stderr)
    stamp(a,13,"C")
    return S

CV_IMG=36864; CV_H0=2*CV_IMG; CV_COPY=4160; CV_BUF=2*CV_COPY
def roleX_A(a):
    if OPT["iw"]==1: a(".p2align 12")
    a("L_aux:")
    if OPT["smove"]>=2: a.extend(k2table())
    a(f"s_lshl2_add_u32 s7, s5, s6\ns_add_u32 s7, s7, 188\ns_add_u32 s8, s5, 248\ns_cmp_eq_u32 s6, 27\ns_cselect_b32 s{TID}, s8, s7")
    srd(a,48,S_SSM,576*4096)
    a(f"v_lshlrev_b32 v240, 4, v2\ns_mul_i32 s{LH}, s3, {2*CV_BUF}\ns_add_u32 s{LH}, s{LH}, {CV_H0}\ns_sub_u32 s{N1}, s{TID}, 216")
    a(f"s_lshl_b32 s{M1}, s{N1}, 4\ns_add_u32 s{M1}, s{M1}, s3\ns_lshl_b32 s12, s{M1}, 12\ns_lshl_b32 s{M1}, s{M1}, 1")
    d=cv_hdma(0); d=[d[0]+"\n"+d[1]]+d[2:]; k=OPT["cvs"]
    phaseA(a,"X",d[:k],[],d[k:]+warm("X"))
    a("L_segX:")
    if OPT["pfw"]:
        srd(a,64,S_W1,2048*4608*2)
        a(f"s_lshr_b32 s4, s2, 3\ns_sub_u32 s4, s4, 27\ns_lshl2_add_u32 s4, s4, s3\ns_lshr_b32 s5, s4, 1\ns_mul_i32 s7, s5, 21846\ns_lshr_b32 s7, s7, 16\ns_mul_i32 s8, s7, 3\ns_sub_u32 s5, s5, s8")
        a(f"s_sub_u32 s8, 1, s{KQ}\ns_and_b32 s8, s8, 3\ns_lshl2_add_u32 s7, s7, s8\ns_and_b32 s4, s4, 1\ns_lshl_b32 s4, s4, 5\ns_lshl_b32 s5, s5, 7\ns_add_u32 s4, s4, s5\ns_and_b32 s5, s2, 1\ns_lshl_b32 s5, s5, 10\ns_add_u32 s4, s4, s5")
        a(f"s_add_u32 s4, s4, {64*OPT['pf0']}\ns_mul_i32 s4, s4, 9216\ns_mul_i32 s5, s{KQ}, 9\ns_add_u32 s5, s5, s7\ns_lshl_b32 s5, s5, 8\ns_add_u32 s4, s4, s5\ns_cmp_lt_u32 s7, 9\ns_cselect_b32 s4, s4, {OOB}")
        a("v_lshrrev_b32 v24, 1, v2\nv_mul_u32_u24 v24, 9216, v24\nv_and_b32 v25, 1, v2\nv_lshl_add_u32 v24, v25, 7, v24")
        for i in range(OPT["pfw"]): a(f"buffer_load_dword v255, v24, {RC}, s4 offen ; @pf\ns_add_u32 s4, s4, {64*9216}")
    a(f"s_cmp_lt_u32 s{TID}, 252\ns_cbranch_scc0 L_idle")
def xsetup():
    t=Asm(); srd(t,60,S_B2,4096)
    return warm("D")+[i.text for i in t.L]+eprep()+w2setup()+dsetA()+kutable()
def nX(): return OPT["nX"]
XS={}
def cv_hdma(c):
    L=[f"s_add_u32 m0, s{LH}, {(c&1)*CV_BUF+32}\ns_add_u32 s13, s12, {16384*c}"]
    return L+[f"buffer_load_dwordx4 v240, {RW1}, s13 offen offset:{1024*i} lds ; @hc{c}" for i in range(4)]
def conv(a):
    ACC=32; S0=64; T=192; U=208; BT=212
    VHD,BA,FX,EB,YO,DR,AB,BB,DV,VK=240,241,242,243,8,9,236,244,248,15
    R=W2R(); kp_=OPT["hp"]>1; GS_=HG if kp_ else 9216
    srd(a,56,S_D,576*2)
    def dload(c): return f"v_mov_b32 v{DR}, {8*c}\nbuffer_load_ushort v{DR}, v{DR}, {RA}, s{M1} offen ; @hd{c}"
    a(dload(0))
    fold=OPT["fold"]
    def dbuild(): return [] if fold else [f"v_lshl_or_b32 v{DR}, v{DR}, 16, v{DR}"]+[f"v_and_b32 v{DV+k}, v{DR}, v{U+k}" for k in range(4)]
    if not fold:
        a(f"v_and_b32 v196, 15, v2\nv_lshrrev_b32 v197, 4, v2\nv_lshlrev_b32 v197, 3, v197\nv_add_u32 v196, v196, v197\nv_sub_u32 v196, 15, v196")
        a("v_and_b32 v197, 1, v196\nv_lshlrev_b32 v197, 4, v197\nv_mov_b32 v198, 0xffff\nv_lshlrev_b32 v197, v197, v198\nv_ashrrev_i32 v196, 1, v196")
        for k in range(4): a(f"v_cmp_eq_u32 vcc, {k}, v196\nv_cndmask_b32 v{U+k}, 0, v197, vcc")
    a.extend(poll1_addr())
    a(f"v_add_u32 v{BA}, s{LH}, v{VHD}\nv_cmp_eq_u32 vcc, 0, v2\nv_mov_b32 v196, 4136\nv_cndmask_b32 v196, v196, 30, vcc\nv_add_u32 v{FX}, s{LH}, v196")
    a(f"v_bfe_u32 v196, v2, 3, 2\nv_mul_u32_u24 v196, {CV_COPY}, v196\nv_and_b32 v197, 7, v2\nv_lshl_add_u32 v196, v197, 2, v196\nv_add_u32 v200, s{LH}, v196")
    a("v_mov_b32 v196, 0\nv_mov_b32 v197, 0\nv_mov_b32 v198, 0\nv_mov_b32 v199, 0\nds_write_b32 v200, v196\nv_lshlrev_b32 v201, 4, v0")
    a(f"ds_write_b128 v201, v[196:199]\nds_write_b128 v201, v[196:199] offset:{CV_IMG}")
    def brd(c):
        o=(c&1)*CV_BUF+32
        return flat([[f"ds_read_b128 {Q(BT+6*i)}, v{BA} offset:{o+1024*i} ; @b{c}", f"ds_read_b32 v{BT+6*i+4}, v{BA} offset:{o+1024*i+16} ; @b{c}"] for i in range(4)])
    def bwr(c):
        o=(c&1)*CV_BUF+CV_COPY; L=[f"ds_write_b16 v{FX}, v{BT} offset:{o}"]
        if fold: L=[f"@W hd{c}", f"v_lshlrev_b32 v{DR}, 16, v{DR}", f"v_lshlrev_b32 v{U}, 16, v{BT}", f"v_add_f32 v{DR}, v{DR}, v{U}", f"v_cvt_pk_bf16_f32 v{DR}, v{DR}, v{DR}",
                    f"ds_write_b16 v{FX}, v{DR} offset:{o}", f"ds_write_b16 v{FX}, v{DR} offset:{o-CV_COPY+2}"]
        for i in range(4):
            t=BT+6*i
            L+=[f"v_alignbit_b32 v{t+k}, v{t+k+1}, v{t+k}, 16" for k in range(4)]+[f"ds_write_b128 v{BA}, {Q(t)} offset:{o+32+1024*i} ; @bw"]
        return L
    if OPT["kp"]==0: a(poll_issue("p1X"))
    a("@W hc0"); a.extend(brd(0))
    a(f"v_lshrrev_b32 v202, 3, v2\nv_and_b32 v203, 7, v2\nv_lshrrev_b32 v204, 1, v202\nv_xor_b32 v203, v203, v204\nv_mul_u32_u24 v202, {GS_}, v202")
    a(f"v_lshl_add_u32 v{VK}, v203, 4, v202\nv_xor_b32 v{VK+1}, 64, v{VK}")
    a(f"v_and_b32 v202, 15, v2\nv_add_u32 v202, 1, v202\nv_and_b32 v203, 1, v202\nv_mul_u32_u24 v203, {CV_COPY}, v203\nv_lshrrev_b32 v202, 1, v202\nv_lshl_add_u32 v203, v202, 2, v203")
    a(f"v_lshrrev_b32 v204, 4, v2\nv_lshl_add_u32 v203, v204, 4, v203\nv_add_u32 v{AB}, s{LH}, v203")
    for p in range(1,4): a(f"v_add_u32 v{AB+p}, 1024, v{AB+p-1}")
    if OPT["kp"]==1: a(poll_issue("p1X"))
    a("@W - b0"); a.extend(bwr(0))
    if OPT["kp"]==2: a(poll_issue("p1X"))
    for v in range(4):
        a(f"v_and_b32 v202, 15, v2\nv_lshlrev_b32 v202, 1, v202\nv_sub_u32 v202, v202, v204\nv_add_u32 v202, {17-4*v}, v202")
        a(f"v_bfe_u32 v203, v202, 1, 3\nv_xor_b32 v203, s3, v203\nv_lshlrev_b32 v203, 4, v203\nv_lshl_add_u32 v{BB+v}, v202, 7, v203")
    a(f"v_and_b32 v202, 15, v2\nv_lshlrev_b32 v202, 5, v202\nv_lshl_add_u32 v{YO}, v204, 3, v202")
    a(f"s_mul_i32 s7, s3, {64*9216}\ns_lshl_b32 s8, s{N1}, 8\ns_add_u32 s7, s7, s8\ns_add_u32 s10, s7, {WS_KVT}\ns_lshl_b32 s9, s3, 13\ns_add_u32 s9, s9, 4096")
    if kp_:
        for d,o in ((10,0),(11,1)):
            a(f"s_lshl1_add_u32 s4, s{N1}, {o}\ns_mul_i32 s5, s4, 9363\ns_lshr_b32 s5, s5, 16\ns_mul_i32 s7, s5, 7\ns_sub_u32 s7, s4, s7\ns_cmp_gt_u32 s7, 2\ns_addc_u32 s4, s4, s5\ns_lshl_b32 s4, s4, 7\ns_mul_i32 s7, s3, {64*HG}\ns_add_u32 s4, s4, s7\ns_add_u32 s{d}, s4, {WS_KP}")
    def rdA(G,c):
        g0=G&7; r=S0+64*(G&1)+4*c; o=(64*g0+512*(c&1))//4; tg=f"f{G}" if c==0 else f"g{G}"
        return [f"ds_read2_b32 {P(r)}, v{AB+(c>>1)} offset0:{o} offset1:{o+1} ; @{tg}", f"ds_read2_b32 {P(r+2)}, v{AB+(c>>1)} offset0:{o+2} offset1:{o+3} ; @{tg}"]
    def rdB(G):
        g0=G&7
        return [f"ds_read_b128 {Q(S0+64*(G&1)+32+4*c)}, v{BB+(g0&3)} offset:{4096*c+(0 if g0>>2 else 2048)} ; @f{G}" for c in range(8)]
    def reads(G):
        if OPT["cch"]:
            L=flat([[rdB(G)[c]]+rdA(G,c) for c in range(8)])
            return [re.sub(r"@[fg]","@f" if i<12 else "@g",x) for i,x in enumerate(L)]
        return rdA(G,0)+rdB(G)+flat([rdA(G,c) for c in range(1,8)])
    a.extend(flat([rdA(0,c) for c in range(8)]))
    if OPT["kp"]==3: a(poll_issue("p1X"))
    if not fold: a("@W hd0"); a.extend(dbuild())
    stamp(a,5)
    a(poll_check("p1X"))
    if not (atom("p1") and OPT["kvb"]): a("s_barrier")
    stamp(a,6); stamp(a,1,"B")
    def kvdma(img):
        return [f"s_add_u32 m0, s9, {img*CV_IMG+i*1024}\ns_add_u32 s13, s{10+img*kp_}, {i*8*GS_+img*128*(not kp_)}\nbuffer_load_dwordx4 v{VK+(i&1)}, {WS}, s13 offen sc1 lds ; @kvi{img}" for i in range(8)]
    a.extend(kvdma(0)+xsetup()+R.goto(2))
    a("@W kvi0 0\ns_barrier")
    a.extend(rdB(0))
    def epi(ch,q):
        A=ACC+4*q; k=T+2*q
        return [f"v_cvt_pk_bf16_f32 v{k}, v{A}, v{A+1}", f"v_cvt_pk_bf16_f32 v{k+1}, v{A+2}, v{A+3}",
                f"buffer_store_dwordx2 {P(k)}, v{YO}, {WS}, s6 offen offset:{512*q} sc1 ; @yst"]
    GS=[]
    for G in range(32):
        ch,rho=divmod(G,8); s=S0+64*(G&1)
        def M(c,q):
            if c<0: return f"v_mfma_f32_16x16x32_bf16 {Q(ACC+4*q)}, {Q(DV)}, {Q(s+32+4*q)}, 0"
            z=fold and rho==0 and q not in seen; seen.add(q)
            return f"v_mfma_f32_16x16x32_bf16 {Q(ACC+4*q)}, {Q(s+4*c)}, {Q(s+32+4*(q-c))}, "+("0" if z else Q(ACC+4*q))
        qmaj = rho==7 or (rho==0 and ch>0); c0=-1 if (rho==0 and not fold) else 0; seen=set(); GP=Gaps2 if OPT["g2c"] else Gaps
        g=GP([M(c,q) for q in range(7,-1,-1) for c in range(c0,q+1)] if qmaj else [M(c,q) for c in range(c0,8) for q in range(max(c,0),8)])
        if OPT["cch"] and not qmaj: seen=set(); g=GP([M(c,q) for q in range(8) for c in ([-1] if c0 else [])+(list(range(q+1)) if q&1==0 else list(range(q,-1,-1)))])
        n=len(g.mf); GS.append(g)
        if qmaj: g.before(0,f"@W - g{G}")
        elif OPT["cch"]: g.before(0,f"@W - f{G}"); g.before(10-4*c0,f"@W - g{G}")
        else: g.before(0,f"@W - f{G}"); g.before(n-28,f"@W - g{G}")
    def late():
      for G,g in enumerate(GS):
        ch,rho=divmod(G,8); n=len(g.mf)
        if ch<3:
            r=[f"@W - b{ch+1}"]+bwr(ch+1)
            rb=OPT["cvb"]
            if rho==rb: g.fit([f"@W hc{ch+1}"]+brd(ch+1),16,36)
            k=len(r)-10
            if rho==rb+1: g.fit(r[:k],4,36)
            if rho==rb+2: g.fit(r[k:]+([] if fold else [f"@W hd{ch+1}"])+dbuild(),0,36)
            if rho==6:
                g.fit([f"v_xor_b32 v{BB+v}, 64, v{BB+v}" for v in range(4)]+([f"v_add_u32 v{BB+v}, {CV_IMG}, v{BB+v}" for v in range(4)] if ch==1 else []),18,36)
                g.fit([f"v_add_u32 v{AB+p}, {CV_BUF if ch%2==0 else -CV_BUF}, v{AB+p}" for p in range(4)],29,36)
        if rho==6: g.fit([f"s_add_u32 s6, s12, {WS_YC+16384*ch}"],0,36)
        if rho==7: g.fit(epi(ch,7),12,20); g.fit(epi(ch,6),20,28); g.fit(epi(ch,5),28,36)
        if rho==0 and ch>0:
            e1,e2=(20,32) if fold else (23,38)
            g.fit(epi(ch-1,4)+epi(ch-1,3)+epi(ch-1,2),0,e1); g.fit(epi(ch-1,1)+epi(ch-1,0),e1,e2)
        if G<31:
            rr=reads(G+1)
            if rho==6:
                if OPT["cch"]:
                    rr=[x for x in rr if "b128" in x]+[x for x in rr if "b128" not in x]; rr=[re.sub(r"@f","@g",x) for x in rr]
                g.fit(rr[:10],0,14); g.fit(rr[10:],14,29)
            else: g.fit(rr,0,n-7 if rho==7 else n-1)
    def place(items, start, length):
        for k,it in enumerate(items):
            x=start+length*k/len(items); G=int(x); g=GS[G]; g.g[int((x-G)*len(g.mf))].append(it)
    flatg=[(G,i) for G,g in enumerate(GS) for i in range(len(g.mf))]; used=set()
    def nextgap(pre, item, start):
        G=int(start); p=flatg.index((G,int((start-G)*len(GS[G].mf))))
        while p in used or p+1 in used: p+=1
        used.update((p,p+1))
        GS[flatg[p][0]].g[flatg[p][1]].append(pre); GS[flatg[p+1][0]].g[flatg[p+1][1]].append(item)
    plan=[[int(y) for y in x.split(".")] for x in str(OPT["cvp"]).split("_")]; assert len(plan)==nX()
    B={102:[[],[],[]],149:[["kvi1"],[],[]],171:[[],[],[]]}; last={}
    for t,(sl,st,dr) in enumerate(plan):
        if dr: B.setdefault(dr,[[],[],[]])[0].append(f"w2_{t}")
        else: XS[t]=sl; assert sl<2 and t>=nX()-2
        assert (sl!=3 or dr<=97) and (sl>1 or st>171) and (not dr or t==0 or dr>=plan[t-1][2]+4)
    for t,(sl,st,dr) in enumerate(plan):
        if sl in last:
            d0=plan[last[sl]][2]+4; assert d0<=st-1,(t,sl); c=[b for b in B if d0<=b<=st-1]
            B.setdefault(max(c) if c else st-1,[[],[],[]])[1].append(last[sl])
        last[sl]=t
    if 3 in last: B[102][1].append(last[3])
    for t,(sl,st,dr) in enumerate(plan):
        if dr: B[dr][2]=flat([x.split("\n") for x in R.reads(t,sl)])
    for b,(vt,lt,rd) in sorted(B.items()): place([f"@W {','.join(vt) or '-'} {f'r2_{max(lt)}' if lt else '-'}\ns_barrier"]+rd,b/10,0.36)
    for t,(sl,st,dr) in enumerate(plan):
        d=w2dma(t,sl); m0,so=d[0].split("\n",1); place([so],st/10,1); ln=min(OPT["cvn"],(plan[t+1][1] if t+1<len(plan) else 319)-st)/10
        for r in range(4): nextgap(m0,d[1+r],st/10+0.03+ln*r/4)
    print("; conv barriers",len(B),file=sys.stderr)
    for ch in range(3):
        d=cv_hdma(ch+1); m0,so=d[0].split("\n",1); st=8*ch+OPT["cvd"]/10
        place([so],st+0.1,1)
        for r in range(4): nextgap(m0,d[1+r],st+0.15+0.22*r)
        place([dload(ch+1)],st+1.25,1)
    for i,it in enumerate(kvdma(1)):
        pre,ld=it.rsplit("\n",1); nextgap(pre,ld,11.2+0.25*i)
    px=OPT["px"]/10; place(lines(poll2_addr()),min(30.05,px-1),0.9)
    if px<32: place(poll_issue("p2X").split("\n"),px,0.1)
    late()
    print("; conv overload", " ".join(f"{g.over():.0f}" for g in GS), file=sys.stderr)
    for G,g in enumerate(GS):
        if G%4==0: stamp(a,2+G//4,"B")
        if 8<=G<=20: stamp(a,G-7,"V")
        if 20<=G: stamp(a,G-19,"W")
        if OPT.get("cvcut"): g.mf=[m if (i%OPT["cvcut"]) else "s_nop 0" for i,m in enumerate(g.mf)]
        g.emit(a)
    if px>=32: a(poll_issue("p2X"))
    for q in range(4,-1,-1): a.extend(epi(3,q))
    stamp(a,7); stamp(a,10,"B"); stamp(a,13,"W")
    a.extend(R.goto(0))
    a("@W - 0\ns_barrier")
    stamp(a,9)
def idle(a):
    a("L_idle:")
    a("s_waitcnt vmcnt(0)\ns_barrier")
    a.extend(xsetup())
    R=W2R()
    if OPT["ipc"]:
        n=OPT["ipc"]*16
        a(f"s_sub_u32 s4, s{TID}, 252\ns_mul_i32 s4, s4, 1152\ns_mul_i32 s5, s3, {n}\ns_add_u32 s4, s4, s5\ns_add_u32 s4, s4, {1152-4*n}\ns_lshl_b32 s4, s4, 12\ns_add_u32 s4, s4, 384\nv_lshlrev_b32 v24, 10, v2")
        for i in range(n//16): a(f"buffer_load_dword v255, v24, {RW2}, s4 offen ; @pf\ns_add_u32 s4, s4, 65536")
    if OPT["ipf"]:
        n=OPT["ipf"]*16
        a(f"s_sub_u32 s4, s{TID}, 252\ns_mul_i32 s4, s4, 1152\ns_mul_i32 s5, s3, {n}\ns_add_u32 s4, s4, s5\ns_add_u32 s4, s4, {1152-4*n}\ns_lshl_b32 s4, s4, 12\nv_and_b32 v25, 7, v2\nv_cmp_eq_u32 vcc, 3, v25\nv_subbrev_co_u32 v24, vcc, 0, v2, vcc\nv_lshlrev_b32 v24, 7, v24")
        for i in range(n//2): a(f"buffer_load_dword v255, v24, {RW2}, s4 offen ; @pf\ns_add_u32 s4, s4, 8192"+("\ns_waitcnt vmcnt(24)" if i>24 else ""))
    n=nX(); S=dict(R=R,slot={},free=list(range(10)),issue=0,drain=0)
    for s in w2steps(S,n,n-2,lambda t,free: (XS[t] if t>=n-2 else ([s for s in free if s>1] or [None])[0])): a.extend(s)
    a.extend(R.goto(0))
    a.extend(warm("D"))
    a.extend(poll2_addr())
    if OPT["isl"]:
        a(f"s_mov_b32 s5, 0\nL_iw:\ns_sleep {OPT['isl']}\n{poll_op('p2X')}\ns_waitcnt vmcnt(0)\nv_cmp_eq_u32 vcc, 0, v13\ns_mov_b64 s[6:7], vcc\nv_cmp_ne_u32 vcc, v13, v{PV+1}\ns_andn2_b64 s[8:9], exec, vcc\ns_andn2_b64 s[8:9], s[8:9], s[6:7]"
          f"\ns_cbranch_scc1 L_ix\ns_cmp_eq_u64 s[6:7], exec\ns_cbranch_scc1 L_ix\ns_add_u32 s5, s5, 1\ns_cmp_lt_u32 s5, {OPT['spinmax']}\ns_cbranch_scc1 L_iw\nL_ix:")
    a(poll_issue("p2X"))
    a("s_branch L_DX")

def dsetA():
    L=[f"v_and_b32 v24, 15, v2\nv_lshrrev_b32 v25, 4, v2\nv_mul_u32_u24 v25, {U2_PL}, v25\nv_lshl_add_u32 v24, v24, 4, v25",
       f"s_mul_i32 s7, s{KQ}, 36\ns_and_b32 s8, s3, 1\ns_add_u32 s7, s7, s8\ns_mul_i32 s7, s7, {U2_KS}\n"+MP.format(8)+f"\ns_lshl_b32 s8, s8, 12\ns_add_u32 s7, s7, s8\ns_add_u32 s7, s7, {WS_U2}\nv_add_u32 v{VA+4}, s7, v24"]
    L+=[f"s_xor_b32 s7, s{KQ}, {b}\nv_lshl_add_u32 v{VA+b}, s7, 10, v{VA+4}" for b in range(4)]
    L.append(f"v_lshlrev_b32 v{RR}, 4, v2\nv_add_u32 v{RR}, {(10-OPT['nsl'])*SLOT}, v{RR}\nv_add_u32 v1, 0x10000, v{RR}")
    return L
def dsetE():
    t=Asm(); srd(t,56,S_Q,NB_SD)
    return [i.text for i in t.L]+[f"s_mov_b32 s{SC16}, {16*1152}\ns_mov_b32 s{SST}, {WS_STATS}"]
def dsetB():
    t=Asm(); srd(t,64,S_OUT,NB_SD); L=[i.text for i in t.L]
    L+=[f"v_lshlrev_b32 v{L16}, 4, v2", w2base(7)+f"\nv_subrev_u32 v{YP}, s7, v{VW2}\nv_subrev_u32 v{YP+1}, s7, v{VW2+1}"]
    L+=[MP.format(4)+f"\ns_mul_i32 s4, s4, 9\ns_lshl1_add_u32 s7, s{KQ}, s4\ns_and_b32 s8, s3, 1\ns_add_u32 s7, s7, s8\ns_lshl_b32 s{SY0}, s7, 16\ns_add_u32 s{SY0}, s{SY0}, {WS_YC}\ns_add_u32 s4, s4, 8\ns_lshl_b32 s{SY8}, s4, 16\ns_add_u32 s{SY8}, s{SY8}, {WS_YC}",
        f"s_sub_u32 s4, s4, s7\ns_lshl_b32 s4, s4, 7\ns_lshl_b32 s7, s7, 7\ns_add_u32 s7, s7, {FLAGY}\nv_bfe_u32 v24, v2, 2, 1\nv_mul_u32_u24 v24, s4, v24\nv_and_b32 v25, 3, v2\nv_lshl_add_u32 v24, v25, 2, v24\nv_add_u32 v{PY}, s7, v24"]
    XA,XB,XZ,X8=(WS_X4+k*(3<<20) for k in range(4))
    L+=[f"s_lshl2_add_u32 s7, s2, s3\ns_mul_i32 s8, s7, 3072\ns_add_u32 s{SMA}, s8, {XA}\ns_add_u32 s{SMB}, s8, {XB}\ns_add_u32 s{SMZ}, s8, {XZ}\ns_lshl_b32 s{SM8}, s7, 12\ns_add_u32 s{SM8}, s{SM8}, {X8}"]
    L+=[f"s_xor_b32 s8, s7, {8*b}\ns_mul_i32 s8, s8, 3072\ns_add_u32 s{d}, s8, {x}" for b,d,x in ((1,SYA,XA),(2,SYB,XB),(3,SZ,XZ))]
    L+=[f"s_andn2_b32 s7, s7, 24\ns_lshl3_add_u32 s7, s3, s7\ns_lshl2_add_u32 s8, s7, s{KQ}\ns_lshl_b32 s8, s8, 10\ns_add_u32 s{SR0}, s8, {X8}\ns_xor_b32 s8, s8, 4096\ns_add_u32 s{SR1}, s8, {X8}",
        f"s_xor_b32 s8, s3, s{KQ}\ns_cmp_lt_u32 s8, 2\ns_cselect_b32 s{SM8}, s{SM8}, {OOB}\ns_cselect_b32 s{SY8}, s{SY8}, {OOB}\ns_cselect_b32 s{ST8}, s{NONCE}, 0",
        f"s_mov_b32 s38, {f2h(-1.4426950408889634)}"]
    L+=[f"s_and_b32 s8, s8, 1\ns_mul_i32 s41, s8, 96\ns_and_b32 s43, s{LW}, 4096"]
    if len(OPT["np"])<3 or OPT["cpo"]: L+=[f"v_lshlrev_b32 v24, 10, v2\nv_add_u32 v24, s{SM8}, v24\ns_add_u32 s7, s{SMA}, 2048\nv_mov_b32 v25, s{ST8}\nv_cmp_gt_u32 vcc, 4, v2\nv_cndmask_b32 v{PE1}, 0, v25, vcc\nv_mov_b32 v25, {OOB}\nv_cndmask_b32 v{PA1}, v25, v24, vcc",
        f"v_writelane_b32 v{PA1}, s7, 4\nv_writelane_b32 v{PE1}, s{NONCE}, 4\nv_min_u32 v{PA2}, 1, v2\nv_lshlrev_b32 v{PA2}, 30, v{PA2}\nv_mov_b32 v{PE2}, 0\nv_writelane_b32 v{PE2}, s{NONCE}, 0"]
    return L
FLAGY=FLAG2+16384
A8,AB=32,(88,40,56,72)
XP,STT,B2,X8=88,96,102,142
def eloads():
    L=[f"v_lshrrev_b32 v30, 2, v{SA}", f"v_lshrrev_b32 v31, 2, v{SA8}"]
    L+=[f"buffer_load_dwordx4 {Q(XP+4*j)}, v{XO}, {RA}, {('0',f's{SC16}')[j]} offen ; @ex" for j in range(2)]+[f"buffer_load_dwordx2 {P(X8)}, v{XO+1}, {RA}, 0 offen ; @ex"]
    L+=[f"buffer_load_dwordx2 {P(STT+2*n)}, v{SA if n<2 else SA8}, {WS}, s{SST} offen offset:{128*(n&1)} sc1 ; @ex" for n in range(3)]
    L+=[f"buffer_load_ushort v{B2+n if n<2 else B8}, v{30+(n>>1)}, {RB_}, 0 offen offset:{32*(n&1)} ; @eb" for n in range(3)]
    return L
def phaseD(a, ac, role, S):
    R=S["R"]; NSL=OPT["nsl"]; RS0=10-NSL; YSL=RS0-1; assert YSL>=4 and OPT["fpl"]==2
    a(f"L_D{role}:")
    us=OPT["usk"]; r1=[("R",0),(1,0),(1,1)]; blk=lambda b:[(b,0),(b,1)]
    groups=[(b,r,u) for rows,ur in ((r1+blk(2),range(us)),(r1,range(us,9)),(blk(2),range(us,9)),(blk(3),range(9)),(blk(0),range(9))) for u in ur for b,r in rows]
    need=[min(i for i,x in enumerate(groups) if x[2]==u) for u in range(9)]
    GS=need[8]//4*4; end={b:max(i for i,x in enumerate(groups) if x[0]==b)+1 for b in ("R",0,1,2,3)}; beg={b:min(i for i,x in enumerate(groups) if x[0]==b) for b in (0,3)}
    def acc(b,r): return A8 if b=="R" else AB[b]+8*r
    mf=[]
    for g_,(b,r,u) in enumerate(groups):
        for n_,nt in enumerate((1,0) if g_&1 else (0,1)):
            c=Q(acc(b,r)+4*nt)
            for i,k in enumerate((3,2,1,0) if n_ else (0,1,2,3)):
                kind,r0=w2reg(2*u+(k>>1))
                mf.append(f"v_mfma_f32_16x16x32_bf16 {c}, {Q(AF+16*(g_&1)+4*k)}, {Q(r0+8*(k&1)+4*nt,kind)}, "+("0" if (i==0 and u==0 and b in ("R",1,2)) else c))
    g=Gaps2(mf); fit0=g.fit
    def fit(L,s_,e_):
        assert not s_<8*GS<e_, ("list crosses the role boundary",L[:2])
        if OPT.get("skipv"): L=[x for x in L if not (x.startswith("v_") and "cmp" not in x and "add_u32" not in x and "xor" not in x and "v_mov" not in x and "lshrrev" not in x and "v_min" not in x and f"v{PV}," not in x)]
        if L: fit0(L,s_,e_)
    g.fit=fit
    def G(x): return int(round(8*x))
    def udma(g_):
        b,r,u=groups[g_]; e=g_//4; o=768 if b=="R" else 512*r
        return [f"s_add_u32 m0, s{LW}, {(RS0+e%NSL)*SLOT+1024*(g_%4)-o}", f"buffer_load_dwordx4 v{VA+(4 if b=='R' else b)}, {WS}, s{KU+u} offen offset:{o} sc1 lds ; @u{e}"]
    def urd(g_): return [f"ds_read_b128 {Q(AF+16*(g_&1)+4*k)}, v{RR if g_//4%NSL<4 else 1} offset:{(g_//4%NSL%4)*SLOT+4096*k+1024*(g_%4)} ; @f{g_}{'ab'[k>>1]}" for k in range(4)]
    PD=(0,1,2,4,5,6,8,9)
    def send(b,so):
        L=[]
        for d in range(8):
            L.append(f"v_cvt_pk_bf16_f32 v{SB+PD[d]}, v{AB[b]+2*d}, v{AB[b]+2*d+1}")
            if d in (2,5,7): L.append(far(f"buffer_store_dwordx4 {Q(SB+PD[d]//4*4)}, v{L16}, {WS}, s{so} offen offset:{PD[d]//4*1024} sc1 ; @xs{b}",1))
        return L
    def rld(h,dst,so,n,tg=True): return [far(f"buffer_load_dwordx4 {Q(dst+4*p)}, v{L16}, {WS}, s{so} offen offset:{1024*p} sc1"+(f" ; @r{h}" if tg else ""),1) for p in range(n)]
    def rchk(h,dst,so,n,tag):
        t=[f"v_bitop3_b32 v{dst+3}, v{dst+3}, v{dst+7}, s{tag} bitop3:0x7e"]+[f"v_bitop3_b32 v{dst+3}, v{dst+3}, v{dst+4*p+3}, s{tag} bitop3:0xf6" for p in range(2,n)]+[f"v_cmp_ne_u32 vcc, 0, v{dst+3}"]
        va,ps,off,ve={"a":(PA1,"0",12,PE1),"8":(PA1,"0",12,PE1),"b":(PA2,f"s{SMB}",2060,PE2),"z":(PA2,f"s{SMZ}",2060,PE2)}[h]
        look="" if h not in OPT["cpo"] else (f"v_mov_b32 v{PD_+46}, 0\nbuffer_atomic_add v{PD_+46}, v{va}, {WS}, {ps} offen offset:{off} sc0 sc1\ns_waitcnt vmcnt(0)\nv_cmp_ne_u32 vcc, v{ve}, v{PD_+46}\ns_cbranch_vccz L_xr_{h}\n"
            f"s_add_u32 s5, s5, 1\ns_cmp_lt_u32 s5, {OPT['spinmax']}\ns_cbranch_scc1 L_xt_{h}\nL_xr_{h}:\n")
        if ac is not None: COLD.append(f"L_xs_{h}:\ns_mov_b32 s5, 0\nL_xt_{h}:\n"+look+"\n".join(rld(h,dst,so,n,False))+"\ns_waitcnt vmcnt(0)\n"+"\n".join(t)
            +f"\ns_cbranch_vccz L_xo_{h}\ns_add_u32 s5, s5, 1\ns_cmp_lt_u32 s5, {OPT['spinmax']}\ns_cbranch_scc1 L_xt_{h}\ns_branch L_xo_{h}")
        return [f"@W r{h}"]+t[:-1]+split_check(t[-1]+("" if OPT.get("nochk") else f"\ns_cbranch_vccnz L_xs_{h}")+f"\nL_xo_{h}:")
    def apoll(h,va,so,off,tg=True): return [f"v_mov_b32 v{PD_}, 0", far(f"buffer_atomic_add v{PD_}, v{va}, {WS}, {so} offen offset:{off} sc0 sc1"+(f" ; @q{h}" if tg else ""),1)]
    def achk(h,va,so,off,ve):
        t=f"v_cmp_ne_u32 vcc, v{ve}, v{PD_}"
        if ac is not None: COLD.append(f"L_as_{h}:\ns_mov_b32 s5, 0\nL_at_{h}:\n"+"\n".join(apoll(h,va,so,off,False))+f"\ns_waitcnt vmcnt(0)\n{t}"
            +f"\ns_cbranch_vccz L_ao_{h}\ns_add_u32 s5, s5, 1\ns_cmp_lt_u32 s5, {OPT['spinmax']}\ns_cbranch_scc1 L_at_{h}\ns_branch L_ao_{h}")
        return [f"@W q{h}"]+split_check(t+("" if OPT.get("nochk") else f"\ns_cbranch_vccnz L_as_{h}")+f"\nL_ao_{h}:")
    def unp(dst,src,ds=range(8)): return flat([unpack(dst+2*d,src+PD[d]) for d in ds])
    late=(dsetE() if role=="X" else [])+(dsetB() if (role=="X" or not OPT["hoist"]) else [])
    stamp(a,10)
    a(poll_check("p2"+role))
    if OPT["pw0"]: a("s_barrier")
    stamp(a,11); stamp(a,1,"D"); stamp(a,1,"D1")
    F0=OPT["f0"]
    for x in range(F0): a.extend(udma(x))
    a.extend(late)
    a.extend([f"v_mov_b32 v{SB+k}, s{NONCE}" for k in (3,7,10,11)])
    a("@W u0\ns_barrier"); a.extend(urd(0))
    nxt=F0; m0busy=set(); quiet=set(flat([list(range(*[int(y) for y in x.split(".")])) for x in str(OPT["uq"]).split("_") if "." in x]))
    for g_ in range(81):
        g.before(8*g_,f"@W - f{g_}a"); g.before(8*g_+2,f"@W - f{g_}b")
        bar=(g_+1)%4==0
        if bar: g.g[8*g_+2].append(f"@W u{(g_+1)//4} -\ns_barrier")
        if g_<80:
            for k,x in enumerate(urd(g_+1)): g.g[8*g_+(3 if bar else OPT["rg"])+k].append(x)
        k=0
        while nxt<81 and k<OPT["ncat"] and nxt//4<=g_//4+NSL-1 and nxt<=g_+OPT["lag"] and g_ not in quiet:
            d=udma(nxt); p=8*g_+(0,6)[k]; assert nxt//4*4-1-g_>=5, (nxt,g_)
            g.g[p].append(d[0]); g.g[p+1].append(d[1]); m0busy.update((p,p+1)); nxt+=1; k+=1
    assert nxt==81
    def addw(e,tag):
        f=g.g[8*(4*e-1)+2]; i=[k for k,x in enumerate(f) if x.startswith(f"@W u{e}") or x.startswith(f"@W w")][0]; w,rest=f[i].split("\n",1); p=w.split()
        if tag[0]=="r": p[2]=tag if p[2]=="-" else p[2]+","+tag
        else: p[1]+=","+tag
        f[i]=" ".join(p)+"\n"+rest
    free=[(s_,0) for s_ in sorted(S["free"]) if s_<YSL+(not OPT["yin"])]; slot=S["slot"]; assert all(s_<RS0 for s_ in slot.values()), slot
    at={t:1+OPT["jd0"] for t in slot}; ti,td=S["issue"],S["drain"]; log=[[],[]]; yfree=0
    ji=[int(x) for x in str(OPT["ji"+role]).split("_") if x!=""]
    def due(t): return min((need[t//2]-3)//4,GS//4-1)
    for e in range(GS//4):
        L=[]; k=0
        while td<NT and at.get(td,99)<=e and (k<OPT["nd"] or any(due(t)-e<t-td+1 for t in range(td,NT))) and k<2:
            assert e<=due(td), (td,e); k+=1
            addw(e,f"w2_{td}"); L+=flat([x.split("\n") for x in R.reads(td,slot[td])]); log[1].append(e)
            addw(e+1,f"r2_{td}")
            if slot[td]!=YSL or not OPT["yin"]: free.append((slot[td],e+1))
            else: yfree=4*e+4
            td+=1
        if L: g.fit(L,32*e-5,32*e+26)
        if ti<NT and e>=ji[len(log[0])] and free and free[0][1]<=e:
            s_,_=free.pop(0); slot[ti]=s_; d=w2dma(ti,s_); m0,so=d[0].split("\n"); n_=1
            ps=[p for p in range(max(0,32*e-5),32*(e+n_)-7) if p not in m0busy and p+1 not in m0busy]
            g.g[ps[0]].append(so)
            for r in range(4):
                want=ps[0]+r*(ps[-1]-ps[0])//4; p=[x for x in ps if x>=want and x not in m0busy and x+1 not in m0busy][0]
                g.g[p].append(m0); g.g[p+1].append(d[1+r]); m0busy.update((p,p+1))
            at[ti]=e+n_+OPT["jlat"]; log[0].append(e); ti+=1
    assert td==NT,(td,ti,log)
    print(f"; D {role}: issue {log[0]} drain {log[1]}",file=sys.stderr)
    for u in range(9):
        if 2*u+1>=S["drain"] and need[u]<GS: g.pre[8*need[u]][0]+=f",r2_{2*u+1}"
    if R.win!=YSL>>2: g.fit(R.goto(YSL>>2),G(GS)-5,G(GS))
    if role=="X":
        g.fit([f"s_sub_u32 s4, s{TID}, 216\ns_lshl_b32 s7, s4, 7", f"s_lshl2_add_u32 s7, s3, s7\ns_add_u32 s7, s7, {FLAGY}", f"s_cmp_lt_u32 s4, 36\ns_cselect_b32 s7, s7, {OOB}",
           f"v_min_u32 v{PV}, 1, v2", f"v_lshlrev_b32 v{PV}, 30, v{PV}", f"v_mov_b32 v{PV+1}, s{NONCE}", f"buffer_store_dword v{PV+1}, v{PV}, {WS}, s7 offen sc1 ; @yf"],0,12)
    E1=end[1]; ga=min(E1+9,45)
    AUTO=dict(gb2=f"{GS-16}_{GS-12}", gbv=f"{GS-6}_{GS}", gx=f"{GS-12}_{GS}", gxv=f"{E1+5}_{E1+15}", gy=GS, gyc=GS+7 if E1-GS>8 else E1+13, gyr=56, gyv="57_64",
              gap=10*ga, gal=10*(ga+7), nal=5, gac=max(56,ga+15), g8c=64, g8f=76, gbp=540 if ga<43 else 570, gbl=600 if ga<43 else 622, nbl=2 if ga<43 else 1)
    O=lambda k: OPT[k] if OPT.get(k,-1)!=-1 else AUTO[k]
    def rng(k): return [G(int(x)) for x in str(O(k)).split("_")]
    def at_(k,L,n=1): g.fit(L,G(O(k)/10),G(O(k)/10+n))
    rs=flat([[f"v_cvt_pk_bf16_f32 v{SB+4*q+h}, v{A8+4*q+2*h}, v{A8+4*q+2*h+1}" for h in range(2)]+[far(f"buffer_store_dwordx4 {Q(SB+4*q)}, v{L16}, {WS}, s{so} offen sc1 ; @xsR",1)] for q,so in enumerate((SR0,SR1))])
    sent={}
    for bs,L,sp in ((("R",1),rs+send(1,SYA),O("sp1")/10),((2,),send(2,SYB),O("sp2")/10),((3,),send(3,SZ),O("sp3")/10)):
        t=end[bs[-1]]+0.5+O("s2d")*(bs==(2,)); assert GS<=t; pc=[]
        for x in L:
            pc.append(x)
            if "store" in x: g.fit(pc,G(t),G(t+min(sp,1.5))); pc=[]; t+=sp
        for b in bs: sent[b]=t-sp+min(sp,1.5)
    p1,p2,p3=("a",PA1,"0",12),("b",PA2,f"s{SMB}",2060),("z",PA2,f"s{SMZ}",2060)
    E=AB[0]; T1,T2,T3=AB[1:]
    def get(p,ve,kp,kl,n,L,t):
        if p[0] not in OPT["np"]: at_(kp,apoll(*p),0.5); L=achk(*p,ve)+L; assert O(kp)>=10*t
        at_(kl,L,n); assert O(kl)>=10*t
    get(p1,PE1,"gap","gal",O("nal"),rld("a",T1,SMA,3)+rld("8",RVS,SM8,4),max(sent[1],sent["R"]))
    g.fit(rchk("a",T1,SMA,3,NONCE)+unp(E,T1),G(O("gac")),G(beg[0])-1)
    get(p2,PE2,"gbp","gbl",O("nbl"),rld("b",T2,SMB,3),sent[2])
    get(p3,PE2,"gzp","gzl",1,rld("z",T3,SMZ,3),sent[3])
    assert O("gbp")>=O("gal")+5 and O("gzp")>=O("gbl")+5
    gb=O("gbc"); assert gb>=beg[0] and gb>=O("gac")+4
    g.fit(rchk("b",T2,SMB,3,NONCE)+unp(T1,T2),G(gb),G(gb+3))
    for r in range(2):
        g_=[x for x in range(gb+3,80) if groups[x-1][:2]==(0,r) and groups[x][:2]==(0,1-r)][0]
        g.fit([f"v_add_f32 v{E+8*r+k}, v{E+8*r+k}, v{T1+8*r+k}" for k in ((0,1,2,3,4,5,6,7) if g_&1 else (4,5,6,7,0,1,2,3))],G(g_)+2,G(g_)+7)
    zt=[str(x) for x in rchk("z",T3,SMZ,3,NONCE)]+unp(T1,T3)
    if O("gz2"):
        at_("gz2",rld("y",RVS,SMZ,3),1); assert O("gz2")>=O("gzl")+10 and O("gz2")>=10*O("g8f")
        zt=[x.replace("L_xs_z","L_z2") for x in zt]+["L_zj:"]
        if ac is not None: COLD.append(f"L_z2:\ns_waitcnt vmcnt(1)\nv_bitop3_b32 v{RVS+3}, v{RVS+3}, v{RVS+7}, s{NONCE} bitop3:0x7e\nv_bitop3_b32 v{RVS+3}, v{RVS+3}, v{RVS+11}, s{NONCE} bitop3:0xf6\n"
            f"v_cmp_ne_u32 vcc, 0, v{RVS+3}\ns_cbranch_vccnz L_xs_z\n"+"\n".join(unp(T1,RVS))+"\ns_branch L_zj")
    of=OPT["ostore"]
    assert (O("gy")>=GS)==(O("gyc")>=GS)==(not OPT["yin"])
    g.fit([poll_issue("p3" if O("gy")>=GS else "p3"+role)],G(O("gy")),G(O("gy")+1))
    g.fit(split_check(poll_check("p3" if O("gyc")>=GS else "p3"+role)),G(O("gyc")),G(O("gyc")+1))
    p=G(O("gyc")+1); assert O("gyc")+1>=yfree
    for q,so in enumerate((SY0,SY8)):
        while any(x in m0busy for x in (p,p+1,p+2)): p+=1
        g.g[p].append(f"s_add_u32 m0, s{LW}, {YSL*SLOT+2048*q}"); m0busy.update((p,p+1,p+2))
        assert (p+2<8*GS)==(O("gyc")<GS)
        for r in range(2): g.g[p+1+r].append(f"buffer_load_dwordx4 v{YP+r}, {WS}, s{so} offen offset:{1024*r} sc1 lds ; @ey")
    assert O("gyr")%4==0 and O("gyr")>=GS and p+3<G(O("gyr")-1); addw(O("gyr")//4,"ey")
    def xq(q,h): return XP+4*(q&1)+2*(q>>1)+h if q<4 else X8+h
    def st(q): return STT+2*(q&1 if q<4 else 2)
    def yq(q,h): return (12,24,28,190,X8)[q]+h
    assert rng("gxv")[1]<=G(O("gyr")) and G(O("gyr")+1)<=rng("gyv")[0] and rng("gyv")[1]<=G(O("g8c")) and rng("gxv")[1]<=G(O("gac"))
    el=eloads(); g.fit(el[:2]+el[-3:],*rng("gb2")); g.fit(el[2:-3],*rng("gx")); assert rng("gx")[1]<=rng("gxv")[0]
    g.fit(["@W eb"]+[f"v_lshlrev_b32 v{T3+k}, 16, v{B2+(k>>2&1)}" for k in range(16)]+[f"v_lshlrev_b32 v{B8}, 16, v{B8}"],*rng("gbv")); assert rng("gb2")[1]<=rng("gbv")[0] and rng("gbv")[1]<G(beg[3])
    xv=["@W ex"]+[f"v_mul_f32 v{STT+2*n}, v{STT+2*n}, v{STT+2*n+1}" for n in range(3)]+[f"v_permlane16_swap_b32 v{XP+4*j+h}, v{XP+4*j+2+h}" for j in range(2) for h in range(2)]
    xv+=flat([unpack(XF+4*q+2*h,xq(q,h)) for q in range(5) for h in range(2)])+[f"v_fma_f32 v{NN+j}, v{XF+j}, v{st(j//4)+1}, -v{st(j//4)}" for j in range(20)]
    g.fit(xv,*rng("gxv"))
    yr=[f"v_xor_b32 v{RB8}, s41, v{RB2}",f"v_add_u32 v{RB8}, s43, v{RB8}"]+[f"ds_read_b64_tr_b16 {P(yq(q,0))}, v{RB2+(q&1) if q<4 else RB8} offset:{(YSL&3)*SLOT+(4096*(q>>1) if q<4 else 2048)} ; @ry" for q in range(5)]
    g.fit(yr,G(O("gyr")),G(O("gyr")+1))
    tv=(8,30)
    yv=["@W - ry"]+flat([unpack(tv[h],yq(q,h))+[f"v_mul_f32 v{NN+4*q+2*h+k}, v{NN+4*q+2*h+k}, v{tv[h]+k}" for k in (1,0)] for q in range(5) for h in range(2)])
    g.fit(yv,*rng("gyv"))
    A=A8; r=A8+4; n=NN+16
    e8=rchk("8",RVS,SM8,4,ST8)+unpack(A,RVS)+unpack(A+2,RVS+1)+[f"v_add_f32 v{A+k}, v{A+k}, v{B8}" for k in range(4)]
    for q in range(1,4): e8+=unpack(r,RVS+4*q)+unpack(r+2,RVS+4*q+1)+[f"v_add_f32 v{A+k}, v{A+k}, v{r+k}" for k in range(4)]
    e8+=[f"v_mul_f32 v{r+k}, s38, v{A+k}" for k in range(4)]+[f"v_exp_f32 v{r+k}, v{r+k}" for k in range(4)]+[f"v_mul_f32 v{n+k}, v{n+k}, v{A+k}" for k in range(4)]
    e8+=[f"v_add_f32 v{r+k}, 1.0, v{r+k}" for k in range(4)]+[f"v_rcp_f32 v{r+k}, v{r+k}" for k in range(4)]+[f"v_fma_f32 v{n+k}, v{n+k}, v{r+k}, v{XF+16+k}" for k in range(4)]
    e8+=[f"v_cvt_pk_bf16_f32 v{X8}, v{n}, v{n+1}",f"v_cvt_pk_bf16_f32 v{X8+1}, v{n+2}, v{n+3}",f"buffer_store_dwordx2 {P(X8)}, v{XO+1}, {RC}, 0 offen {of} ; @o8"]
    g.fit(e8[:-1],G(O("g8c")),G(O("g8f")))
    g.fit(e8[-1:],G(max(O("g8f"),O("gzl")//10+2,O("gz2")//10+2)),G(81))
    g.finish()
    if ac is not None: print("; D cost/group"," ".join(f"{sum(g.load(i) for i in range(8*k,8*k+8)):.0f}" for k in range(81)),file=sys.stderr)
    for i,(m,p_,f) in enumerate(zip(g.mf,g.pre,g.g)):
        if i==8*GS:
            if ac is None: a("s_branch L_Dc"); return
            a=ac; a("L_Dc:")
        if i and i%72==0: stamp(a,1+i//72,"D")
        if i%32==0 and i<12*32: stamp(a,2+i//32,"D1")
        if i%32==0 and i>=9*32: stamp(a,1+i//32-9,"D2")
        a.extend(p_); a(m); a.extend(f)
    stamp(a,12); stamp(a,10,"D"); stamp(a,13,"D2")
    def fin(nt):
        two=lambda f: flat([f(E+4*q,T2+4*q,NN+4*q,q) for q in (nt,nt+2)])
        s1=two(lambda A,r,n,t:[f"v_pk_add_f32 {P(A)}, {P(A)}, {P(T1+4*t)}",f"v_pk_add_f32 {P(A+2)}, {P(A+2)}, {P(T1+4*t+2)}"])
        s1+=two(lambda A,r,n,t:[f"v_pk_mul_f32 {P(r)}, {P(A)}, s[38:39] op_sel_hi:[1,0]",f"v_pk_mul_f32 {P(r+2)}, {P(A+2)}, s[38:39] op_sel_hi:[1,0]"])
        s1+=two(lambda A,r,n,t:[f"v_exp_f32 v{r+k}, v{r+k}" for k in range(4)])
        s1+=two(lambda A,r,n,t:[f"v_pk_mul_f32 {P(n)}, {P(n)}, {P(A)}",f"v_pk_mul_f32 {P(n+2)}, {P(n+2)}, {P(A+2)}"])
        s1+=two(lambda A,r,n,t:[f"v_pk_add_f32 {P(r)}, {P(r)}, 1.0 op_sel_hi:[1,0]",f"v_pk_add_f32 {P(r+2)}, {P(r+2)}, 1.0 op_sel_hi:[1,0]"])
        s1+=two(lambda A,r,n,t:[f"v_rcp_f32 v{r+k}, v{r+k}" for k in range(4)])
        s1+=two(lambda A,r,n,t:[f"v_pk_fma_f32 {P(n)}, {P(n)}, {P(r)}, {P(XF+4*t)}",f"v_pk_fma_f32 {P(n+2)}, {P(n+2)}, {P(r+2)}, {P(XF+4*t+2)}"])
        o=E+4*nt; n0,n1=NN+4*nt,NN+4*nt+8
        s1+=[f"v_cvt_pk_bf16_f32 v{o}, v{n0}, v{n0+1}",f"v_cvt_pk_bf16_f32 v{o+2}, v{n1}, v{n1+1}",f"v_cvt_pk_bf16_f32 v{o+1}, v{n0+2}, v{n0+3}",f"v_cvt_pk_bf16_f32 v{o+3}, v{n1+2}, v{n1+3}",
             f"v_permlane16_swap_b32 v{o}, v{o+2}",f"v_permlane16_swap_b32 v{o+1}, v{o+3}",f"buffer_store_dwordx4 {Q(o)}, v{XO}, {RC}, {('0',f's{SC16}')[nt]} offen {of}"]
        return s1
    a.extend([x for x in zt+fin(0)+fin(1) if not (OPT.get("notail") and x.startswith(("v_exp","v_rcp","v_pk")))])
    stamp(a,13)
    if OPT["stamps"]:
        a("s_waitcnt vmcnt(0)"); stamp(a,14); stamps_out(a)
    if OPT.get("probe") is not None:
        a("s_waitcnt vmcnt(0)"); stamp(a,14)
        if OPT["probe"]==0: a(f"s_mov_b32 s28, s{NONCE}")
        if OPT.get("prole")=="G": a(f"s_cmp_lt_u32 s{TID}, 216\ns_cselect_b32 s28, s28, s{NONCE}")
        if OPT.get("prole")=="X": a(f"s_sub_u32 s4, s{TID}, 216\ns_cmp_lt_u32 s4, 36\ns_cselect_b32 s28, s28, s{NONCE}")
        a("s_add_u32 s28, s28, 6000\ns_mov_b32 s5, 0\nL_spin:\ns_memrealtime s[0:1]\ns_waitcnt lgkmcnt(0)\ns_sub_u32 s4, s0, s28\ns_add_u32 s5, s5, 1\ns_cmp_gt_u32 s5, 20000\ns_cbranch_scc1 L_spe\ns_cmp_lt_i32 s4, 0\ns_cbranch_scc1 L_spin\nL_spe:")
    a("s_endpgm\nL_segE:")

def check_vcc(seg):
    last=None
    for ins in seg.L:
        if "vcc" in ins.w: assert last is None or "#" not in last, (last,ins.text); last=ins.text
        if ins.op.startswith("s_cbranch_vcc"):
            assert last is not None and ("#" not in last or last.split("#")[1]==ins.text.split()[1]), (last,ins.text); last=None
def check_m0(seg):
    cur=None
    for ins in seg.L:
        if "m0" in ins.w: cur=ins.text.split(",")[1].strip()
        if ins.kind=="vmem" and " lds" in ins.text:
            tg=ins.text.split("@")[1]; want={"w":f"s{LW}","h":f"s{LH}","k":"s9"}[tg[0]]
            assert cur==want,(ins.text,cur)
def build(**kw):
    OPT.update(kw)
    hdr=open("cdna_kernels/"+NAME+".s.ref").read().split("; Override launch")[0]
    segs=s0,sG,sDG,sD,sXA,sC,sDX,sI=[Asm() for _ in range(8)]
    p0(s0); R=roleG(sG); roleX_A(sXA); conv(sC); idle(sI); phaseD(sDG,sD,"G",R); n=nX(); phaseD(sDX,None,"X",dict(R=W2R(),slot=dict(XS),free=list(range(2,10)),issue=n,drain=n-2))
    for seg in segs:
        for ins in seg.L:
            m=re.search(r";\s*@(\S+)",ins.text)
            if OPT.get("drop"):
                if ins.kind=="vmem" and m and re.fullmatch(OPT["drop"],m.group(1)): ins.__init__("")
                elif ins.text.startswith("@W"):
                    p=ins.text.split(); tg=[t for t in p[1].split(",") if not re.fullmatch(OPT["drop"],t)]
                    ins.__init__(" ".join(["@W",",".join(tg) or "-"]+p[2:]))
            if OPT.get("dropds") and ins.kind=="ds" and m and re.fullmatch(OPT["dropds"],m.group(1)): ins.__init__("ds_nop ; @"+m.group(1))
            if OPT.get("nt") and ins.kind=="vmem" and m and re.fullmatch(OPT["nt"],m.group(1)):
                ins.__init__(ins.text.replace(" lds ;"," nt lds ;") if " lds ;" in ins.text else ins.text.replace(" ;"," nt ;"))
            if OPT.get("nosc1") and ins.kind=="vmem" and m and re.fullmatch(OPT["nosc1"],m.group(1)): ins.__init__(ins.text.replace(" sc1",""))
    for seg in segs: check_vcc(seg)
    paths=[[s0,sG,sDG,sD],[s0,sXA,sC,sDX,sD],[s0,sXA,sI,sDX,sD]]
    resolve_vm(paths)
    if not OPT.get('drop'): check_pending(paths)
    a=Asm(); a.L=flat([s.L for s in segs]); c=Asm(); c.extend(COLD)
    if OPT["iw"]:
        k=[i for i,x in enumerate(a.L) if x.text==".p2align 12"][0]; a.L=a.L[:k]+c.L+a.L[k:]
    else: a.L+=c.L
    a("L_end:"); a.fix()
    check_m0(sC)
    if OPT["iw"]:
        def disp(cnt):
            d=Asm()
            for nm in "GXD":
                d(f"L_wc_{nm}:")
                for w in range(4):
                    tgt=f"L_pl_{nm}_{w}" if w<cnt[nm] else "L_wret"
                    d(f"s_cmp_eq_u32 s3, {w}\ns_cbranch_scc1 {tgt}" if w<3 else f"s_branch {tgt}")
            d("L_wret:\ns_setpc_b64 s[82:83]")
            return d.L
        k=[i for i,x in enumerate(a.L) if x.text==".p2align 12"][0]
        L,cnt=page_landings(a.L[:k]+disp(dict(G=0,X=0,D=0))+a.L[k:],"L_org",[("G","L_segG","L_Dc"),("X","L_segX","L_idle"),("D","L_Dc","L_segE")])
        n=len(disp(cnt)); a.L=L[:k]+disp(cnt)+L[k+n:]
        print("; landings",cnt,file=sys.stderr)
    return (hdr+"; @launch grid=(256,1,1) block=(256,1,1) lds=163840\n"+'.amdgcn_target "amdgcn-amd-amdhsa--gfx950"\n.text\n'+a.text()
            +'.section .rodata,"a"\n'+kdesc(KN,256,256))
if __name__=="__main__":
    kw={}
    for x in sys.argv[2:]:
        k,v=x.split("=",1); kw[k]=int(v) if v.lstrip("-").isdigit() else v
    open(sys.argv[1],"w").write(build(**kw))
```

```python
import sys, struct, re
from asmlib import *
from layout import *
WS_XB=WS_U; WS_F4=WS_U2+144*U2_KS; WS_X4=WS_F4+1024*128; WS_HP=WS_X4+(13<<20); HG=11264; WS_KP=WS_HP+256*HG; WS_END=WS_KP+256*HG
NAME="recurrent_scan__ssm_conv_h3__mixer_token_mlp__prompt"
KN=NAME+"_kernel"
OPT=dict(stamps=0, nln=4, nkv=0, npost=10, nA=10, rate=100, lat=3, lead1=2, lead2=2, cflag=0, nin=0, spinmax=100000, sleep=0,
         fpl=2, hrot=1, ostore="sc1", cpl=5, cpr=0, w1w='3_3_4_6', rate2=100, q0=0, q1=0, bsj='31_32_33_34_35_36', g2b=1, stg=0, rd0=7, pfw=0, pf0=10, jbf=42, jbp=49, jbl=53, jbu=57, nh=6,
         bursts='16.8_17.12_18.19_19.23', maxb=8, quiet=2, cvs=0, kp=3, bn=1, h0=4, iw=1, kvend=130, n63=2, cch=1, smove=2, je0=0, jen=16, clump=1, ramp=20, cfrac=100,
         rgm=1, w2w='14_4', wd=2, wg=0, hoist=1, pw0=1, hf=1, sg=0, al=1, hp=2, kvf=0, lne=100, ap1=0, ap2=0, jm=0, ce=0, gpf=0, fol=0, wso=0, k8=0, rbl=1, kvb=1, pub0=1, ct=0, ap='12', rep=8, ppl=0, psl=3, isl=16, ipf=0, ipc=4, rep1=8, repk=4, npre=10, n0=7, nd0=5, pp=3, nrf=0, e01=2, e2x=0, ord='h',
         nsl=4, lag=15, f0=8, ncat=2, rg=2, nC=16, nc1=2, cfirst=-1, cpos=0, c1s=0, c1e=100, cw=1, pe=3, jlat=1, jd0=0, nd=1, jiG='2_3', jiX='2_3_4', usk=0, uq='50.55',
         nX=18, cvn=8, cvb=4, cvd='m2_71_151', px=320, cvp='9.0.34_3.13.47_9.39.72_3.52.86_9.95.120_9.135.156_9.174.204_0.186.216_1.198.228_9.210.240_0.222.252_1.234.264_9.246.276_0.258.288_1.270.300_9.282.312_0.294.0_1.306.0', fold=1, g2c=1,
         gbc=73, gzp=700, gzl=730, yin=0, np='az', cpo='a8', gz2=0, go8=0, sp1=20, sp2=15, sp3=5, s2d=0, gap=445, gal=500, nal=3, gac=61, gbp=570, gbl=625, nbl=1, gyc=33, gyr=44, gyv='45_54', gx='16_24')
def f2h(x): return "0x%08x"%struct.unpack("<I",struct.pack("<f",x))[0]
S_Q,S_K,S_V,S_SK,S_SSM,S_D,S_BX,S_W1,S_B1,S_W2,S_B2,S_OUT,S_DBG,S_WS=16,18,20,22,24,26,28,30,32,34,36,38,40,42
WS="s[44:47]"; RW1="s[48:51]"; RW2="s[52:55]"; RA="s[56:59]"; RB_="s[60:63]"; RC="s[64:67]"
NONCE,N1,M1,N2,KQ,LW,LH,TID=68,69,70,71,72,73,74,75
K1,K2,KA=76,84,18
NB_SD=2048*576*2
FLAG1=WS_FLAGS; FLAG2=WS_FLAGS+32768; FLAGK=WS_FLAGS+65536
SLOT=16384; HR=7*SLOT; HS=12288
LN_STR=1216; LN_ST=144896; KV_ST=LN_ST+8*LN_STR
OOB="0x40000000"
def P(r): return f"v[{r}:{r+1}]"
def Q(r,k="v"): return f"{k}[{r}:{r+3}]"
def flat(x): return sum(x,[])
def hphys(d,o,t):
    return [f"v_lshrrev_b32 v{t}, 7, v{o}", f"v_mul_u32_u24 v{t+1}, 9363, v{t}", f"v_lshrrev_b32 v{t+1}, 16, v{t+1}", f"v_mad_i32_i24 v{t}, v{t+1}, -7, v{t}", f"v_cmp_lt_u32 vcc, 2, v{t}",
            f"v_addc_co_u32 v{t+1}, vcc, 0, v{t+1}, vcc", f"v_lshl_add_u32 v{d}, v{t+1}, 7, v{o}"]
def lines(items):
    out=[]
    for it in items:
        l=it.split("\n"); last=max([i for i,x in enumerate(l) if x.startswith(("s_cselect","s_addc","s_subb"))],default=-1); i=0
        while i<len(l):
            j=i
            if l[i].startswith(("s_cmp","s_bitcmp")):
                j=i+1
                while j+1<=last and not l[j+1].startswith(("s_cmp","s_bitcmp")): j+=1
            out.append("\n".join(l[i:j+1])); i=j+1
    return out

def stamp(a,c,fine=None):
    if OPT.get("probe") is not None:
        if fine is None and c==OPT["probe"]: a("s_memrealtime s[28:29]\ns_waitcnt lgkmcnt(0)")
        return
    if OPT.get("fine") and fine!=OPT["fine"] and c!=14: return
    if fine and not OPT.get("fine"): return
    if OPT["stamps"]:
        a(f"s_memrealtime s[28:29]\ns_memtime s[0:1]\ns_waitcnt lgkmcnt(0)\nv_writelane_b32 v254, s28, {c}\nv_writelane_b32 v254, s0, {16+c}")
def stamps_out(a):
    a(f"s_lshl_b32 s4, s{TID}, 2\ns_add_u32 s4, s4, s3\ns_lshl_b32 s4, s4, 7\ns_add_u32 s4, s4, {WS_STAMP}\nv_lshlrev_b32 v255, 2, v2\ns_mov_b64 exec, 0xffffffff")
    a(f"buffer_store_dword v254, v255, {WS}, s4 offen")

def unpack(dst,src): return [f"v_and_b32 v{dst+1}, 0xffff0000, v{src}", f"v_lshlrev_b32 v{dst}, 16, v{src}"]
def reduce32(r,t):
    L=[f"v_add_f32_dpp v{r}, v{r}, v{r} row_ror:{sh} row_mask:0xf bank_mask:0xf" for sh in (8,4,2,1)]
    return L+[f"v_mov_b32 v{t}, v{r}", f"v_permlane16_swap_b32 v{r}, v{t}", f"v_add_f32 v{r}, v{r}, v{t}"]
def rbf(r): return [f"v_cvt_pk_bf16_f32 v{r}, v{r}, v{r}", f"v_lshlrev_b32 v{r}, 16, v{r}"]
NEG1="op_sel_hi:[1,0] neg_lo:[0,1] neg_hi:[0,1]"
def ln_fused(X,T,M,RS,D,ST):
    L=[f"v_pk_add_f32 {P(T+2*i)}, {P(X+4*i)}, {P(X+4*i+2)}" for i in range(4)]
    L+=[f"v_pk_add_f32 {P(T)}, {P(T)}, {P(T+2)}", f"v_pk_add_f32 {P(T+4)}, {P(T+4)}, {P(T+6)}", f"v_pk_add_f32 {P(T)}, {P(T)}, {P(X+16)}", f"v_pk_add_f32 {P(T)}, {P(T)}, {P(T+4)}"]
    L+=[f"v_add_f32 v{M}, v{T}, v{T+1}"]+reduce32(M,M+1)+[f"v_mul_f32 v{M}, 0x3ae38e39, v{M}"]
    L+=[f"v_pk_add_f32 {P(X+2*j)}, {P(X+2*j)}, {P(M)} {NEG1}" for j in range(9)]
    L+=[f"v_pk_mul_f32 {P(T)}, {P(X)}, {P(X)}", f"v_pk_mul_f32 {P(T+2)}, {P(X+2)}, {P(X+2)}"]
    L+=[f"v_pk_fma_f32 {P(T+2*(j&1))}, {P(X+2*j)}, {P(X+2*j)}, {P(T+2*(j&1))}" for j in range(2,9)]
    L+=[f"v_pk_add_f32 {P(T)}, {P(T)}, {P(T+2)}", f"v_add_f32 v{RS}, v{T}, v{T+1}"]+reduce32(RS,RS+1)
    L+=[f"v_mul_f32 v{RS}, 0x3ae38e39, v{RS}"]
    L+=[f"v_cvt_pk_bf16_f32 v{T}, v{M}, v{RS}", f"v_lshlrev_b32 v{ST}, 16, v{T}", f"v_and_b32 v{T}, 0xffff0000, v{T}",
        f"v_add_f32 v{T}, 0x3727c5ac, v{T}", f"v_sub_f32 v{M}, v{M}, v{ST}"]+rbf(T)+[f"v_sqrt_f32 v{T}, v{T}"]+rbf(T)+[f"v_rcp_f32 v{ST+1}, v{T}"]
    L+=[f"v_mul_f32 v{M}, v{M}, v{ST+1}", f"v_mul_f32 v{RS}, v{RS}, v{ST+1}", f"v_mul_f32 v{RS}, v{RS}, v{ST+1}",
        f"v_cvt_pk_bf16_f32 v{T}, v{M}, v{RS}", f"v_lshlrev_b32 v{T+1}, 16, v{T}", f"v_and_b32 v{T}, 0xffff0000, v{T}",
        f"v_add_f32 v{T}, 0x3727c5ac, v{T}", f"v_sub_f32 v{M}, v{M}, v{T+1}"]+rbf(T)+[f"v_sqrt_f32 v{T}, v{T}"]+rbf(T)+[f"v_rcp_f32 v{T}, v{T}"]
    L+=[f"v_mul_f32 v{RS}, v{ST+1}, v{T}", f"v_mul_f32 v{M}, v{M}, v{T}"]
    L+=[f"v_pk_fma_f32 {P(X+2*j)}, {P(X+2*j)}, {P(RS)}, {P(M)} op_sel_hi:[1,0,0]" for j in range(9)]
    L+=[f"v_cvt_pk_bf16_f32 v{D+j}, v{X+2*j}, v{X+2*j+1}" for j in range(9)]
    return L

VW2,RB2,RR,VA,SA,B8,PV,XO=4,10,14,19,26,27,28,252
AF,L16,PA1,PE1,PA2,PE2,PD_,XF,NN,YP,RB8,SA8,PY,SB,RVS,WV=104,136,137,138,139,140,141,144,164,184,186,18,188,192,204,220
SYA,SZ,SR0,SR1,SMA,SM8,ST8,SY0,SC16,SST,SMB,SMZ,SYB,SY8=30,31,32,33,34,35,36,37,40,42,11,12,15,16
KU=18
ACC1,HF,BIAS,VW1,RW1B,VH,RH,GT=32,80,144,148,152,156,159,160
NT=18
MP="s_bfe_u32 s{}, s2, 0x20003"

def w2reg(t): return ("a",16*t) if t<16 else ("v",WV+16*(t-16))
def w2dma(t,slot):
    L=[f"s_add_u32 m0, s{LW}, {slot*SLOT}\ns_lshl_b32 s14, s{K2+t}, 18"]
    return L+[f"buffer_load_dwordx4 v{VW2+r}, {RW2}, s14 offen offset:{1024*r} lds ; @w2_{t}" for r in range(4)]
class W2R:
    def __init__(self): self.win=0
    def goto(self,w):
        d=(w-self.win)*65536; self.win=w
        return [f"v_add_u32 v{RB2+nt}, {d}, v{RB2+nt}" for nt in range(2)] if d else []
    def reads(self,t,slot):
        kind,r0=w2reg(t); adj=self.goto(slot>>2); L=[]
        for nt in range(2):
            for ks in range(2):
                for hf in range(2):
                    r=r0+8*ks+4*nt+2*hf
                    s=f"ds_read_b64_tr_b16 {kind}[{r}:{r+1}], v{RB2+nt} offset:{(slot&3)*SLOT+4096*ks+2048*hf} ; @r2_{t}"
                    L.append((adj[nt]+"\n" if adj and ks+hf==0 else "")+s)
        return L
def w2setup():
    L=["v_lshrrev_b32 v24, 3, v2","v_and_b32 v25, 7, v2","v_bfe_u32 v31, v2, 4, 2","v_lshlrev_b32 v31, 1, v31","v_xor_b32 v25, v25, v31","v_lshlrev_b32 v24, 12, v24","v_lshl_add_u32 v24, v25, 4, v24",
       w2base(7)+f"\ns_lshl_b32 s8, s{N2}, 7\ns_add_u32 s7, s7, s8\nv_add_u32 v{VW2}, s7, v24"]
    L+=[f"v_add_u32 v{VW2+i}, {32768-1024}, v{VW2+i-1}" for i in range(1,4)]
    L+=["v_lshrrev_b32 v24, 2, v2","v_lshlrev_b32 v24, 7, v24","v_and_b32 v25, 3, v2","v_lshl_add_u32 v24, v25, 3, v24",f"s_and_b32 s7, s{LW}, 8192\nv_add_u32 v24, s7, v24","v_bfe_u32 v31, v2, 3, 2",
        "s_and_b32 s7, s3, 1\ns_lshl_b32 s7, s7, 1\nv_xor_b32 v31, s7, v31",f"v_lshl_add_u32 v{RB2}, v31, 5, v24",f"v_xor_b32 v{RB2+1}, 32, v{RB2}"]
    return L
def w2base(d): return f"s_mul_i32 s{d}, s{KQ}, 36\ns_bitcmp1_b32 s3, 0\ns_addc_u32 s{d}, s{d}, 0\ns_lshl_b32 s{d}, s{d}, 17"
def k2table():
    q=K2+17; L=[MP.format(q)+f"\ns_mul_i32 s{q}, s{q}, 3"]
    if OPT["fol"]:
        nl=lambda j: j%9 if OPT["jm"] else j//3
        f=[[([k for k in range(4) if 4*c+k<27 and (p+nl(4*c+k))%4==1]+[7])[0] for c in range(8)] for p in range(4)]
        t=[sum(x<<(3*c) for c,x in enumerate(r)) for r in f]
        L=[f"s_mov_b32 s7, {t[0]}"]+[f"s_cmp_eq_u32 s{KQ}, {p}\ns_cselect_b32 s7, {t[p]}, s7" for p in (1,2,3)]
        L+=[f"s_lshr_b32 s8, s2, 5\ns_mul_i32 s8, s8, 3\ns_lshr_b32 s7, s7, s8\ns_and_b32 s7, s7, 7\n"+MP.format(8),
            f"s_cmp_gt_u32 s8, s7\ns_subb_u32 s{q}, s8, 0", f"s_lshl_b32 s{q}, s{q}, 2", f"s_cmp_eq_u32 s8, s7\ns_cselect_b32 s{q}, {OPT['fol']-1}, s{q}", "s_mul_i32 s8, s8, 3", f"s_cmp_eq_u32 s7, 7\ns_cselect_b32 s{q}, s8, s{q}"]
    b=0; ws=[int(x) for x in str(OPT["w2w"]).split("_")]; assert sum(ws)==18 and ws[-1]>1
    for W in ws:
        L.append(f"s_mul_i32 s{K2+b}, s{K2+17}, {W*21846}\ns_lshr_b32 s{K2+b}, s{K2+b}, 18\ns_add_u32 s{K2+b}, s{K2+b}, {b}")
        L+=[f"s_add_u32 s{K2+i}, s{K2+i-1}, 1\ns_cmp_eq_u32 s{K2+i}, {b+W}\ns_cselect_b32 s{K2+i}, {b}, s{K2+i}" for i in range(b+1,b+W)]
        b+=W
    return L
def kutable():
    return ["s_bitcmp1_b32 s3, 1\n"+"\n".join(f"s_cselect_b32 s{KU+u}, s{K2+2*u+1}, s{K2+2*u}\ns_mul_i32 s{KU+u}, s{KU+u}, {2*U2_KS}" for u in range(9))]
def eprep():
    return [f"v_and_b32 v24, 15, v2\ns_lshl_b32 s7, s{N2}, 6\nv_add_u32 v24, s7, v24\ns_and_b32 s8, s3, 1\ns_lshl_b32 s4, s8, 5\nv_add_u32 v25, s4, v24\nv_lshlrev_b32 v{SA}, 3, v25",
            f"v_mul_u32_u24 v25, 1152, v25\nv_bfe_u32 v31, v2, 4, 1\nv_lshl_add_u32 v25, v31, 5, v25\nv_lshrrev_b32 v31, 5, v2\nv_lshl_add_u32 v25, v31, 4, v25\n"+MP.format(7)+"\ns_mul_i32 s7, s7, 288",
            f"s_bfe_u32 s5, s2, 0x10003\ns_mul_i32 s5, s5, {32*OPT['al']}\ns_lshl_b32 s4, s{KQ}, 6\ns_add_u32 s4, s4, s7\ns_add_u32 s4, s4, s5\ns_lshl_b32 s5, s5, 3\ns_sub_u32 s7, s7, s5\nv_add_u32 v{XO}, s4, v25\ns_xor_b32 s8, s3, s{KQ}\ns_and_b32 s4, s{KQ}, 1\ns_lshl1_add_u32 s4, s4, s8\nv_lshl_add_u32 v24, s4, 4, v24",
            f"s_add_u32 s7, s7, 256\ns_cmp_lt_u32 s8, 2\ns_cselect_b32 s7, s7, {OOB}\nv_lshlrev_b32 v{SA8}, 3, v24\nv_mul_u32_u24 v24, 1152, v24\nv_lshrrev_b32 v31, 4, v2\nv_lshl_add_u32 v24, v31, 3, v24\nv_add_u32 v{XO+1}, s7, v24"]

COLD=[]
def flag_prep(idx_sgpr, base, v=1):
    f=OPT["fpl"]
    return [f"s_lshr_b32 s4, s{idx_sgpr}, {f}\ns_lshl_b32 s4, s4, 7\ns_and_b32 s5, s{idx_sgpr}, {(1<<f)-1}\ns_lshl2_add_u32 s4, s5, s4\ns_add_u32 s4, s4, {base}",
            f"v_min_u32 v{v}, 1, v0\nv_lshlrev_b32 v{v}, 30, v{v}\nv_add_u32 v{v}, s4, v{v}"]
def flag_store(a): a(f"v_mov_b32 v3, s{NONCE}\nbuffer_store_dword v3, v1, {WS}, 0 offen sc1 ; @fl")
def pv(tag): return PY if tag[:2]=="p3" else 15 if tag=="p2G" else PV
def poll_addr(first_expr, n, base, v=PV):
    f=OPT["fpl"]
    return [first_expr+f"\nv_min_u32 v{v}, {n-1}, v2", f"v_add_u32 v{v}, s4, v{v}", f"v_and_b32 v{v+1}, {(1<<f)-1}, v{v}", f"v_lshrrev_b32 v{v}, {f}, v{v}",
            f"v_lshlrev_b32 v{v}, 7, v{v}", f"v_lshl_add_u32 v{v}, v{v+1}, 2, v{v}", f"v_add_u32 v{v}, {base}, v{v}"]
def atom(tag): return tag[1] in str(OPT["ap"])
def pexp(tag): return f"s{NONCE}" if tag=="p1X" else {"1":"v12","2":"v13","5":"v12"}[tag[1]]
def poll_op(tag):
    v=pv(tag)
    return f"v_mov_b32 v{v+1}, 0\nbuffer_atomic_add v{v+1}, v{v}, {WS}, 0 offen sc0 sc1" if atom(tag) else f"buffer_load_dword v{v+1}, v{v}, {WS}, 0 offen sc1"
def poll_issue(tag): return poll_op(tag)+f" ; @{tag}"
def poll_check(tag):
    v=pv(tag); sl=f"s_sleep {OPT['sleep']}\n" if OPT["sleep"] else ""; ex=pexp(tag) if atom(tag) else "s83" if (tag[:2]=="p2" and OPT["pw0"]==1) else f"s{NONCE}"
    pre=""
    if tag=="p2G" and OPT["ct"]:
        pre=f"v_and_b32 v24, 31, v2\nv_lshlrev_b32 v24, 12, v24\n"+w2base(4)+f"\ns_lshl_b32 s7, s{N2}, 7\ns_add_u32 s4, s4, s7\nv_add_u32 v24, s4, v24\nv_lshrrev_b32 v25, 5, v2\n"
        for t in range(18-OPT["ct"],18,2): pre+=f"s_sub_u32 s4, s{K2+t+1}, s{K2+t}\nv_mul_i32_i24 v31, s4, v25\nv_add_u32 v31, s{K2+t}, v31\nv_lshl_add_u32 v31, v31, 18, v24\nbuffer_load_dword v255, v31, {RW2}, 0 offen\n"
    if tag[:2]=="p2" and OPT["pw0"]==2: pre+=f"s_cmp_lg_u32 s3, 0\ns_cbranch_scc1 L_rx_{tag}\n"
    n=OPT["ppl"] if (tag[:2]=="p2" and atom(tag)) else 0
    if n and not any(c.startswith(f"L_rs_{tag}:") for c in COLD):
        op=lambda k: f"v_mov_b32 v{RVS+k}, 0\nbuffer_atomic_add v{RVS+k}, v{v}, {WS}, 0 offen sc0 sc1\ns_sleep {OPT['psl']}\n"
        COLD.append(f"L_rs_{tag}:\ns_mov_b32 s5, 0\n"+"".join(op(k) for k in range(n-1))+f"L_rt_{tag}:\n"
            +"".join(op((k+n-1)%n)+f"s_waitcnt vmcnt({n-1})\nv_cmp_ne_u32 vcc, {ex}, v{RVS+k}\ns_cbranch_vccz L_ok_{tag}\n" for k in range(n))
            +f"s_add_u32 s5, s5, 1\ns_cmp_lt_u32 s5, {OPT['spinmax']}\ns_cbranch_scc1 L_rt_{tag}\ns_branch L_ok_{tag}")
    if not any(c.startswith(f"L_rs_{tag}:") for c in COLD): COLD.append(f"L_rs_{tag}:\n{pre}s_mov_b32 s5, 0\nL_rt_{tag}:\ns_mov_b64 exec, vcc\n{sl}"
            f"{poll_op(tag)}\ns_waitcnt vmcnt(0)\nv_cmp_ne_u32 vcc, {ex}, v{v+1}\ns_cbranch_vccz L_rx_{tag}\n"
            f"s_add_u32 s5, s5, 1\ns_cmp_lt_u32 s5, {OPT['spinmax']}\ns_cbranch_scc1 L_rt_{tag}\nL_rx_{tag}:\ns_mov_b64 exec, -1\ns_branch L_ok_{tag}")
    return f"@W {tag}\nv_cmp_ne_u32 vcc, {ex}, v{v+1}\ns_cbranch_vccnz L_rs_{tag}\nL_ok_{tag}:"
def split_check(c):
    l=c.split("\n"); k=[i for i,x in enumerate(l) if x.startswith("s_cbranch_vcc")]
    if not k: return l[:-2]+["\n".join(l[-2:])]
    k=k[0]; return l[:k-1]+[l[k-1]+" ; #"+l[k].split()[1], far("\n".join(l[k:]))]
def poll1_addr():
    if atom("p1"):
        return [f"s_lshr_b32 s4, s2, 1\ns_and_b32 s4, s4, {OPT['repk']-1}\ns_lshl2_add_u32 s4, s4, s3\ns_lshl_b32 s4, s4, 8\ns_add_u32 s4, s4, {FLAGK}\nv_lshl_add_u32 v{PV}, v2, 2, s4"]
    return poll_addr("s_lshl_b32 s4, s3, 6",64,FLAGK if OPT["hf"] else FLAG1)
def flag2_prep(v):
    R=OPT["rep"]; k=R.bit_length()-1
    return [f"s_mul_i32 s4, s{M1}, 43691\ns_lshr_b32 s4, s4, 16\ns_mul_i32 s5, s{M1}, 21846\ns_lshr_b32 s5, s5, 16\ns_mul_i32 s5, s5, 3\ns_sub_u32 s5, s{M1}, s5",
            f"s_lshl2_add_u32 s4, s{KQ}, s4\ns_lshl_b32 s4, s4, {7+k}\ns_mul_i32 s7, s{KQ}, 9\ns_sub_u32 s7, s{N1}, s7\ns_lshl3_add_u32 s4, s7, s4\ns_add_u32 s4, s4, {FLAG2}",
            f"s_cmp_eq_u32 s5, 1\ns_cselect_b32 s7, {2*R}, {R}", f"s_cmp_lg_u32 s5, 0\ns_cselect_b32 s5, 4, 0",
            f"v_lshlrev_b32 v{v}, 7, v0\nv_add_u32 v{v}, s4, v{v}\nv_cmp_gt_u32 vcc, {R}, v0\nv_mov_b32 v24, s5\nv_cndmask_b32 v24, 0, v24, vcc\nv_add_u32 v{v}, v{v}, v24",
            f"v_cmp_gt_u32 vcc, s7, v0\nv_mov_b32 v24, {OOB}\nv_cndmask_b32 v{v}, v24, v{v}, vcc"]
def poll2_addr(v=PV):
    if OPT["rep"]:
        R=OPT["rep"]; k=R.bit_length()-1; assert atom("p2") and OPT["pw0"]==1
        L=[MP.format(4)+f"\ns_lshl2_add_u32 s4, s{KQ}, s4\ns_lshl_b32 s4, s4, {k}"]
        if R>1: L+=[f"s_lshr_b32 s5, s2, 4\ns_and_b32 s5, s5, {R-2}\ns_add_u32 s4, s4, s5\ns_and_b32 s5, s2, 1\ns_add_u32 s4, s4, s5"]
        return L+[f"s_lshl_b32 s4, s4, 7\ns_add_u32 s4, s4, {FLAG2}\nv_lshl_add_u32 v{v}, v2, 2, s4",
                  f"s_cmp_eq_u32 s3, 0\ns_cselect_b32 s4, 18, 0\nv_cmp_gt_u32 vcc, s4, v2\nv_mov_b32 v13, {OOB}\nv_cndmask_b32 v{v}, v13, v{v}, vcc\nv_mov_b32 v13, s{NONCE}\nv_cndmask_b32 v13, 0, v13, vcc"]
    L=poll_addr(f"s_mul_i32 s4, s{KQ}, 54\n"+MP.format(5)+"\ns_mul_i32 s5, s5, 3\ns_lshr_b32 s5, s5, 1\ns_add_u32 s4, s4, s5",18,FLAG2,v)
    L=L[:1]+[f"v_lshrrev_b32 v{v+1}, 1, v{v}", f"v_lshl_add_u32 v{v}, v{v+1}, 2, v{v}"]+L[1:]
    if atom("p2"):
        assert OPT["pw0"]
        L+=[(f"s_cmp_eq_u32 s3, 0\ns_cselect_b32 s4, 18, 0" if OPT["pw0"]==1 else "s_mov_b32 s4, 18")+f"\nv_cmp_gt_u32 vcc, s4, v2\nv_mov_b32 v13, {OOB}\nv_cndmask_b32 v{v}, v13, v{v}, vcc\nv_mov_b32 v13, s{NONCE}\nv_cndmask_b32 v13, 0, v13, vcc"]
    elif OPT["pw0"]==1: L+=[f"s_cmp_eq_u32 s3, 0\ns_cselect_b32 s83, s{NONCE}, 0\ns_cselect_b32 s4, 0, {OOB}\nv_add_u32 v{v}, s4, v{v}"]
    return L

def warm(name):
    if not OPT["iw"]: return []
    return [f"s_mov_b64 exec, 0\ns_call_b64 s[82:83], L_wc_{name}\ns_mov_b64 exec, -1"]

KR,VR,TR=60,82,98
KL=HR; VL=HR+12672; KLX=8192
def p0(a):
    a(f".globl {KN}\n.p2align 8\n.type {KN},@function\n{KN}:")
    a("s_cmp_lt_u32 s2, 256\ns_cbranch_scc0 L_exit")
    a("s_load_dwordx2 s[56:57], s[0:1], 0\ns_load_dwordx2 s[48:49], s[0:1], 8\ns_load_dwordx2 s[52:53], s[0:1], 16\ns_load_dwordx2 s[60:61], s[0:1], 24")
    a("s_load_dwordx16 s[16:31], s[0:1], 0\ns_load_dwordx8 s[32:39], s[0:1], 64\ns_load_dwordx4 s[40:43], s[0:1], 96\ns_memrealtime s[12:13]")
    a("v_lshrrev_b32 v1, 6, v0\nv_and_b32 v2, 63, v0")
    nl=OPT["cpl"]; red=OPT["cpr"]
    a(f"s_getpc_b64 s[6:7]\nL_pc:\ns_lshr_b32 s4, s2, 1\ns_and_b32 s4, s4, {(128>>red)-4}\nv_add_u32 v22, s4, v1\nv_lshl_add_u32 v22, v2, {7-red}, v22\nv_lshlrev_b32 v22, 7, v22")
    a(f"v_min_u32 v22, L_end-L_pc-4, v22\ns_mov_b64 exec, {(1<<nl)-1}\nglobal_load_dword v255, v22, s[6:7] ; @code\ns_mov_b64 exec, -1\nv_readfirstlane_b32 s3, v1")
    if OPT["rgm"]: a(f"s_and_b32 s4, s2, 7\ns_lshr_b32 s5, s2, 3\ns_lshl_b32 s4, s4, 5\ns_add_u32 s{NONCE}, s4, s5")
    else: a(f"s_mov_b32 s{NONCE}, s2")
    a(f"v_lshrrev_b32 v3, 5, v0\nv_and_b32 v4, 31, v0\nv_mul_u32_u24 v5, 1152, v3\nv_mad_u32_u24 v5, v4, 12, v5\ns_mul_i32 s15, s{NONCE}, 9216")
    a(f"s_mul_i32 s4, s3, 3072\ns_add_u32 s5, s4, s15\ns_sub_u32 s5, s5, 3456\nv_lshlrev_b32 v6, 4, v2\nv_add_u32 v7, s5, v6\nv_add_u32 v58, 1024, v7")
    a(f"s_add_u32 s4, s4, {KL}\ns_lshl_b32 s5, s3, 11\ns_add_u32 s11, s5, s15\ns_add_u32 s5, s5, {VL}\ns_cmp_lt_u32 s2, 216\ns_cselect_b32 s9, 0, {KL-KLX}\ns_sub_u32 s4, s4, s9\ns_sub_u32 s5, s5, s9\ns_mov_b32 m0, s4")
    for r,nb in ((56,NB_SD),(48,NB_SD),(52,NB_SD),(60,576*8)): a(f"s_mov_b32 s{r+2}, {nb}\ns_mov_b32 s{r+3}, 0x20000")
    a("v_lshlrev_b32 v59, 3, v0\ns_movk_i32 s10, 4096\nv_lshlrev_b32 v91, 3, v2\nv_or_b32 v22, s2, v0\nv_lshlrev_b32 v22, 8, v22\ns_mov_b32 s66, 256\ns_mov_b32 s67, 0x20000")
    a("s_waitcnt lgkmcnt(0)")
    stamp(a,1,"P")
    xld=[f"buffer_load_dwordx3 v[{8+4*j}:{10+4*j}], v5, {RA}, s15 offen offset:{384*j} ; @x" for j in range(3)]
    if not OPT["kvf"]: a.extend(xld)
    pub=f"s_or_b32 s12, s12, 1\nv_mov_b32 v23, s12\nbuffer_store_dword v23, v22, {RC}, 0 offen sc1 ; @pub"
    if OPT["pub0"]: a("s_mov_b32 s64, s40\ns_and_b32 s65, s41, 0xffff\n"+pub)
    a("buffer_load_dwordx4 v7, s[48:51], 0 offen lds ; @kv\ns_add_u32 m0, s4, 1024\ns_cmp_eq_u32 s3, 3")
    a("buffer_load_dwordx4 v58, s[48:51], 0 offen lds ; @kv\nbuffer_load_dwordx4 v58, s[48:51], 0 offen offset:1024 lds ; @kv\ns_cbranch_scc1 L_xld\nL_nox:\ns_mov_b32 m0, s5")
    COLD.insert(0,"L_xld:\ns_mov_b64 exec, 0xffffff\nbuffer_load_dwordx4 v58, s[48:51], 0 offen offset:2048 lds\ns_mov_b64 exec, -1\ns_mov_b32 m0, s5\nbuffer_load_dwordx4 v6, s[52:55], s11 offen offset:2048 lds\ns_branch L_nox")
    a(f"buffer_load_dwordx2 {P(TR)}, v59, {RB_}, 0 offen ; @kv")
    a("buffer_load_dwordx4 v6, s[52:55], s11 offen lds ; @kv\nbuffer_load_dwordx4 v6, s[52:55], s11 offen offset:1024 lds ; @kv")
    a(f"buffer_load_dwordx2 {P(TR+2)}, v59, {RB_}, 0 offen offset:2048 ; @kv\nbuffer_load_dwordx2 {P(TR+4)}, v{91 if OPT['k8'] else 59}, {RB_}, s10 offen ; @kv")
    if OPT["kvf"]: a.extend(xld)
    if OPT["stamps"]: a("v_writelane_b32 v254, s12, 0")
    if not OPT["pub0"]: a("s_mov_b32 s64, s40\ns_and_b32 s65, s41, 0xffff\n"+pub)
    stamp(a,2,"P")
    if OPT["wso"]: a(f"s_add_u32 s{S_WS}, s{S_WS}, {OPT['wso']<<20}\ns_addc_u32 s{S_WS+1}, s{S_WS+1}, 0"); assert (OPT["wso"]<<20)+WS_END<=256<<20
    srd(a,44,S_WS,WS_END)
    a("s_and_b32 s5, s2, 7\ns_lshr_b32 s6, s2, 3")
    a("s_lshr_b32 s7, s6, 2\ns_lshr_b32 s8, s3, 1\ns_lshl1_add_u32 s9, s7, s8\ns_cmp_ge_u32 s9, 10\ns_addc_u32 s14, s9, 0\ns_cmp_ge_u32 s9, 3\ns_addc_u32 s14, s14, 0")
    a(f"s_lshl3_add_u32 s8, s8, 3\ns_cmp_eq_u32 s7, 7\ns_cselect_b32 s14, s8, s14\ns_and_b32 s4, s5, 1\ns_lshl4_add_u32 s{N2}, s4, s14")
    a(f"s_lshr_b32 s13, s5, 1\ns_mov_b32 s{KQ}, s13\ns_lshl_b32 s{LW}, s3, 12")
    srd(a,52,S_W2,4608*4096)
    if OPT["smove"]<2: a.extend(k2table())
    a("s_cmp_lt_u32 s6, 27\ns_cbranch_scc0 L_aux")
    if OPT["iw"]==1: a("s_branch L_org\nL_exit:\ns_endpgm\n.p2align 12\nL_org:")
    else: COLD.append("L_exit:\ns_endpgm")

def phaseA(a, tag, fill_ln, fill_kv, fill_post):
    X,T,M,RS,D=20,38,56,18,8
    L=flat([unpack(X+2*j,8+4*(j//3)+j%3) for j in range(9)])+ln_fused(X,T,M,RS,D,106)
    AW,AS,AH,AK,AO,AV,AZ,AK2,AV2=48,49,50,51,52,53,54,55,90; hf=OPT["hf"]; assert hf and atom("p1")
    a(f"s_mov_b32 s9, {LN_ST}\ns_mov_b32 s11, {KL if tag=='G' else KLX}")
    a(f"v_mul_u32_u24 v{AW}, {LN_STR}, v3\nv_mad_u32_u24 v{AW}, v4, 12, v{AW}\nv_add_u32 v{AW}, s9, v{AW}\nv_mov_b32 v47, {OOB}")
    a(f"v_lshlrev_b32 v3, 3, v3\ns_lshl_b32 s5, s{NONCE}, 6\ns_add_u32 s5, s5, {WS_STATS}\nv_cmp_eq_u32 vcc, 0, v4\nv_cndmask_b32 v{AS}, v47, v3, vcc")
    a(f"v_lshrrev_b32 v5, 4, v0\nv_and_b32 v4, 3, v2\nv_lshlrev_b32 v4, 3, v4\nv_lshl_add_u32 v5, v5, 5, v4\nv_bfe_u32 v6, v2, 2, 2\nv_mul_u32_u24 v4, {LN_STR}, v6\nv_mul_u32_u24 v6, 1152, v6")
    a(f"v_add3_u32 v{AH}, v4, v5, s9\nv_add3_u32 v{AK}, v6, v5, s11\ns_mul_i32 s4, s3, {2304-128}\nv_add_u32 v{AK2}, s4, v{AK}")
    a(f"v_lshlrev_b32 v{AO}, 4, v0\ns_add_u32 s7, s15, 4096\ns_add_u32 s8, s15, 8192\ns_cmp_eq_u32 s3, 0\ns_cselect_b32 s8, s8, {OOB}\nv_add_u32 v{AV}, {WS_KVT}, v{AO}\nv_mov_b32 v{AZ}, 0")
    if OPT["sg"]:
        a(f"v_add_u32 v96, {KV_ST}, v3\nv_add_u32 v4, 64, v96\nv_cndmask_b32 v96, v4, v96, vcc".replace("v_cndmask","v_and_b32 v5, 31, v0\nv_cmp_eq_u32 vcc, 0, v5\nv_cndmask"))
        a(f"v_lshlrev_b32 v4, 3, v0\nv_cmp_gt_u32 vcc, 8, v0\nv_cndmask_b32 v{AS}, v47, v4, vcc\nv_and_b32 v4, 63, v4\nv_add_u32 v97, {KV_ST}, v4")
    hp=OPT["hp"]; AP=93
    if hp:
        for i in range(3): a(f"v_add_u32 v4, {4096*i}, v{AO}"); a.extend(hphys(AP+i,4,5))
        a(f"s_mul_i32 s10, s{NONCE}, {HG}\ns_add_u32 s10, s10, {WS_HP}\ns_cmp_eq_u32 s3, 0\ns_cselect_b32 s83, s10, {OOB}")
    if hp>1: assert not OPT["k8"]; a(f"s_add_u32 s7, s10, {WS_KP-WS_HP}\ns_add_u32 s8, s83, {WS_KP-WS_HP}")
    a(f"s_mul_i32 s4, s3, 1028\ns_sub_u32 s4, {8192+12}, s4\nv_add_u32 v{AV2}, s4, v{AV}")
    a(f"s_bfe_u32 s6, s{NONCE}, 0x20001\ns_lshl_b32 s6, s6, 6\ns_lshr_b32 s9, s{NONCE}, 3\ns_lshl1_add_u32 s6, s9, s6\ns_and_b32 s9, s{NONCE}, 1\ns_add_u32 s6, s6, s9")
    a(f"s_lshl_b32 s4, s6, 2\ns_add_u32 s4, s4, {FLAG1}\nv_lshl_add_u32 v1, v0, 10, s4\ns_lshl_b32 s4, s{NONCE}, 2\ns_add_u32 s4, s4, {FLAGK}\nv_lshl_add_u32 v46, v0, 10, s4")
    a(f"v_cmp_gt_u32 vcc, {OPT['rep1']}, v0\nv_cndmask_b32 v1, v47, v1, vcc\nv_cmp_gt_u32 vcc, {OPT['repk']}, v0\nv_cndmask_b32 v46, v47, v46, vcc")
    stamp(a,3,"P")
    if OPT.get("fine")=="P":
        a("s_waitcnt vmcnt(12)"); stamp(a,4,"P")
        a("s_waitcnt vmcnt(9)"); stamp(a,5,"P")
        a("s_waitcnt vmcnt(6)"); stamp(a,6,"P")
        a("s_waitcnt vmcnt(4)"); stamp(a,7,"P")
        a("s_waitcnt vmcnt(1)"); stamp(a,8,"P")
        a("s_waitcnt vmcnt(0)"); stamp(a,9,"P")
    kvf=OPT["kvf"]
    ln=["@W x"]+(interleave(L,fill_ln,0,(len(L)-4)*OPT["lne"]//100) if fill_ln else L)+[f"ds_write_b32 v{AW}, v{D+j} offset:{384*(j//3)+4*(j%3)}" for j in range(9)]
    sg=OPT["sg"]
    ln+=[f"ds_write_b64 v96, v[106:107]"] if sg else [f"buffer_store_dwordx2 v[106:107], v{AS}, {WS}, s5 offen sc1 ; @sts"]
    hrd=[[f"ds_read_b64_tr_b16 {P(20+4*i)}, v{AH} offset:{512*i} ; @ht{i}", f"ds_read_b64_tr_b16 {P(22+4*i)}, v{AH} offset:{512*i+4*LN_STR} ; @ht{i}"] for i in range(3)]
    so=("s15","s7","s8")
    if sg: hrd[0]=["ds_read_b64 v[106:107], v97 ; @ht0"]+hrd[0]
    hst=[f"@W - ht{i}\nbuffer_store_dwordx4 {Q(20+4*i)}, v{AP+i if hp else AO}, {WS}, {('s10','s10','s83')[i] if hp else so[i]} offen sc1 ; @st" for i in range(3)]
    if sg: hst[0]+=f"\nbuffer_store_dwordx2 v[106:107], v{AS}, {WS}, s5 offen sc1 ; @st"
    krd=[[f"ds_read_b64_tr_b16 {P(KR+10*i+2*q)}, v{AK} offset:{512*i+1152*(0,4,8,11,15)[q]} ; @kr{i}" for q in range(5)] for i in range(3)]
    k8=OPT["k8"]
    if k8: krd[2]=[f"ds_read_b64_tr_b16 {P(KR+20+2*q)}, v{AK2} offset:{1024+1152*(0,4,11)[q]} ; @kr2" for q in range(3)]
    nonce=f"buffer_load_dword v45, v{AZ}, {RC}, 0 offen sc1 ; @nonce"
    def kvc(i):
        K=KR+10*i; V_=K+6; J=108; T=114; RE=116+8*(i&1); VU=132; O=160+4*i
        L=[f"v_alignbit_b32 v{T}, v{TR+2*i+1}, v{TR+2*i+1}, 16", f"v_alignbit_b32 v{T+1}, v{TR+2*i}, v{TR+2*i}, 16", f"@W - kr{i}"]
        if i==2 and k8:
            L+=[f"v_alignbit_b32 v{J+m}, v{K+m+1}, v{K+m}, 16" for m in range(2)]+[f"v_dot2_f32_bf16 v{RE+r}, v{(K,J)[r]}, v{T}, 0" for r in range(2)]+unpack(VU,K+4)
            L+=[f"v_dot2_f32_bf16 v{RE+r}, v{(K,J)[r]+1}, v{T+1}, v{RE+r}" for r in range(2)]+[f"v_pk_mul_f32 {P(RE)}, {P(RE)}, {P(VU)}", f"v_cvt_pk_bf16_f32 v{O}, v{RE+1}, v{RE}"]
            return L+[f"buffer_store_dword v{O}, v{AV2}, {WS}, s15 offen sc1 ; @stk"]
        L+=[f"v_alignbit_b32 v{J+m}, v{K+m+1}, v{K+m}, 16" for m in range(5)]
        L+=[f"v_dot2_f32_bf16 v{RE+r}, v{(J if r&1 else K)+(r>>1)}, v{T}, 0" for r in range(8)]
        L+=[f"v_dot2_f32_bf16 v{RE+r}, v{(J if r&1 else K)+(r>>1)+1}, v{T+1}, v{RE+r}" for r in range(8)]
        L+=flat([unpack(VU+2*m,V_+m) for m in range(4)])
        L+=[f"v_pk_mul_f32 {P(RE+2*m)}, {P(RE+2*m)}, {P(VU+2*m)}" for m in range(4)]
        L+=[f"v_cvt_pk_bf16_f32 v{O+p}, v{RE+7-2*p}, v{RE+6-2*p}" for p in range(4)]
        return L+[f"buffer_store_dwordx4 {Q(O)}, v{AP+i if hp>1 else AV}, {WS}, {('s7','s7','s8')[i] if hp>1 else so[i]} offen sc1 ; @stk"]
    c0=kvc(0)
    pub=f"@W nonce\nv_readfirstlane_b32 s{NONCE}, v45\ns_cmp_eq_u32 s{NONCE}, 0\ns_cbranch_scc1 L_nw_{tag}\nL_ng_{tag}:\ns_barrier\nv_mov_b32 v3, s{NONCE}\nbuffer_store_dword v3, v1, {WS}, 0 offen sc1 ; @fl"
    L=c0[:8]+interleave(c0[8:],krd[2],0,24)+(kvc(2)+kvc(1) if k8==2 else kvc(1)+kvc(2))
    kv=["@W kv\ns_barrier"]+krd[0]+krd[1]+(interleave(L,fill_kv,10,OPT['kvend']) if fill_kv else L); k=OPT["npre"]
    if kvf:
        a(kv[0]); stamp(a,1); a.extend(kv[1:]+[nonce.replace("v45","v92")]); stamp(a,2)
        a.extend(ln); a(pub.replace("@W nonce","@W nonce 0").replace("v45","v92").replace("v3, v1,","v3, v46,")); stamp(a,15)
        a.extend(flat(hrd)+hst); stamp(a,3)
        a.extend(fill_post); a(f"@W st\ns_barrier\nbuffer_store_dword v3, v1, {WS}, 0 offen sc1 ; @fl")
    else:
        a(ln[0]); stamp(a,1); a.extend(ln[1:]+["@W - 0\ns_barrier"]+flat(hrd)+hst+[nonce]); stamp(a,2)
        a.extend(kv); stamp(a,3)
        a.extend(fill_post[:k]); a(pub); stamp(a,15); a.extend(fill_post[k:])
        a(f"@W stk\ns_barrier\nbuffer_store_dword v3, v46, {WS}, 0 offen sc1 ; @fl")
    COLD.append(f"L_nw_{tag}:\ns_mov_b32 s5, 0\nL_nl_{tag}:\nbuffer_load_dword v45, v{AZ}, {RC}, 0 offen sc1\ns_waitcnt vmcnt(0)\nv_readfirstlane_b32 s{NONCE}, v45\n"
                f"s_cmp_lg_u32 s{NONCE}, 0\ns_cbranch_scc1 L_ng_{tag}\ns_add_u32 s5, s5, 1\ns_cmp_lt_u32 s5, {OPT['spinmax']}\ns_cbranch_scc1 L_nl_{tag}\ns_branch L_ng_{tag}")
    stamp(a,4)

def w2steps(S, n_issue, n_drain, pick):
    steps=[]; R=S["R"]
    def issue():
        t=S["issue"]; s=pick(t,S["free"]) if t<n_issue else None
        if s is None: return []
        S["free"].remove(s); S["slot"][t]=s; S["issue"]+=1
        return w2dma(t,s)
    while True:
        d=issue()
        if not d: break
        steps.append(d)
    prev=None
    while S["drain"]<n_drain:
        t=S["drain"]; S["drain"]+=1; dm=[]
        st=[f"@W w2_{t} "+(f"r2_{prev}" if prev is not None else "-")+"\ns_barrier"]
        if prev is not None: S["free"].append(S["slot"].pop(prev)); dm=issue()
        steps.append(st+interleave(R.reads(t,S["slot"][t]),dm)); prev=t
    if prev is not None:
        S["free"].append(S["slot"].pop(prev)); steps.append([f"@W - r2_{prev}\ns_barrier"]+issue())
    while S["issue"]<n_issue:
        d=issue(); assert d; steps.append(d)
    return steps

def roleG(a):
    if OPT["jm"]: a("s_mul_i32 s12, s6, 7282\ns_lshr_b32 s12, s12, 16\ns_mul_i32 s8, s12, 9\ns_sub_u32 s7, s6, s8")
    else: a("s_mul_i32 s7, s6, 21846\ns_lshr_b32 s7, s7, 16\ns_mul_i32 s8, s7, 3\ns_sub_u32 s12, s6, s8")
    if OPT["ce"]:
        pm=[sorted(range(9),key=lambda n:(p+n)%4!=1) for p in range(4)]; t=[sum(x<<(4*i) for i,x in enumerate(r[:8])) for r in pm]
        a(f"s_mov_b32 s8, {t[0]:#x}"+"".join(f"\ns_cmp_eq_u32 s13, {p}\ns_cselect_b32 s8, {t[p]:#x}, s8" for p in (3,2,1))+"\ns_cselect_b32 s9, 7, 8\ns_lshl_b32 s5, s7, 2\ns_lshr_b32 s8, s8, s5\ns_and_b32 s8, s8, 15\ns_cmp_eq_u32 s7, 8\ns_cselect_b32 s7, s9, s8")
        assert [r[8] for r in pm]==[8,7,8,8]
    a(f"s_mul_i32 s8, s13, 9\ns_add_u32 s{N1}, s8, s7\ns_lshl1_add_u32 s{M1}, s12, s4")
    a(f"s_mul_i32 s8, s{N1}, 6\ns_add_u32 s{TID}, s8, s{M1}")
    srd(a,48,S_W1,2048*4608*2)
    if OPT["hrot"]: a("s_add_u32 s12, s12, s7\ns_mul_i32 s8, s12, 21846\ns_lshr_b32 s8, s8, 16\ns_mul_i32 s8, s8, 3\ns_sub_u32 s12, s12, s8")
    KT=list(range(18,28))+list(range(76,82)); b=0
    KQ_=1 if OPT["hp"] else 73728
    a(f"s_mul_i32 s4, s4, {16*KQ_}")
    for W in [int(x) for x in str(OPT["w1w"]).split("_")]:
        a(f"s_mul_i32 s7, s12, {W*21846}\ns_lshr_b32 s7, s7, 16\ns_mul_i32 s7, s7, {KQ_}\ns_add_u32 s5, s4, {b*KQ_}\ns_add_u32 s{KT[b]}, s7, s5\ns_add_u32 s8, s5, {W*KQ_}")
        for i in range(b+1,b+W): a(f"s_add_u32 s{KT[i]}, s{KT[i-1]}, {KQ_}\ns_cmp_eq_u32 s{KT[i]}, s8\ns_cselect_b32 s{KT[i]}, s5, s{KT[i]}")
        b+=W
    assert b==16
    NW1=16
    a("v_lshrrev_b32 v24, 4, v2\nv_and_b32 v25, 15, v2\nv_lshlrev_b32 v26, 1, v24\nv_xor_b32 v25, v25, v26\nv_mul_u32_u24 v24, 9216, v24\nv_lshl_add_u32 v24, v25, 4, v24")
    a(f"s_mul_i32 s7, s3, {16*9216}\ns_lshl_b32 s8, s{N1}, 8\ns_add_u32 s7, s7, s8\nv_add_u32 v{VW1}, s7, v24\nv_add_u32 v{VW1+1}, {36864-1024}, v{VW1}")
    a(f"v_xor_b32 v24, 128, v{VW1}\nv_add_u32 v{VW1+2}, {2*(36864-1024)}, v24\nv_add_u32 v{VW1+3}, {36864-1024}, v{VW1+2}")
    def w1dma(q,slot):
        L=[f"s_add_u32 m0, s{LW}, {slot*SLOT}\ns_mul_i32 s14, s{KT[q]}, {8*73728//KQ_}"]
        return L+[f"buffer_load_dwordx4 v{VW1+r}, {RW1}, s14 offen offset:{1024*r} lds ; @w1_{q}" for r in range(4)]
    def w1reads(q,slot):
        L=[]
        for ks in range(2):
            for ft in range(2):
                for hf in range(2):
                    r0=16*(q&15)+8*ks+4*ft+2*hf
                    L.append(f"ds_read_b64_tr_b16 a[{r0}:{r0+1}], v{RW1B+2*(slot>>2)+ft} offset:{(slot&3)*SLOT+ks*8192+hf*1024} ; @r1_{q}")
        return L
    rb=["v_bfe_u32 v140, v2, 2, 2","v_lshrrev_b32 v141, 4, v2","v_lshl_add_u32 v142, v141, 3, v140","v_lshlrev_b32 v142, 8, v142","v_and_b32 v143, 3, v2","v_lshl_add_u32 v142, v143, 3, v142",
        "v_and_b32 v141, 1, v141","v_lshl_add_u32 v140, v141, 2, v140","s_lshl_b32 s7, s3, 1","v_xor_b32 v140, s7, v140",f"v_lshl_add_u32 v{RW1B}, v140, 5, v142",f"v_xor_b32 v{RW1B+1}, 32, v{RW1B}",
        f"v_add_u32 v{RW1B+2}, 0x10000, v{RW1B}",f"v_add_u32 v{RW1B+3}, 0x10000, v{RW1B+1}"]
    UA=240; BU=128; ACCF=192; XA=246; RH2=250
    NH=OPT['nh']; NWB=(163840-NH*HS)//SLOT; HB=NWB*SLOT
    rb.append(f"v_and_b32 v24, 15, v2\nv_lshrrev_b32 v25, 4, v2\nv_mul_u32_u24 v26, {U2_PL}, v25\nv_lshl_add_u32 v26, v24, 4, v26")
    rb.append(f"v_mul_u32_u24 v25, 1536, v25\nv_lshl_add_u32 v25, v24, 4, v25\nv_add_u32 v{RH}, {HB}, v25\nv_add_u32 v{RH2}, {3*HS}, v{RH}")
    rb.append(f"s_mul_i32 s7, s3, 18432\ns_xor_b32 s8, s{M1}, 1\ns_mul_i32 s8, s8, 1536\ns_add_u32 s7, s7, s8\nv_lshlrev_b32 v{XA}, 4, v2\nv_add_u32 v{VH}, s7, v{XA}")
    rb.append(f"v_lshrrev_b32 v25, 5, v2\nv_mul_u32_u24 v25, {9216-1536}, v25\nv_add_u32 v{VH+1}, v{VH}, v25\nv_add_u32 v{VH+2}, {9216-1536}, v{VH}\ns_mul_i32 s{LH}, s3, 3072\ns_add_u32 s{LH}, s{LH}, {HB}")
    VH2=(8,9,3); hs=[]
    if OPT["hp"]:
        for hf_,dst in ((1,(VH,VH+1,VH+2)),(0,VH2)):
            hs.append(f"s_xor_b32 s8, s{M1}, {hf_}\ns_mul_i32 s8, s8, 1536\ns_mul_i32 s7, s3, {2*HG}\ns_add_u32 s7, s7, {WS_HP}")
            for r in range(3):
                hs.append(f"v_add_u32 v24, {1024*r}, v{XA}\nv_cmp_lt_u32 vcc, 1535, v24\nv_cndmask_b32 v25, 0, 1, vcc\nv_mad_i32_i24 v24, v25, -1536, v24\nv_add_u32 v24, s8, v24".replace("v_mad_i32_i24 v24, v25, -1536, v24","v_mul_u32_u24 v30, 1536, v25\nv_sub_u32 v24, v24, v30"))
                hs+=hphys(24,24,30)+[f"v_mul_u32_u24 v25, {HG}, v25\nv_add3_u32 v24, v24, v25, s7\nv_subrev_u32 v{dst[r]}, {1024*r}, v24"]
    uset=[f"s_mul_i32 s7, s{M1}, 6\ns_add_u32 s7, s7, {dt}\ns_mul_i32 s8, s7, 7282\ns_lshr_b32 s8, s8, 16\ns_mul_i32 s5, s8, 9\ns_sub_u32 s7, s7, s5\ns_lshl_b32 s7, s7, 2\n"
          +"s_mov_b32 s4, 0xeca86420\n"+(f"s_bitcmp1_b32 s8, 0\ns_cselect_b32 s4, 0xca864203, s4\ns_cselect_b32 s5, 14, 3\n" if OPT["al"] else "s_mov_b32 s5, 3\n")+f"s_lshr_b64 s[4:5], s[4:5], s7\ns_and_b32 s4, s4, 15\ns_lshl4_add_u32 s4, s8, s4\nv_lshl_add_u32 v{UA+dt}, s4, 8, v{UA+5}" for dt in range(6)]
    rb.append(f"v_mov_b32 v{UA+5}, v26")
    if not OPT["rbl"]: a.extend(rb); rb=[]
    first=[]
    slot={q:s_ for q,s_ in enumerate(list(range(NWB,7))+list(range(NWB)))}
    for q in range(7):
        d=w1dma(q,slot[q]); first+=[d[0]+"\n"+d[1]]+d[2:]
    nln,nkv,npost=OPT["nln"],OPT["nkv"],OPT["npost"]
    phaseA(a,"G",*((first[nkv:nln+nkv],first[:nkv]) if OPT["kvf"] else (first[:nln],first[nln:nln+nkv])),first[nln+nkv:nln+nkv+npost]+(warm("G") if OPT["wg"]==0 else [])+(warm("D") if OPT["wd"]==1 else []))
    if OPT["iw"]==2: a("s_branch L_org\n.p2align 12\nL_org:")
    a("L_segG:")
    n0=OPT["n0"]
    a.extend(first[nln+nkv+npost:4*n0 if n0 else 28]); assert not n0 or nln+nkv+npost<=4*n0
    a.extend(rb)
    if OPT["wg"]==1: a.extend(warm("G"))
    if OPT["wd"]==2: a.extend(warm("D"))
    srd(a,56,S_B1,4608*2); srd(a,60,S_B2,4096)
    p1=poll_addr(f"s_and_b32 s4, s{M1}, 1\ns_lshl1_add_u32 s4, s3, s4\ns_lshl_b32 s4, s4, 5",32,FLAG1)
    if atom("p1"):
        assert OPT["hf"]; R1=OPT["rep1"]
        p1=[f"s_and_b32 s4, s{M1}, 1\ns_lshl1_add_u32 s4, s3, s4\ns_lshl_b32 s4, s4, 7\ns_bfe_u32 s5, s2, 0x10003\ns_lshl1_add_u32 s5, s{KQ}, s5\ns_lshr_b32 s5, s5, {3-(R1.bit_length()-1)}"]
        p1+=[f"s_lshl_b32 s5, s5, 10\ns_add_u32 s4, s4, s5\ns_add_u32 s4, s4, {FLAG1}", f"v_lshl_add_u32 v{PV}, v2, 2, s4", "v_cmp_gt_u32 vcc, 32, v2", f"v_mov_b32 v12, {OOB}", f"v_cndmask_b32 v{PV}, v12, v{PV}, vcc", f"v_mov_b32 v12, s{NONCE}\nv_cndmask_b32 v12, 0, v12, vcc"]
    setup=p1+[f"v_lshrrev_b32 v24, 4, v2\nv_lshlrev_b32 v25, 3, v24\ns_lshl_b32 s7, s{N1}, 8\ns_lshl_b32 s8, s3, 6\ns_add_u32 s7, s7, s8\n"
           f"buffer_load_dwordx2 {P(BIAS)}, v25, {RA}, s7 offen ; @bias\nbuffer_load_dwordx2 {P(BIAS+2)}, v25, {RA}, s7 offen offset:32 ; @bias"]+eprep()+w2setup()
    moved=[]
    if OPT["smove"]: moved=setup[8:]; setup=setup[:8]
    nA=OPT["nA"]; nd=max(2,nA-NWB+1)
    per=max(7,(len(setup)+nd-2)//(nd-1))
    assert nd-OPT["lead1"]>=1 and per*(nd-OPT["lead1"])>=7
    nq=7; freeq=[]
    if n0:
        nA,nd=n0,OPT["nd0"]; a.extend(setup); freeq=[(slot[q],-1) for q in range(n0,7)]; del first[4*n0:]
        if OPT["pp"]==0: a(poll_issue("p1G"))
        a("@W w1_1\ns_barrier"); a.extend(w1reads(0,slot[0])+w1reads(1,slot[1]))
        if OPT["pp"]==1: a(poll_issue("p1G"))
        for d in range(2,nd):
            a(f"@W w1_{d}\ns_barrier"); a.extend(w1reads(d,slot[d])); freeq.append((slot[d],-1))
            if OPT["pp"]==d: a(poll_issue("p1G"))
        PRE=Asm(); a.L.append(PRE); a("@W - 0\ns_barrier"); assert nd<=n0 and OPT["pp"]<nd
        for _ in range(OPT["nrf"]):
            slot[nA]=freeq.pop(0)[0]; d=w1dma(nA,slot[nA]); first+=d; first[-5:]=[d[0]+"\n"+d[1]]+d[2:]; nA+=1
    for d in range(0 if not n0 else nd,nd):
        if d%2==0: stamp(a,1+d//2,"A")
        if d==nd-OPT["lead1"]: a(poll_issue("p1G"))
        a(f"@W w1_{d} 0\ns_barrier")
        dm=[]
        if freeq and nq<nA: slot[nq]=freeq.pop(0)[0]; dm=w1dma(nq,slot[nq]); nq+=1
        a.extend(interleave(w1reads(d,slot[d]),dm)); a.extend(setup[d*per:(d+1)*per])
        if slot[d]<NWB: freeq.append((slot[d],-1))
    assert n0 or (nq==nA and nd>7-NWB)
    if OPT["lead1"]==0 and not n0: a(poll_issue("p1G"))
    a.extend(hs)
    PRE1=Asm(); a.L.append(PRE1)
    stamp(a,5)
    a(poll_check("p1G"))
    stamp(a,6); stamp(a,1,"B")
    R=W2R()
    stg=OPT["stg"]; seq=[divmod(j,2) for j in range(64)]
    seq[32-2*stg:32]=[(p,g_) for g_ in range(2) for p in range(16-stg,16)]
    juse=lambda p,f: f(j for j in range(64) if seq[j][0]==p)
    need={p:(juse(p,min)-2)//2 for p in range(1,32)}; avail={p:juse(p-NH,max)//2 for p in range(NH,32)}
    issued_at={q:-9 for q in range(nA)}
    nxt_issue,nxt_drain,acc=nA,nd,OPT.get("acc0",50)
    ep_dma={};ep_rd={};ep_wait={};ep_h={}
    bl=[[int(y) for y in x.split(".")] for x in str(OPT["bursts"]).split("_") if "." in x]
    bursts={x[0]:x[1] for x in bl}; bnn={x[0]:(x[2] if len(x)>2 else OPT["bn"]) for x in bl}
    bq={x[0]:(x[3] if len(x)>3 else OPT["quiet"]) for x in bl}
    quiet=-1; qfrom=-1; nh=OPT['h0']; lim=NW1+OPT['maxb']
    def issue(e):
        nonlocal nxt_issue
        s=freeq.pop(0)[0]; t=nxt_issue; slot[t]=s; issued_at[t]=e; nxt_issue+=1
        ep_dma.setdefault(e,[]).extend(w1dma(t,s) if t<NW1 else w2dma(t-NW1,s))
    for e in range(0,31):
        t=nxt_drain
        if t in issued_at and issued_at[t]+OPT["lat"]+(OPT["quiet"] if (t in bursts or t-1 in bursts) else 0)<=e and (t<NW1 or t<e):
            ep_rd[e]=w1reads(t,slot[t]) if t<NW1 else R.reads(t-NW1,slot[t])
            ep_wait[e]=f"w1_{t}" if t<NW1 else f"w2_{t-NW1}"
            assert t>=NW1 or 2*e+2<juse(t,min), (t,e)
            freeq.append((slot[t],e+2)); nxt_drain+=1
        if qfrom<e<=quiet: continue
        k=len([p for p in (nh,nh+1) if p<32 and avail.get(p,-1)<=e and (p==nh or avail.get(nh,-1)<=e)])
        ep_h[e]=list(range(nh,nh+k)); nh+=k
        assert all(need[p]>=e+2 for p in ep_h[e]), (e,ep_h[e])
        if (k==2 and e>=OPT["e01"]) or e<=quiet: continue
        ok=len([1 for s_,f in freeq if f<=e])
        if nxt_issue in bursts:
            if e>=bursts[nxt_issue] and ok>=bnn[nxt_issue] and nxt_issue<lim:
                qn=bq[nxt_issue]
                for _ in range(bnn[nxt_issue]): issue(e)
                quiet=e+qn+OPT.get("qlag",0); qfrom=e+OPT.get("qlag",0); acc=100
            continue
        acc+=OPT["rate"] if nxt_issue<NW1 else OPT["rate2"]
        if acc>=100 and ok and nxt_issue<lim and not (OPT["q0"]<=e<OPT["q1"]):
            issue(e); acc-=100
            if e<OPT["e2x"] and ok>1 and nxt_issue<NW1: issue(e)
        acc=min(acc,150)
    assert nh==32
    assert nxt_drain>=NW1
    print(f"; B schedule: issue epochs {[issued_at[t] for t in range(nA,nxt_issue)]}; w2 issued {nxt_issue-NW1}, drained {nxt_drain-NW1}; h {''.join(str(len(ep_h.get(e,[]))) for e in range(31))}", file=sys.stderr)
    def hdma(p):
        L=[f"s_add_u32 m0, s{LH}, {(p%NH)*HS}"]
        if OPT["hp"]: return [L[0]+f"\ns_mul_i32 s13, s{KT[p&15]}, {8*HG}"]+[f"buffer_load_dwordx4 v{VH+r if p<16 else VH2[r]}, {WS}, s13 offen offset:{1024*r} sc1 lds ; @h{p}" for r in range(3)]
        if p==16: L=[f"s_and_b32 s13, s{M1}, 1\ns_mul_i32 s13, s13, 3072", "s_sub_u32 s13, s13, 1536"]+[f"v_add_u32 v{VH+r}, s13, v{VH+r}" for r in range(3)]+L
        return L+[f"buffer_load_dwordx4 v{VH+r}, {WS}, s{KT[p&15]} offen offset:{1024*r} sc1 lds ; @h{p}" for r in range(3)]
    def hreads(j):
        p,ks=seq[j]
        pos=[(3*ks+(i>>1),i&1) for i in range(6)]
        return [f"ds_read_b128 {Q(HF+24*(j&1)+4*i)}, v{RH if p%NH<3 else RH2} offset:{(p%NH%3 if p%NH<6 else p%NH-3)*HS+k*6144+dt*256} ; @H{j}" for i,(dt,k) in enumerate(pos)]
    S=dict(R=R, slot={t-NW1:slot[t] for t in range(nxt_drain,nxt_issue)}, free=list(range(NWB,10))+[s for s,_ in freeq], issue=nxt_issue-NW1, drain=nxt_drain-NW1)
    RS0=10-OPT["nsl"]
    def tile(ring):
        fr=[s for s in ((8,9,7,6,5) if ring else range(RS0)) if s in S["free"] and (s>=RS0)==ring]
        if not fr or S["issue"]>=OPT["nC"]: return []
        t=S["issue"]; S["issue"]+=1
        if not ring:
            if "ord" not in S:
                S["ord"]=list(range(t,OPT["nC"])); c=OPT["cfirst"]
                if c in S["ord"]: S["ord"].remove(c); S["ord"].insert(OPT["cpos"],c)
            t=S["ord"].pop(0)
        S["free"].remove(fr[0]); S["slot"][t]=fr[0]; return w2dma(t,fr[0])
    pack=[]
    if OPT["gpf"]:
        assert OPT["ce"] and not OPT["jm"]; np_=OPT["gpf"]
        pack=[f"s_cmp_eq_u32 s{KQ}, 1\ns_cselect_b32 s5, 9, 6\ns_lshr_b32 s4, s2, 3\ns_sub_u32 s4, s4, s5\ns_mul_i32 s7, s4, {(65536+np_-1)//np_}\ns_lshr_b32 s7, s7, 16\ns_mul_i32 s8, s7, {np_}\ns_sub_u32 s8, s4, s8",
              f"s_mul_i32 s8, s8, {64*(2 if np_<=3 else 1)}\ns_lshl4_add_u32 s8, s3, s8\ns_and_b32 s5, s2, 1\ns_lshl_b32 s5, s5, 10\ns_add_u32 s8, s8, s5\ns_add_u32 s8, s8, {64*OPT['pf0']}\ns_mul_i32 s8, s8, 9216",
              f"s_sub_u32 s5, 1, s{KQ}\ns_and_b32 s5, s5, 3\ns_lshl2_add_u32 s7, s7, s5\ns_mul_i32 s5, s{KQ}, 9\ns_add_u32 s5, s5, s7\ns_lshl_b32 s5, s5, 8\ns_add_u32 s8, s8, s5",
              f"s_cmp_lt_u32 s7, 9\ns_cselect_b32 s8, s8, {OOB}\ns_cmp_lt_u32 s4, 27\ns_cselect_b32 s15, s8, {OOB}",
              "v_min_u32 v30, 31, v2\nv_lshrrev_b32 v31, 1, v30\nv_mul_u32_u24 v31, 9216, v31\nv_and_b32 v30, 1, v30\nv_lshl_add_u32 v30, v30, 7, v31",
              f"buffer_load_dword v255, v30, {RW1}, s15 offen ; @pf"]
        PRE.extend(pack[:-1])
    hq=[hdma(p) for p in range(OPT['h0'])]; wq=[first[4*q:4*q+4] for q in range(n0,nA)] if n0 else []
    for c in str(OPT["ord"]):
        q_=hq if c=="h" else wq if c=="w" else [pack[-1:]]
        if c=="p": pack=[]
        if q_: a.extend(q_.pop(0))
    a.extend(flat(hq)+flat(wq)+pack[-1:])
    PRE2=Asm(); a.L.append(PRE2)
    a("@W h0 0\ns_barrier")
    a.extend(hreads(0))
    xs=[f"s_xor_b32 s7, s{TID}, 1\ns_lshl2_add_u32 s7, s7, s3", f"s_mul_i32 s9, s7, 6144\ns_add_u32 s9, s9, {WS_XB}", f"s_lshl_b32 s7, s7, 7\ns_add_u32 s6, s7, {WS_F4}",
        f"s_lshl2_add_u32 s7, s{TID}, s3\ns_mul_i32 s10, s7, 6144", f"s_add_u32 s10, s10, {WS_XB}\ns_lshl_b32 s7, s7, 7", f"s_add_u32 s7, s7, {WS_F4}\nv_mov_b32 v{PV}, s7",
        f"v_add_u32 v{XA+1}, 3072, v{XA}", "v_cmp_eq_u32 vcc, 0, v2", f"v_mov_b32 v{XA+2}, {OOB}", f"v_cndmask_b32 v{XA+2}, v{XA+2}, 0, vcc", f"v_mov_b32 v{XA+3}, s{NONCE}"]
    if atom("p5"): xs+=[f"v_add_u32 v{PV}, v{PV}, v{XA+2}", f"v_cndmask_b32 v12, 0, v{XA+3}, vcc"]
    snd=[[f"v_cvt_pk_bf16_f32 v{ACCF+8*dt+k}, v{ACCF+8*dt+2*k}, v{ACCF+8*dt+2*k+1}" for k in range(4)]+[f"buffer_store_dwordx4 {Q(ACCF+8*dt)}, v{XA+dt//3}, {WS}, s9 offen offset:{1024*(dt%3)} sc1 ; @bs"] for dt in range(6)]
    RV=160
    rcv=[poll_check("p5")]+[f"buffer_load_dwordx4 {Q(RV+4*dt)}, v{XA+dt//3}, {WS}, s10 offen offset:{1024*(dt%3)} sc1 ; @bl" for dt in range(6)]
    EX={}
    early=lines(uset)+xs+["@W bias"]+flat([unpack(BU+2*q,BIAS+q) for q in range(4)])
    if OPT["smove"]: early=lines(moved)+(k2table() if OPT["smove"]>=2 else [])+early
    early+=lines((flag2_prep(17) if OPT["rep"] else flag_prep(TID,FLAG2,17))+poll2_addr(15)+dsetA()+dsetE()+(dsetB() if OPT["hoist"] else []))
    k1,k2=OPT["ap1"],OPT["ap2"]
    kx=[i for i,x in enumerate(early) if f"v{PV}, s7" in x][0]; k1=min(k1,kx)
    PRE1.extend(early[:k1]); PRE2.extend(early[k1:k1+k2]); early=early[k1+k2:]
    a.L=flat([x.L if isinstance(x,Asm) else [x] for x in a.L])
    e0,ne=OPT["je0"],OPT["jen"]; CL={}
    nc=len(early)*OPT["cfrac"]//100; restl=early[nc:]; early=early[:nc]; nr_=29-e0-ne
    for k in range(nr_): EX[e0+ne+k]=restl[k*len(restl)//nr_:(k+1)*len(restl)//nr_]
    print("; early instrs",nc,len(restl),file=sys.stderr)
    wts=[1+OPT["ramp"]*(ne-1-k)/max(1,ne-1)/10 for k in range(ne)]; cs=[int(round(len(early)*sum(wts[:k])/sum(wts))) for k in range(ne+1)]
    for k in range(ne): (CL if OPT["clump"] else EX)[e0+k]=early[cs[k]:cs[k+1]]
    g2=OPT["g2b"]
    for dt,j in enumerate(str(OPT["bsj"]).split("_")): assert int(j)>max(x for x in range(32) if seq[x][1]==dt//3) ; EX[int(j)]=EX.get(int(j),[])+snd[dt]
    EX[OPT["jbf"]]=[f"@W bs\nbuffer_store_dword v{XA+3}, v{XA+2}, {WS}, s6 offen sc1 ; @bf"]
    EX[OPT["jbp"]]=poll_issue("p5").split("\n")
    EX[OPT["jbl"]]=(split_check(rcv[0]) if g2 else rcv[:1])+rcv[1:4]; EX[OPT["jbl"]+1]=rcv[4:]
    ju=OPT["jbu"]; assert ju==57
    EX[ju]=["@W bl"]; BC=[]
    for j in range(64):
        p,ks=seq[j]; e=(j-1)//2; half=(j-1)%2
        mf=[]
        for d in range(3):
            dt=3*ks+d
            for f in range(2):
                ft=f^(dt&1); acc_=Q((ACCF if j<32 else ACC1)+8*dt+4*ft)
                for n_,k in enumerate((1,0) if f else (0,1)):
                    mf.append(f"v_mfma_f32_16x16x32_bf16 {acc_}, {Q(16*(p&15)+8*k+4*ft,'a')}, {Q(HF+24*(j&1)+8*d+4*k)}, "+(acc_ if (n_ or p%16) else "0" if p==0 else Q(BU+4*ft)))
        g=(Gaps2 if g2 else Gaps)(mf)
        if j%8==0: stamp(a,2+j//8,"B")
        if j%4==0 and j<48: stamp(a,1+j//4,"B1")
        if j%4==0 and j>=16: stamp(a,1+(j-16)//4,"B2")
        g.before(0,f"@W - H{j}")
        ks=j&1
        if ks==1:
            tg=[f"h{x}" for x in need if need[x]==e][-1:]+([ep_wait[e]] if e in ep_wait else [])
            g.put([(f"@W {','.join(tg)}\n" if tg else "")+"s_barrier"],0,1)
        hh=ep_h.get(e,[])
        dm=(hdma(hh[0]) if hh else []) if ks==1 else (hdma(hh[1]) if len(hh)>1 else ep_dma.get(e,[]))
        if len(hh)>1 and e in ep_dma:
            allv=hdma(hh[0])+hdma(hh[1])+ep_dma[e]; dm=allv[:len(allv)//2] if ks==1 else allv[len(allv)//2:]
        if j==63:
            dm=flat([tile(True) for _ in range(OPT['n63'])])
        if j<63: g.put(hreads(j+1),1,7)
        if e in ep_rd:
            if g2: g.fit(flat([x.split("\n") for x in ep_rd[e][4*half:4*half+4]]),OPT["rd0"],12)
            else: g.put(ep_rd[e][4*half:4*half+4],7,11)
        if dm:
            if g2>1: g.fit([far(x,1) if (k and "m0," in dm[k-1]) else x for k,x in enumerate(dm)],ks,12,spread=0.3)
            else: g.put(dm,1 if ks==1 else 0,12)
        if j>ju:
            dt=3*(1-ks)+(j-58)//2; L_=[]
            for ft in range(2):
                q=2*dt+ft; A=ACC1+4*q; t=ACCF+4*ft
                L_+=unpack(t,RV+2*q)+unpack(t+2,RV+2*q+1)+[f"v_add_f32 v{A+r}, v{A+r}, v{t+r}" for r in range(4)]
            g.fit(L_,2,11)
        if EX.get(j): g.fit(EX[j],4 if j in (31,32,32-stg) else 0,12)
        if CL.get(j):
            c_=OPT["clump"]; n_=len(CL[j])
            for i in range(c_): g.g[(2*i+1)*12//(2*c_)]+=CL[j][i*n_//c_:(i+1)*n_//c_]
        if OPT.get("gnop") and OPT.get("gn0",0)<=j<OPT["gnop"]:
            for i in range(0,12,OPT.get("gns",3)): g.g[i].append("s_nop 7")
        if OPT.get("gcut") and j<OPT.get("gcj",64): g.mf=[m if (i%OPT["gcut"]) else "s_nop 0" for i,m in enumerate(g.mf)]
        if g2: BC.append(g.over())
        g.emit(a)
    if g2: print("; B cost/kstep"," ".join(f"{x:.0f}" for x in BC),file=sys.stderr)
    stamp(a,7); stamp(a,10,"B"); stamp(a,13,"B2")
    c=0.7978845608028654*2*1.4426950408889634
    BU=HF
    V=[f"v_mov_b32 v{BU+8}, {f2h(-c)}", f"s_mov_b32 s10, {f2h(-c*0.044715)}", f"s_lshl_b32 s9, s{N1}, 2\ns_add_u32 s9, s9, s3\ns_mul_i32 s9, s9, {U2_KS}\ns_add_u32 s9, s9, {WS_U2}"]
    for g in range(3):
        A=ACC1+16*g; T=GT; O=HF+16+8*g
        V+=[f"v_pk_mul_f32 {P(T+2*j)}, {P(A+2*j)}, {P(A+2*j)}" for j in range(8)]
        V+=[f"v_pk_fma_f32 {P(T+2*j)}, {P(T+2*j)}, s[10:11], {P(BU+8)} op_sel_hi:[1,0,0]" for j in range(8)]
        V+=[f"v_pk_mul_f32 {P(T+2*j)}, {P(T+2*j)}, {P(A+2*j)}" for j in range(8)]
        V+=[f"v_exp_f32 v{T+j}, v{T+j}" for j in range(16)]
        V+=[f"v_pk_add_f32 {P(T+2*j)}, {P(T+2*j)}, 1.0 op_sel_hi:[1,0]" for j in range(8)]
        V+=[f"v_rcp_f32 v{T+j}, v{T+j}" for j in range(16)]
        V+=[f"v_pk_mul_f32 {P(A+2*j)}, {P(A+2*j)}, {P(T+2*j)}" for j in range(8)]
        V+=[f"v_cvt_pk_bf16_f32 v{O+j}, v{A+2*j}, v{A+2*j+1}" for j in range(8)]
        V+=[f"buffer_store_dwordx4 {Q(O+4*h)}, v{UA+2*g+h}, {WS}, s9 offen sc1 ; @ust" for h in range(2)]
    a("@W - 0")
    fill=flat([tile(True) for _ in range(OPT["nin"])])
    if OPT.get("nogelu"): V=[x for x in V if not x.startswith(("v_exp","v_rcp","v_pk"))]
    a.extend(interleave(V,fill,0,len(V)-40) if fill else V)
    stamp(a,8)
    if OPT["wd"]==0: a.extend(warm("D"))
    old=sorted(S["slot"]); pe=OPT["pe"]; flag=f"buffer_store_dword v{XA+3}, v17, {WS}, 0 offen sc1 ; @fl"
    if OPT["cw"]: a(f"@W w2_{old[-1]}\ns_barrier")
    else:
        a("@W ust\ns_barrier\n"+flag); stamp(a,9)
        if pe==0: a(poll_issue("p2G"))
    stamp(a,1,"C")
    new=flat([tile(False) for _ in range(OPT["nc1"])])
    rd=flat([R.reads(t,S["slot"][t]) for t in old])
    a.extend(interleave(rd,new,len(rd)*OPT["c1s"]//100,len(rd)*OPT["c1e"]//100) if new else rd); stamp(a,2,"C")
    a.extend(kutable())
    if OPT["cw"]: a(f"@W ust r2_{old[-1]}\ns_barrier\n"+flag); stamp(a,9)
    else: a(f"@W - r2_{old[-1]}\ns_barrier")
    stamp(a,3,"C")
    for t in old: S["free"].append(S["slot"].pop(t))
    S["drain"]=old[-1]+1
    k=0
    while True:
        if pe==k+1: a(poll_issue("p2G"))
        d=tile(False)
        if not d: break
        a.extend(d); k+=1; stamp(a,3+k,"C")
    if pe>k+1: a(poll_issue("p2G"))
    assert S["issue"]==OPT["nC"]
    print("; C: drained",old,"resident",S["slot"], file=sys.stderr)
    stamp(a,13,"C")
    return S

CV_IMG=36864; CV_H0=2*CV_IMG; CV_COPY=4160; CV_BUF=2*CV_COPY
def roleX_A(a):
    if OPT["iw"]==1: a(".p2align 12")
    a("L_aux:")
    if OPT["smove"]>=2: a.extend(k2table())
    a(f"s_lshl2_add_u32 s7, s5, s6\ns_add_u32 s7, s7, 188\ns_add_u32 s8, s5, 248\ns_cmp_eq_u32 s6, 27\ns_cselect_b32 s{TID}, s8, s7")
    srd(a,48,S_SSM,576*4096)
    a(f"v_lshlrev_b32 v240, 4, v2\ns_mul_i32 s{LH}, s3, {2*CV_BUF}\ns_add_u32 s{LH}, s{LH}, {CV_H0}\ns_sub_u32 s{N1}, s{TID}, 216")
    a(f"s_lshl_b32 s{M1}, s{N1}, 4\ns_add_u32 s{M1}, s{M1}, s3\ns_lshl_b32 s12, s{M1}, 12\ns_lshl_b32 s{M1}, s{M1}, 1")
    d=cv_hdma(0); d=[d[0]+"\n"+d[1]]+d[2:]; k=OPT["cvs"]
    phaseA(a,"X",d[:k],[],d[k:]+(cv_hdma(1) if str(OPT["cvd"]).startswith("m2") else [])+warm("X"))
    a("L_segX:")
    if str(OPT["cvd"]).startswith("m3"): a.extend(cv_hdma(1))
    if OPT["pfw"]:
        srd(a,64,S_W1,2048*4608*2)
        a(f"s_lshr_b32 s4, s2, 3\ns_sub_u32 s4, s4, 27\ns_lshl2_add_u32 s4, s4, s3\ns_lshr_b32 s5, s4, 1\ns_mul_i32 s7, s5, 21846\ns_lshr_b32 s7, s7, 16\ns_mul_i32 s8, s7, 3\ns_sub_u32 s5, s5, s8")
        a(f"s_sub_u32 s8, 1, s{KQ}\ns_and_b32 s8, s8, 3\ns_lshl2_add_u32 s7, s7, s8\ns_and_b32 s4, s4, 1\ns_lshl_b32 s4, s4, 5\ns_lshl_b32 s5, s5, 7\ns_add_u32 s4, s4, s5\ns_and_b32 s5, s2, 1\ns_lshl_b32 s5, s5, 10\ns_add_u32 s4, s4, s5")
        a(f"s_add_u32 s4, s4, {64*OPT['pf0']}\ns_mul_i32 s4, s4, 9216\ns_mul_i32 s5, s{KQ}, 9\ns_add_u32 s5, s5, s7\ns_lshl_b32 s5, s5, 8\ns_add_u32 s4, s4, s5\ns_cmp_lt_u32 s7, 9\ns_cselect_b32 s4, s4, {OOB}")
        a("v_lshrrev_b32 v24, 1, v2\nv_mul_u32_u24 v24, 9216, v24\nv_and_b32 v25, 1, v2\nv_lshl_add_u32 v24, v25, 7, v24")
        for i in range(OPT["pfw"]): a(f"buffer_load_dword v255, v24, {RC}, s4 offen ; @pf\ns_add_u32 s4, s4, {64*9216}")
    a(f"s_cmp_lt_u32 s{TID}, 252\ns_cbranch_scc0 L_idle")
def xsetup():
    t=Asm(); srd(t,60,S_B2,4096)
    return warm("D")+[i.text for i in t.L]+eprep()+w2setup()+dsetA()+kutable()
def nX(): return OPT["nX"]
XS={}
def cv_hdma(c):
    L=[f"s_add_u32 m0, s{LH}, {(c&1)*CV_BUF+32}\ns_add_u32 s13, s12, {16384*c}"]
    return L+[f"buffer_load_dwordx4 v240, {RW1}, s13 offen offset:{1024*i} lds ; @hc{c}" for i in range(4)]
def conv(a):
    ACC=32; S0=64; T=192; U=208; BT=212
    VHD,BA,FX,EB,YO,DR,AB,BB,DV,VK=240,241,242,243,8,9,236,244,248,15
    R=W2R(); kp_=OPT["hp"]>1; GS_=HG if kp_ else 9216
    srd(a,56,S_D,576*2)
    def dload(c): return f"v_mov_b32 v{DR}, {8*c}\nbuffer_load_ushort v{DR}, v{DR}, {RA}, s{M1} offen ; @hd{c}"
    a(dload(0))
    fold=OPT["fold"]
    def dbuild(): return [] if fold else [f"v_lshl_or_b32 v{DR}, v{DR}, 16, v{DR}"]+[f"v_and_b32 v{DV+k}, v{DR}, v{U+k}" for k in range(4)]
    if not fold:
        a(f"v_and_b32 v196, 15, v2\nv_lshrrev_b32 v197, 4, v2\nv_lshlrev_b32 v197, 3, v197\nv_add_u32 v196, v196, v197\nv_sub_u32 v196, 15, v196")
        a("v_and_b32 v197, 1, v196\nv_lshlrev_b32 v197, 4, v197\nv_mov_b32 v198, 0xffff\nv_lshlrev_b32 v197, v197, v198\nv_ashrrev_i32 v196, 1, v196")
        for k in range(4): a(f"v_cmp_eq_u32 vcc, {k}, v196\nv_cndmask_b32 v{U+k}, 0, v197, vcc")
    a.extend(poll1_addr())
    a(f"v_add_u32 v{BA}, s{LH}, v{VHD}\nv_cmp_eq_u32 vcc, 0, v2\nv_mov_b32 v196, 4136\nv_cndmask_b32 v196, v196, 30, vcc\nv_add_u32 v{FX}, s{LH}, v196")
    a(f"v_bfe_u32 v196, v2, 3, 2\nv_mul_u32_u24 v196, {CV_COPY}, v196\nv_and_b32 v197, 7, v2\nv_lshl_add_u32 v196, v197, 2, v196\nv_add_u32 v200, s{LH}, v196")
    a("v_mov_b32 v196, 0\nv_mov_b32 v197, 0\nv_mov_b32 v198, 0\nv_mov_b32 v199, 0\nds_write_b32 v200, v196\nv_lshlrev_b32 v201, 4, v0")
    a(f"ds_write_b128 v201, v[196:199]\nds_write_b128 v201, v[196:199] offset:{CV_IMG}")
    def brd(c):
        o=(c&1)*CV_BUF+32
        return flat([[f"ds_read_b128 {Q(BT+6*i)}, v{BA} offset:{o+1024*i} ; @b{c}", f"ds_read_b32 v{BT+6*i+4}, v{BA} offset:{o+1024*i+16} ; @b{c}"] for i in range(4)])
    def bwr(c):
        o=(c&1)*CV_BUF+CV_COPY; L=[f"ds_write_b16 v{FX}, v{BT} offset:{o}"]
        if fold: L=[f"@W hd{c}", f"v_lshlrev_b32 v{DR}, 16, v{DR}", f"v_lshlrev_b32 v{U}, 16, v{BT}", f"v_add_f32 v{DR}, v{DR}, v{U}", f"v_cvt_pk_bf16_f32 v{DR}, v{DR}, v{DR}",
                    f"ds_write_b16 v{FX}, v{DR} offset:{o}", f"ds_write_b16 v{FX}, v{DR} offset:{o-CV_COPY+2}"]
        for i in range(4):
            t=BT+6*i
            L+=[f"v_alignbit_b32 v{t+k}, v{t+k+1}, v{t+k}, 16" for k in range(4)]+[f"ds_write_b128 v{BA}, {Q(t)} offset:{o+32+1024*i} ; @bw"]
        return L
    if OPT["kp"]==0: a(poll_issue("p1X"))
    a("@W hc0"); a.extend(brd(0))
    a(f"v_lshrrev_b32 v202, 3, v2\nv_and_b32 v203, 7, v2\nv_lshrrev_b32 v204, 1, v202\nv_xor_b32 v203, v203, v204\nv_mul_u32_u24 v202, {GS_}, v202")
    a(f"v_lshl_add_u32 v{VK}, v203, 4, v202\nv_xor_b32 v{VK+1}, 64, v{VK}")
    a(f"v_and_b32 v202, 15, v2\nv_add_u32 v202, 1, v202\nv_and_b32 v203, 1, v202\nv_mul_u32_u24 v203, {CV_COPY}, v203\nv_lshrrev_b32 v202, 1, v202\nv_lshl_add_u32 v203, v202, 2, v203")
    a(f"v_lshrrev_b32 v204, 4, v2\nv_lshl_add_u32 v203, v204, 4, v203\nv_add_u32 v{AB}, s{LH}, v203")
    for p in range(1,4): a(f"v_add_u32 v{AB+p}, 1024, v{AB+p-1}")
    if OPT["kp"]==1: a(poll_issue("p1X"))
    a("@W - b0"); a.extend(bwr(0))
    if OPT["kp"]==2: a(poll_issue("p1X"))
    for v in range(4):
        a(f"v_and_b32 v202, 15, v2\nv_lshlrev_b32 v202, 1, v202\nv_sub_u32 v202, v202, v204\nv_add_u32 v202, {17-4*v}, v202")
        a(f"v_bfe_u32 v203, v202, 1, 3\nv_xor_b32 v203, s3, v203\nv_lshlrev_b32 v203, 4, v203\nv_lshl_add_u32 v{BB+v}, v202, 7, v203")
    a(f"v_and_b32 v202, 15, v2\nv_lshlrev_b32 v202, 5, v202\nv_lshl_add_u32 v{YO}, v204, 3, v202")
    a(f"s_mul_i32 s7, s3, {64*9216}\ns_lshl_b32 s8, s{N1}, 8\ns_add_u32 s7, s7, s8\ns_add_u32 s10, s7, {WS_KVT}\ns_lshl_b32 s9, s3, 13\ns_add_u32 s9, s9, 4096")
    if kp_:
        for d,o in ((10,0),(11,1)):
            a(f"s_lshl1_add_u32 s4, s{N1}, {o}\ns_mul_i32 s5, s4, 9363\ns_lshr_b32 s5, s5, 16\ns_mul_i32 s7, s5, 7\ns_sub_u32 s7, s4, s7\ns_cmp_gt_u32 s7, 2\ns_addc_u32 s4, s4, s5\ns_lshl_b32 s4, s4, 7\ns_mul_i32 s7, s3, {64*HG}\ns_add_u32 s4, s4, s7\ns_add_u32 s{d}, s4, {WS_KP}")
    def rdA(G,c):
        g0=G&7; r=S0+64*(G&1)+4*c; o=(64*g0+512*(c&1))//4; tg=f"f{G}" if c==0 else f"g{G}"
        return [f"ds_read2_b32 {P(r)}, v{AB+(c>>1)} offset0:{o} offset1:{o+1} ; @{tg}", f"ds_read2_b32 {P(r+2)}, v{AB+(c>>1)} offset0:{o+2} offset1:{o+3} ; @{tg}"]
    def rdB(G):
        g0=G&7
        return [f"ds_read_b128 {Q(S0+64*(G&1)+32+4*c)}, v{BB+(g0&3)} offset:{4096*c+(0 if g0>>2 else 2048)} ; @f{G}" for c in range(8)]
    def reads(G):
        if OPT["cch"]:
            L=flat([[rdB(G)[c]]+rdA(G,c) for c in range(8)])
            return [re.sub(r"@[fg]","@f" if i<12 else "@g",x) for i,x in enumerate(L)]
        return rdA(G,0)+rdB(G)+flat([rdA(G,c) for c in range(1,8)])
    a.extend(flat([rdA(0,c) for c in range(8)]))
    if OPT["kp"]==3: a(poll_issue("p1X"))
    if not fold: a("@W hd0"); a.extend(dbuild())
    stamp(a,5)
    a(poll_check("p1X"))
    if not (atom("p1") and OPT["kvb"]): a("s_barrier")
    stamp(a,6); stamp(a,1,"B")
    def kvdma(img):
        return [f"s_add_u32 m0, s9, {img*CV_IMG+i*1024}\ns_add_u32 s13, s{10+img*kp_}, {i*8*GS_+img*128*(not kp_)}\nbuffer_load_dwordx4 v{VK+(i&1)}, {WS}, s13 offen sc1 lds ; @kvi{img}" for i in range(8)]
    cvd=[int(x) for x in str(OPT["cvd"]).replace("m","-").split("_")]
    a.extend(kvdma(0)+xsetup()+R.goto(2)+(cv_hdma(1) if cvd[0]==-1 else []))
    a("@W kvi0 0\ns_barrier")
    a.extend(rdB(0))
    def epi(ch,q):
        A=ACC+4*q; k=T+2*q
        return [f"v_cvt_pk_bf16_f32 v{k}, v{A}, v{A+1}", f"v_cvt_pk_bf16_f32 v{k+1}, v{A+2}, v{A+3}",
                f"buffer_store_dwordx2 {P(k)}, v{YO}, {WS}, s6 offen offset:{512*q} sc1 ; @yst"]
    GS=[]
    for G in range(32):
        ch,rho=divmod(G,8); s=S0+64*(G&1)
        def M(c,q):
            if c<0: return f"v_mfma_f32_16x16x32_bf16 {Q(ACC+4*q)}, {Q(DV)}, {Q(s+32+4*q)}, 0"
            z=fold and rho==0 and q not in seen; seen.add(q)
            return f"v_mfma_f32_16x16x32_bf16 {Q(ACC+4*q)}, {Q(s+4*c)}, {Q(s+32+4*(q-c))}, "+("0" if z else Q(ACC+4*q))
        qmaj = rho==7 or (rho==0 and ch>0); c0=-1 if (rho==0 and not fold) else 0; seen=set(); GP=Gaps2 if OPT["g2c"] else Gaps
        g=GP([M(c,q) for q in range(7,-1,-1) for c in range(c0,q+1)] if qmaj else [M(c,q) for c in range(c0,8) for q in range(max(c,0),8)])
        if OPT["cch"] and not qmaj: seen=set(); g=GP([M(c,q) for q in range(8) for c in ([-1] if c0 else [])+(list(range(q+1)) if q&1==0 else list(range(q,-1,-1)))])
        n=len(g.mf); GS.append(g)
        if qmaj: g.before(0,f"@W - g{G}")
        elif OPT["cch"]: g.before(0,f"@W - f{G}"); g.before(10-4*c0,f"@W - g{G}")
        else: g.before(0,f"@W - f{G}"); g.before(n-28,f"@W - g{G}")
    def late():
      for G,g in enumerate(GS):
        ch,rho=divmod(G,8); n=len(g.mf)
        if ch<3:
            r=[f"@W - b{ch+1}"]+bwr(ch+1)
            rb=OPT["cvb"]
            if rho==rb: g.fit([f"@W hc{ch+1}"]+brd(ch+1),16,36)
            k=len(r)-10
            if rho==rb+1: g.fit(r[:k],4,36)
            if rho==rb+2: g.fit(r[k:]+([] if fold else [f"@W hd{ch+1}"])+dbuild(),0,36)
            if rho==6:
                g.fit([f"v_xor_b32 v{BB+v}, 64, v{BB+v}" for v in range(4)]+([f"v_add_u32 v{BB+v}, {CV_IMG}, v{BB+v}" for v in range(4)] if ch==1 else []),18,36)
                g.fit([f"v_add_u32 v{AB+p}, {CV_BUF if ch%2==0 else -CV_BUF}, v{AB+p}" for p in range(4)],29,36)
        if rho==6: g.fit([f"s_add_u32 s6, s12, {WS_YC+16384*ch}"],0,36)
        if rho==7: g.fit(epi(ch,7),12,20); g.fit(epi(ch,6),20,28); g.fit(epi(ch,5),28,36)
        if rho==0 and ch>0:
            e1,e2=(20,32) if fold else (23,38)
            g.fit(epi(ch-1,4)+epi(ch-1,3)+epi(ch-1,2),0,e1); g.fit(epi(ch-1,1)+epi(ch-1,0),e1,e2)
        if G<31:
            rr=reads(G+1)
            if rho==6:
                if OPT["cch"]:
                    rr=[x for x in rr if "b128" in x]+[x for x in rr if "b128" not in x]; rr=[re.sub(r"@f","@g",x) for x in rr]
                g.fit(rr[:10],0,14); g.fit(rr[10:],14,29)
            else: g.fit(rr,0,n-7 if rho==7 else n-1)
    def place(items, start, length):
        for k,it in enumerate(items):
            x=start+length*k/len(items); G=int(x); g=GS[G]; g.g[int((x-G)*len(g.mf))].append(it)
    flatg=[(G,i) for G,g in enumerate(GS) for i in range(len(g.mf))]; used=set()
    def nextgap(pre, item, start):
        G=int(start); p=flatg.index((G,int((start-G)*len(GS[G].mf))))
        while p in used or p+1 in used: p+=1
        used.update((p,p+1))
        GS[flatg[p][0]].g[flatg[p][1]].append(pre); GS[flatg[p+1][0]].g[flatg[p+1][1]].append(item)
    plan=[[int(y) for y in x.split(".")] for x in str(OPT["cvp"]).split("_")]; assert len(plan)==nX()
    B={102:[[],[],[]],149:[["kvi1"],[],[]],171:[[],[],[]]}; last={}
    for t,(sl,st,dr) in enumerate(plan):
        if dr: B.setdefault(dr,[[],[],[]])[0].append(f"w2_{t}")
        else: XS[t]=sl; assert sl<2 and t>=nX()-2
        assert (sl!=3 or dr<=97) and (sl>1 or st>171) and (not dr or t==0 or dr>=plan[t-1][2]+4)
    for t,(sl,st,dr) in enumerate(plan):
        if sl in last:
            d0=plan[last[sl]][2]+4; assert d0<=st-1,(t,sl); c=[b for b in B if d0<=b<=st-1]
            B.setdefault(max(c) if c else st-1,[[],[],[]])[1].append(last[sl])
        last[sl]=t
    if 3 in last: B[102][1].append(last[3])
    for t,(sl,st,dr) in enumerate(plan):
        if dr: B[dr][2]=flat([x.split("\n") for x in R.reads(t,sl)])
    for b,(vt,lt,rd) in sorted(B.items()): place([f"@W {','.join(vt) or '-'} {f'r2_{max(lt)}' if lt else '-'}\ns_barrier"]+rd,b/10,0.36)
    for t,(sl,st,dr) in enumerate(plan):
        d=w2dma(t,sl); m0,so=d[0].split("\n",1); place([so],st/10,1); ln=min(OPT["cvn"],(plan[t+1][1] if t+1<len(plan) else 319)-st)/10
        for r in range(4): nextgap(m0,d[1+r],st/10+0.03+ln*r/4)
    print("; conv barriers",len(B),file=sys.stderr)
    for ch in range(3):
        d=cv_hdma(ch+1); m0,so=d[0].split("\n",1); st=cvd[ch]/10; assert st>=8*ch-1
        place([dload(ch+1)],8*ch+1.35,1)
        if st<0: continue
        place([so],st+0.1,1)
        for r in range(4): nextgap(m0,d[1+r],st+0.15+0.22*r)
    for i,it in enumerate(kvdma(1)):
        pre,ld=it.rsplit("\n",1); nextgap(pre,ld,11.2+0.25*i)
    px=OPT["px"]/10; place(lines(poll2_addr()),min(30.05,px-1),0.9)
    if px<32: place(poll_issue("p2X").split("\n"),px,0.1)
    late()
    print("; conv overload", " ".join(f"{g.over():.0f}" for g in GS), file=sys.stderr)
    for G,g in enumerate(GS):
        if G%4==0: stamp(a,2+G//4,"B")
        if 8<=G<=20: stamp(a,G-7,"V")
        if 20<=G: stamp(a,G-19,"W")
        if OPT.get("cvcut"): g.mf=[m if (i%OPT["cvcut"]) else "s_nop 0" for i,m in enumerate(g.mf)]
        g.emit(a)
    if px>=32: a(poll_issue("p2X"))
    for q in range(4,-1,-1): a.extend(epi(3,q))
    stamp(a,7); stamp(a,10,"B"); stamp(a,13,"W")
    a.extend(R.goto(0))
    a("@W - 0\ns_barrier")
    stamp(a,9)
def idle(a):
    a("L_idle:")
    a("s_waitcnt vmcnt(0)\ns_barrier")
    a.extend(xsetup())
    R=W2R()
    if OPT["ipc"]:
        n=OPT["ipc"]*16
        a(f"s_sub_u32 s4, s{TID}, 252\ns_mul_i32 s4, s4, 1152\ns_mul_i32 s5, s3, {n}\ns_add_u32 s4, s4, s5\ns_add_u32 s4, s4, {1152-4*n}\ns_lshl_b32 s4, s4, 12\ns_add_u32 s4, s4, 384\nv_lshlrev_b32 v24, 10, v2")
        for i in range(n//16): a(f"buffer_load_dword v255, v24, {RW2}, s4 offen ; @pf\ns_add_u32 s4, s4, 65536")
    if OPT["ipf"]:
        n=OPT["ipf"]*16
        a(f"s_sub_u32 s4, s{TID}, 252\ns_mul_i32 s4, s4, 1152\ns_mul_i32 s5, s3, {n}\ns_add_u32 s4, s4, s5\ns_add_u32 s4, s4, {1152-4*n}\ns_lshl_b32 s4, s4, 12\nv_and_b32 v25, 7, v2\nv_cmp_eq_u32 vcc, 3, v25\nv_subbrev_co_u32 v24, vcc, 0, v2, vcc\nv_lshlrev_b32 v24, 7, v24")
        for i in range(n//2): a(f"buffer_load_dword v255, v24, {RW2}, s4 offen ; @pf\ns_add_u32 s4, s4, 8192"+("\ns_waitcnt vmcnt(24)" if i>24 else ""))
    n=nX(); S=dict(R=R,slot={},free=list(range(10)),issue=0,drain=0)
    for s in w2steps(S,n,n-2,lambda t,free: (XS[t] if t>=n-2 else ([s for s in free if s>1] or [None])[0])): a.extend(s)
    a.extend(R.goto(0))
    a.extend(warm("D"))
    a.extend(poll2_addr())
    if OPT["isl"]:
        a(f"s_mov_b32 s5, 0\nL_iw:\ns_sleep {OPT['isl']}\n{poll_op('p2X')}\ns_waitcnt vmcnt(0)\nv_cmp_eq_u32 vcc, 0, v13\ns_mov_b64 s[6:7], vcc\nv_cmp_ne_u32 vcc, v13, v{PV+1}\ns_andn2_b64 s[8:9], exec, vcc\ns_andn2_b64 s[8:9], s[8:9], s[6:7]"
          f"\ns_cbranch_scc1 L_ix\ns_cmp_eq_u64 s[6:7], exec\ns_cbranch_scc1 L_ix\ns_add_u32 s5, s5, 1\ns_cmp_lt_u32 s5, {OPT['spinmax']}\ns_cbranch_scc1 L_iw\nL_ix:")
    a(poll_issue("p2X"))
    a("s_branch L_DX")

def dsetA():
    L=[f"v_and_b32 v24, 15, v2\nv_lshrrev_b32 v25, 4, v2\nv_mul_u32_u24 v25, {U2_PL}, v25\nv_lshl_add_u32 v24, v24, 4, v25",
       f"s_mul_i32 s7, s{KQ}, 36\ns_and_b32 s8, s3, 1\ns_add_u32 s7, s7, s8\ns_mul_i32 s7, s7, {U2_KS}\n"+MP.format(8)+f"\ns_lshl_b32 s8, s8, 12\ns_add_u32 s7, s7, s8\ns_add_u32 s7, s7, {WS_U2}\nv_add_u32 v{VA+4}, s7, v24"]
    L+=[f"s_xor_b32 s7, s{KQ}, {b}\nv_lshl_add_u32 v{VA+b}, s7, 10, v{VA+4}" for b in range(4)]
    L.append(f"v_lshlrev_b32 v{RR}, 4, v2\nv_add_u32 v{RR}, {(10-OPT['nsl'])*SLOT}, v{RR}\nv_add_u32 v1, 0x10000, v{RR}")
    return L
def dsetE():
    t=Asm(); srd(t,56,S_Q,NB_SD)
    return [i.text for i in t.L]+[f"s_mov_b32 s{SC16}, {16*1152}\ns_mov_b32 s{SST}, {WS_STATS}"]
def dsetB():
    t=Asm(); srd(t,64,S_OUT,NB_SD); L=[i.text for i in t.L]
    L+=[f"v_lshlrev_b32 v{L16}, 4, v2", w2base(7)+f"\nv_subrev_u32 v{YP}, s7, v{VW2}\nv_subrev_u32 v{YP+1}, s7, v{VW2+1}"]
    L+=[MP.format(4)+f"\ns_mul_i32 s4, s4, 9\ns_lshl1_add_u32 s7, s{KQ}, s4\ns_and_b32 s8, s3, 1\ns_add_u32 s7, s7, s8\ns_bfe_u32 s8, s2, {0x10003 if OPT['al'] else 3}\ns_add_u32 s7, s7, s8\ns_lshl_b32 s8, s8, 3\ns_sub_u32 s4, s4, s8\ns_lshl_b32 s{SY0}, s7, 16\ns_add_u32 s{SY0}, s{SY0}, {WS_YC}\ns_add_u32 s4, s4, 8\ns_lshl_b32 s{SY8}, s4, 16\ns_add_u32 s{SY8}, s{SY8}, {WS_YC}",
        f"s_sub_u32 s4, s4, s7\ns_lshl_b32 s4, s4, 7\ns_lshl_b32 s7, s7, 7\ns_add_u32 s7, s7, {FLAGY}\nv_bfe_u32 v24, v2, 2, 1\nv_mul_i32_i24 v24, s4, v24\nv_and_b32 v25, 3, v2\nv_lshl_add_u32 v24, v25, 2, v24\nv_add_u32 v{PY}, s7, v24"]
    XA,XB,XZ,X8=(WS_X4+k*(3<<20) for k in range(4))
    L+=[f"s_lshl2_add_u32 s7, s2, s3\ns_mul_i32 s8, s7, 3072\ns_add_u32 s{SMA}, s8, {XA}\ns_add_u32 s{SMB}, s8, {XB}\ns_add_u32 s{SMZ}, s8, {XZ}\ns_lshl_b32 s{SM8}, s7, 12\ns_add_u32 s{SM8}, s{SM8}, {X8}"]
    L+=[f"s_xor_b32 s8, s7, {8*b}\ns_mul_i32 s8, s8, 3072\ns_add_u32 s{d}, s8, {x}" for b,d,x in ((1,SYA,XA),(2,SYB,XB),(3,SZ,XZ))]
    L+=[f"s_andn2_b32 s7, s7, 24\ns_lshl3_add_u32 s7, s3, s7\ns_lshl2_add_u32 s8, s7, s{KQ}\ns_lshl_b32 s8, s8, 10\ns_add_u32 s{SR0}, s8, {X8}\ns_xor_b32 s8, s8, 4096\ns_add_u32 s{SR1}, s8, {X8}",
        f"s_xor_b32 s8, s3, s{KQ}\ns_cmp_lt_u32 s8, 2\ns_cselect_b32 s{SM8}, s{SM8}, {OOB}\ns_cselect_b32 s{SY8}, s{SY8}, {OOB}\ns_cselect_b32 s{ST8}, s{NONCE}, 0",
        f"s_mov_b32 s38, {f2h(-1.4426950408889634)}"]
    L+=[f"s_and_b32 s8, s8, 1\ns_mul_i32 s41, s8, 96\ns_and_b32 s43, s{LW}, 4096"]
    if len(OPT["np"])<3 or OPT["cpo"]: L+=[f"v_lshlrev_b32 v24, 10, v2\nv_add_u32 v24, s{SM8}, v24\ns_add_u32 s7, s{SMA}, 2048\nv_mov_b32 v25, s{ST8}\nv_cmp_gt_u32 vcc, 4, v2\nv_cndmask_b32 v{PE1}, 0, v25, vcc\nv_mov_b32 v25, {OOB}\nv_cndmask_b32 v{PA1}, v25, v24, vcc",
        f"v_writelane_b32 v{PA1}, s7, 4\nv_writelane_b32 v{PE1}, s{NONCE}, 4\nv_min_u32 v{PA2}, 1, v2\nv_lshlrev_b32 v{PA2}, 30, v{PA2}\nv_mov_b32 v{PE2}, 0\nv_writelane_b32 v{PE2}, s{NONCE}, 0"]
    return L
FLAGY=FLAG2+16384
A8,AB=32,(88,40,56,72)
XP,STT,B2,X8=88,96,102,142
def eloads():
    L=[f"v_lshrrev_b32 v30, 2, v{SA}", f"v_lshrrev_b32 v31, 2, v{SA8}"]
    L+=[f"buffer_load_dwordx4 {Q(XP+4*j)}, v{XO}, {RA}, {('0',f's{SC16}')[j]} offen ; @ex" for j in range(2)]+[f"buffer_load_dwordx2 {P(X8)}, v{XO+1}, {RA}, 0 offen ; @ex"]
    L+=[f"buffer_load_dwordx2 {P(STT+2*n)}, v{SA if n<2 else SA8}, {WS}, s{SST} offen offset:{128*(n&1)} sc1 ; @ex" for n in range(3)]
    L+=[f"buffer_load_ushort v{B2+n if n<2 else B8}, v{30+(n>>1)}, {RB_}, 0 offen offset:{32*(n&1)} ; @eb" for n in range(3)]
    return L
def phaseD(a, ac, role, S):
    R=S["R"]; NSL=OPT["nsl"]; RS0=10-NSL; YSL=RS0-1; assert YSL>=4 and OPT["fpl"]==2
    a(f"L_D{role}:")
    us=OPT["usk"]; r1=[("R",0),(1,0),(1,1)]; blk=lambda b:[(b,0),(b,1)]
    groups=[(b,r,u) for rows,ur in ((r1+blk(2),range(us)),(r1,range(us,9)),(blk(2),range(us,9)),(blk(3),range(9)),(blk(0),range(9))) for u in ur for b,r in rows]
    need=[min(i for i,x in enumerate(groups) if x[2]==u) for u in range(9)]
    GS=need[8]//4*4; end={b:max(i for i,x in enumerate(groups) if x[0]==b)+1 for b in ("R",0,1,2,3)}; beg={b:min(i for i,x in enumerate(groups) if x[0]==b) for b in (0,3)}
    def acc(b,r): return A8 if b=="R" else AB[b]+8*r
    mf=[]
    for g_,(b,r,u) in enumerate(groups):
        for n_,nt in enumerate((1,0) if g_&1 else (0,1)):
            c=Q(acc(b,r)+4*nt)
            for i,k in enumerate((3,2,1,0) if n_ else (0,1,2,3)):
                kind,r0=w2reg(2*u+(k>>1))
                mf.append(f"v_mfma_f32_16x16x32_bf16 {c}, {Q(AF+16*(g_&1)+4*k)}, {Q(r0+8*(k&1)+4*nt,kind)}, "+("0" if (i==0 and u==0 and b in ("R",1,2)) else c))
    g=Gaps2(mf); fit0=g.fit
    def fit(L,s_,e_):
        assert not s_<8*GS<e_, ("list crosses the role boundary",L[:2])
        if OPT.get("skipv"): L=[x for x in L if not (x.startswith("v_") and "cmp" not in x and "add_u32" not in x and "xor" not in x and "v_mov" not in x and "lshrrev" not in x and "v_min" not in x and f"v{PV}," not in x)]
        if L: fit0(L,s_,e_)
    g.fit=fit
    def G(x): return int(round(8*x))
    def udma(g_):
        b,r,u=groups[g_]; e=g_//4; o=768 if b=="R" else 512*r
        return [f"s_add_u32 m0, s{LW}, {(RS0+e%NSL)*SLOT+1024*(g_%4)-o}", f"buffer_load_dwordx4 v{VA+(4 if b=='R' else b)}, {WS}, s{KU+u} offen offset:{o} sc1 lds ; @u{e}"]
    def urd(g_): return [f"ds_read_b128 {Q(AF+16*(g_&1)+4*k)}, v{RR if g_//4%NSL<4 else 1} offset:{(g_//4%NSL%4)*SLOT+4096*k+1024*(g_%4)} ; @f{g_}{'ab'[k>>1]}" for k in range(4)]
    PD=(0,1,2,4,5,6,8,9)
    def send(b,so):
        L=[]
        for d in range(8):
            L.append(f"v_cvt_pk_bf16_f32 v{SB+PD[d]}, v{AB[b]+2*d}, v{AB[b]+2*d+1}")
            if d in (2,5,7): L.append(far(f"buffer_store_dwordx4 {Q(SB+PD[d]//4*4)}, v{L16}, {WS}, s{so} offen offset:{PD[d]//4*1024} sc1 ; @xs{b}",1))
        return L
    def rld(h,dst,so,n,tg=True): return [far(f"buffer_load_dwordx4 {Q(dst+4*p)}, v{L16}, {WS}, s{so} offen offset:{1024*p} sc1"+(f" ; @r{h}" if tg else ""),1) for p in range(n)]
    def rchk(h,dst,so,n,tag):
        t=[f"v_bitop3_b32 v{dst+3}, v{dst+3}, v{dst+7}, s{tag} bitop3:0x7e"]+[f"v_bitop3_b32 v{dst+3}, v{dst+3}, v{dst+4*p+3}, s{tag} bitop3:0xf6" for p in range(2,n)]+[f"v_cmp_ne_u32 vcc, 0, v{dst+3}"]
        va,ps,off,ve={"a":(PA1,"0",12,PE1),"8":(PA1,"0",12,PE1),"b":(PA2,f"s{SMB}",2060,PE2),"z":(PA2,f"s{SMZ}",2060,PE2)}[h]
        look="" if h not in OPT["cpo"] else (f"v_mov_b32 v{PD_+46}, 0\nbuffer_atomic_add v{PD_+46}, v{va}, {WS}, {ps} offen offset:{off} sc0 sc1\ns_waitcnt vmcnt(0)\nv_cmp_ne_u32 vcc, v{ve}, v{PD_+46}\ns_cbranch_vccz L_xr_{h}\n"
            f"s_add_u32 s5, s5, 1\ns_cmp_lt_u32 s5, {OPT['spinmax']}\ns_cbranch_scc1 L_xt_{h}\nL_xr_{h}:\n")
        if ac is not None: COLD.append(f"L_xs_{h}:\ns_mov_b32 s5, 0\nL_xt_{h}:\n"+look+"\n".join(rld(h,dst,so,n,False))+"\ns_waitcnt vmcnt(0)\n"+"\n".join(t)
            +f"\ns_cbranch_vccz L_xo_{h}\ns_add_u32 s5, s5, 1\ns_cmp_lt_u32 s5, {OPT['spinmax']}\ns_cbranch_scc1 L_xt_{h}\ns_branch L_xo_{h}")
        return [f"@W r{h}"]+t[:-1]+split_check(t[-1]+("" if OPT.get("nochk") else f"\ns_cbranch_vccnz L_xs_{h}")+f"\nL_xo_{h}:")
    def apoll(h,va,so,off,tg=True): return [f"v_mov_b32 v{PD_}, 0", far(f"buffer_atomic_add v{PD_}, v{va}, {WS}, {so} offen offset:{off} sc0 sc1"+(f" ; @q{h}" if tg else ""),1)]
    def achk(h,va,so,off,ve):
        t=f"v_cmp_ne_u32 vcc, v{ve}, v{PD_}"
        if ac is not None: COLD.append(f"L_as_{h}:\ns_mov_b32 s5, 0\nL_at_{h}:\n"+"\n".join(apoll(h,va,so,off,False))+f"\ns_waitcnt vmcnt(0)\n{t}"
            +f"\ns_cbranch_vccz L_ao_{h}\ns_add_u32 s5, s5, 1\ns_cmp_lt_u32 s5, {OPT['spinmax']}\ns_cbranch_scc1 L_at_{h}\ns_branch L_ao_{h}")
        return [f"@W q{h}"]+split_check(t+("" if OPT.get("nochk") else f"\ns_cbranch_vccnz L_as_{h}")+f"\nL_ao_{h}:")
    def unp(dst,src,ds=range(8)): return flat([unpack(dst+2*d,src+PD[d]) for d in ds])
    late=(dsetE() if role=="X" else [])+(dsetB() if (role=="X" or not OPT["hoist"]) else [])
    stamp(a,10)
    a(poll_check("p2"+role))
    if OPT["pw0"]: a("s_barrier")
    stamp(a,11); stamp(a,1,"D"); stamp(a,1,"D1")
    F0=OPT["f0"]
    for x in range(F0): a.extend(udma(x))
    a.extend(late)
    a.extend([f"v_mov_b32 v{SB+k}, s{NONCE}" for k in (3,7,10,11)])
    a("@W u0\ns_barrier"); a.extend(urd(0))
    nxt=F0; m0busy=set(); quiet=set(flat([list(range(*[int(y) for y in x.split(".")])) for x in str(OPT["uq"]).split("_") if "." in x]))
    for g_ in range(81):
        g.before(8*g_,f"@W - f{g_}a"); g.before(8*g_+2,f"@W - f{g_}b")
        bar=(g_+1)%4==0
        if bar: g.g[8*g_+2].append(f"@W u{(g_+1)//4} -\ns_barrier")
        if g_<80:
            for k,x in enumerate(urd(g_+1)): g.g[8*g_+(3 if bar else OPT["rg"])+k].append(x)
        k=0
        while nxt<81 and k<OPT["ncat"] and nxt//4<=g_//4+NSL-1 and nxt<=g_+OPT["lag"] and g_ not in quiet:
            d=udma(nxt); p=8*g_+(0,6)[k]; assert nxt//4*4-1-g_>=5, (nxt,g_)
            g.g[p].append(d[0]); g.g[p+1].append(d[1]); m0busy.update((p,p+1)); nxt+=1; k+=1
    assert nxt==81
    def addw(e,tag):
        f=g.g[8*(4*e-1)+2]; i=[k for k,x in enumerate(f) if x.startswith(f"@W u{e}") or x.startswith(f"@W w")][0]; w,rest=f[i].split("\n",1); p=w.split()
        if tag[0]=="r": p[2]=tag if p[2]=="-" else p[2]+","+tag
        else: p[1]+=","+tag
        f[i]=" ".join(p)+"\n"+rest
    free=[(s_,0) for s_ in sorted(S["free"]) if s_<YSL+(not OPT["yin"])]; slot=S["slot"]; assert all(s_<RS0 for s_ in slot.values()), slot
    at={t:1+OPT["jd0"] for t in slot}; ti,td=S["issue"],S["drain"]; log=[[],[]]; yfree=0
    ji=[int(x) for x in str(OPT["ji"+role]).split("_") if x!=""]
    def due(t): return min((need[t//2]-3)//4,GS//4-1)
    for e in range(GS//4):
        L=[]; k=0
        while td<NT and at.get(td,99)<=e and (k<OPT["nd"] or any(due(t)-e<t-td+1 for t in range(td,NT))) and k<2:
            assert e<=due(td), (td,e); k+=1
            addw(e,f"w2_{td}"); L+=flat([x.split("\n") for x in R.reads(td,slot[td])]); log[1].append(e)
            addw(e+1,f"r2_{td}")
            if slot[td]!=YSL or not OPT["yin"]: free.append((slot[td],e+1))
            else: yfree=4*e+4
            td+=1
        if L: g.fit(L,32*e-5,32*e+26)
        if ti<NT and e>=ji[len(log[0])] and free and free[0][1]<=e:
            s_,_=free.pop(0); slot[ti]=s_; d=w2dma(ti,s_); m0,so=d[0].split("\n"); n_=1
            ps=[p for p in range(max(0,32*e-5),32*(e+n_)-7) if p not in m0busy and p+1 not in m0busy]
            g.g[ps[0]].append(so)
            for r in range(4):
                want=ps[0]+r*(ps[-1]-ps[0])//4; p=[x for x in ps if x>=want and x not in m0busy and x+1 not in m0busy][0]
                g.g[p].append(m0); g.g[p+1].append(d[1+r]); m0busy.update((p,p+1))
            at[ti]=e+n_+OPT["jlat"]; log[0].append(e); ti+=1
    assert td==NT,(td,ti,log)
    print(f"; D {role}: issue {log[0]} drain {log[1]}",file=sys.stderr)
    for u in range(9):
        if 2*u+1>=S["drain"] and need[u]<GS: g.pre[8*need[u]][0]+=f",r2_{2*u+1}"
    if R.win!=YSL>>2: g.fit(R.goto(YSL>>2),G(GS)-5,G(GS))
    if role=="X":
        g.fit([f"s_sub_u32 s4, s{TID}, 216\ns_lshl_b32 s7, s4, 7", f"s_lshl2_add_u32 s7, s3, s7\ns_add_u32 s7, s7, {FLAGY}", f"s_cmp_lt_u32 s4, 36\ns_cselect_b32 s7, s7, {OOB}",
           f"v_min_u32 v{PV}, 1, v2", f"v_lshlrev_b32 v{PV}, 30, v{PV}", f"v_mov_b32 v{PV+1}, s{NONCE}", f"buffer_store_dword v{PV+1}, v{PV}, {WS}, s7 offen sc1 ; @yf"],0,12)
    E1=end[1]; ga=min(E1+9,45)
    AUTO=dict(gb2=f"{GS-16}_{GS-12}", gbv=f"{GS-6}_{GS}", gx=f"{GS-12}_{GS}", gxv=f"{E1+5}_{E1+15}", gy=GS, gyc=GS+7 if E1-GS>8 else E1+13, gyr=56, gyv="57_64",
              gap=10*ga, gal=10*(ga+7), nal=5, gac=max(56,ga+15), g8c=64, g8f=76, gbp=540 if ga<43 else 570, gbl=600 if ga<43 else 622, nbl=2 if ga<43 else 1)
    O=lambda k: OPT[k] if OPT.get(k,-1)!=-1 else AUTO[k]
    def rng(k): return [G(int(x)) for x in str(O(k)).split("_")]
    def at_(k,L,n=1): g.fit(L,G(O(k)/10),G(O(k)/10+n))
    rs=flat([[f"v_cvt_pk_bf16_f32 v{SB+4*q+h}, v{A8+4*q+2*h}, v{A8+4*q+2*h+1}" for h in range(2)]+[far(f"buffer_store_dwordx4 {Q(SB+4*q)}, v{L16}, {WS}, s{so} offen sc1 ; @xsR",1)] for q,so in enumerate((SR0,SR1))])
    sent={}
    for bs,L,sp in ((("R",1),rs+send(1,SYA),O("sp1")/10),((2,),send(2,SYB),O("sp2")/10),((3,),send(3,SZ),O("sp3")/10)):
        t=end[bs[-1]]+0.5+O("s2d")*(bs==(2,)); assert GS<=t; pc=[]
        for x in L:
            pc.append(x)
            if "store" in x: g.fit(pc,G(t),G(t+min(sp,1.5))); pc=[]; t+=sp
        for b in bs: sent[b]=t-sp+min(sp,1.5)
    p1,p2,p3=("a",PA1,"0",12),("b",PA2,f"s{SMB}",2060),("z",PA2,f"s{SMZ}",2060)
    E=AB[0]; T1,T2,T3=AB[1:]
    def get(p,ve,kp,kl,n,L,t):
        if p[0] not in OPT["np"]: at_(kp,apoll(*p),0.5); L=achk(*p,ve)+L; assert O(kp)>=10*t
        at_(kl,L,n); assert O(kl)>=10*t
    get(p1,PE1,"gap","gal",O("nal"),rld("a",T1,SMA,3)+rld("8",RVS,SM8,4),max(sent[1],sent["R"]))
    g.fit(rchk("a",T1,SMA,3,NONCE)+unp(E,T1),G(O("gac")),G(beg[0])-1)
    get(p2,PE2,"gbp","gbl",O("nbl"),rld("b",T2,SMB,3),sent[2])
    get(p3,PE2,"gzp","gzl",1,rld("z",T3,SMZ,3),sent[3])
    assert O("gbp")>=O("gal")+5 and O("gzp")>=O("gbl")+5
    gb=O("gbc"); assert gb>=beg[0] and gb>=O("gac")+4
    g.fit(rchk("b",T2,SMB,3,NONCE)+unp(T1,T2),G(gb),G(gb+3))
    for r in range(2):
        g_=[x for x in range(gb+3,80) if groups[x-1][:2]==(0,r) and groups[x][:2]==(0,1-r)][0]
        g.fit([f"v_add_f32 v{E+8*r+k}, v{E+8*r+k}, v{T1+8*r+k}" for k in ((0,1,2,3,4,5,6,7) if g_&1 else (4,5,6,7,0,1,2,3))],G(g_)+2,G(g_)+7)
    zt=[str(x) for x in rchk("z",T3,SMZ,3,NONCE)]+unp(T1,T3)
    if O("gz2"):
        at_("gz2",rld("y",RVS,SMZ,3),1); assert O("gz2")>=O("gzl")+10 and O("gz2")>=10*O("g8f")
        zt=[x.replace("L_xs_z","L_z2") for x in zt]+["L_zj:"]
        if ac is not None: COLD.append(f"L_z2:\ns_waitcnt vmcnt(1)\nv_bitop3_b32 v{RVS+3}, v{RVS+3}, v{RVS+7}, s{NONCE} bitop3:0x7e\nv_bitop3_b32 v{RVS+3}, v{RVS+3}, v{RVS+11}, s{NONCE} bitop3:0xf6\n"
            f"v_cmp_ne_u32 vcc, 0, v{RVS+3}\ns_cbranch_vccnz L_xs_z\n"+"\n".join(unp(T1,RVS))+"\ns_branch L_zj")
    of=OPT["ostore"]
    assert (O("gy")>=GS)==(O("gyc")>=GS)==(not OPT["yin"])
    g.fit([poll_issue("p3" if O("gy")>=GS else "p3"+role)],G(O("gy")),G(O("gy")+1))
    g.fit(split_check(poll_check("p3" if O("gyc")>=GS else "p3"+role)),G(O("gyc")),G(O("gyc")+1))
    p=G(O("gyc")+1); assert O("gyc")+1>=yfree
    for q,so in enumerate((SY0,SY8)):
        while any(x in m0busy for x in (p,p+1,p+2)): p+=1
        g.g[p].append(f"s_add_u32 m0, s{LW}, {YSL*SLOT+2048*q}"); m0busy.update((p,p+1,p+2))
        assert (p+2<8*GS)==(O("gyc")<GS)
        for r in range(2): g.g[p+1+r].append(f"buffer_load_dwordx4 v{YP+r}, {WS}, s{so} offen offset:{1024*r} sc1 lds ; @ey")
    assert O("gyr")%4==0 and O("gyr")>=GS and p+3<G(O("gyr")-1); addw(O("gyr")//4,"ey")
    def xq(q,h): return XP+4*(q&1)+2*(q>>1)+h if q<4 else X8+h
    def st(q): return STT+2*(q&1 if q<4 else 2)
    def yq(q,h): return (12,24,28,190,X8)[q]+h
    assert rng("gxv")[1]<=G(O("gyr")) and G(O("gyr")+1)<=rng("gyv")[0] and rng("gyv")[1]<=G(O("g8c")) and rng("gxv")[1]<=G(O("gac"))
    el=eloads(); g.fit(el[:2]+el[-3:],*rng("gb2")); g.fit(el[2:-3],*rng("gx")); assert rng("gx")[1]<=rng("gxv")[0]
    g.fit(["@W eb"]+[f"v_lshlrev_b32 v{T3+k}, 16, v{B2+(k>>2&1)}" for k in range(16)]+[f"v_lshlrev_b32 v{B8}, 16, v{B8}"],*rng("gbv")); assert rng("gb2")[1]<=rng("gbv")[0] and rng("gbv")[1]<G(beg[3])
    xv=["@W ex"]+[f"v_mul_f32 v{STT+2*n}, v{STT+2*n}, v{STT+2*n+1}" for n in range(3)]+[f"v_permlane16_swap_b32 v{XP+4*j+h}, v{XP+4*j+2+h}" for j in range(2) for h in range(2)]
    xv+=flat([unpack(XF+4*q+2*h,xq(q,h)) for q in range(5) for h in range(2)])+[f"v_fma_f32 v{NN+j}, v{XF+j}, v{st(j//4)+1}, -v{st(j//4)}" for j in range(20)]
    g.fit(xv,*rng("gxv"))
    yr=[f"v_xor_b32 v{RB8}, s41, v{RB2}",f"v_add_u32 v{RB8}, s43, v{RB8}"]+[f"ds_read_b64_tr_b16 {P(yq(q,0))}, v{RB2+(q&1) if q<4 else RB8} offset:{(YSL&3)*SLOT+(4096*(q>>1) if q<4 else 2048)} ; @ry" for q in range(5)]
    g.fit(yr,G(O("gyr")),G(O("gyr")+1))
    tv=(8,30)
    yv=["@W - ry"]+flat([unpack(tv[h],yq(q,h))+[f"v_mul_f32 v{NN+4*q+2*h+k}, v{NN+4*q+2*h+k}, v{tv[h]+k}" for k in (1,0)] for q in range(5) for h in range(2)])
    g.fit(yv,*rng("gyv"))
    A=A8; r=A8+4; n=NN+16
    e8=rchk("8",RVS,SM8,4,ST8)+unpack(A,RVS)+unpack(A+2,RVS+1)+[f"v_add_f32 v{A+k}, v{A+k}, v{B8}" for k in range(4)]
    for q in range(1,4): e8+=unpack(r,RVS+4*q)+unpack(r+2,RVS+4*q+1)+[f"v_add_f32 v{A+k}, v{A+k}, v{r+k}" for k in range(4)]
    e8+=[f"v_mul_f32 v{r+k}, s38, v{A+k}" for k in range(4)]+[f"v_exp_f32 v{r+k}, v{r+k}" for k in range(4)]+[f"v_mul_f32 v{n+k}, v{n+k}, v{A+k}" for k in range(4)]
    e8+=[f"v_add_f32 v{r+k}, 1.0, v{r+k}" for k in range(4)]+[f"v_rcp_f32 v{r+k}, v{r+k}" for k in range(4)]+[f"v_fma_f32 v{n+k}, v{n+k}, v{r+k}, v{XF+16+k}" for k in range(4)]
    e8+=[f"v_cvt_pk_bf16_f32 v{X8}, v{n}, v{n+1}",f"v_cvt_pk_bf16_f32 v{X8+1}, v{n+2}, v{n+3}",f"buffer_store_dwordx2 {P(X8)}, v{XO+1}, {RC}, 0 offen {of} ; @o8"]
    g.fit(e8[:-1],G(O("g8c")),G(O("g8f")))
    go=O("go8") or max(O("g8f"),O("gzl")//10+2,O("gz2")//10+2); assert go>=O("g8f") and not (O("go8") and O("gz2"))
    g.fit(e8[-1:],G(go),G(go+1 if O("go8") else 81))
    g.finish()
    if ac is not None: print("; D cost/group"," ".join(f"{sum(g.load(i) for i in range(8*k,8*k+8)):.0f}" for k in range(81)),file=sys.stderr)
    for i,(m,p_,f) in enumerate(zip(g.mf,g.pre,g.g)):
        if i==8*GS:
            if ac is None: a("s_branch L_Dc"); return
            a=ac; a("L_Dc:")
        if i and i%72==0: stamp(a,1+i//72,"D")
        if i%32==0 and i<12*32: stamp(a,2+i//32,"D1")
        if i%32==0 and i>=9*32: stamp(a,1+i//32-9,"D2")
        a.extend(p_); a(m); a.extend(f)
    stamp(a,12); stamp(a,10,"D"); stamp(a,13,"D2")
    def fin(nt):
        two=lambda f: flat([f(E+4*q,T2+4*q,NN+4*q,q) for q in (nt,nt+2)])
        s1=two(lambda A,r,n,t:[f"v_pk_add_f32 {P(A)}, {P(A)}, {P(T1+4*t)}",f"v_pk_add_f32 {P(A+2)}, {P(A+2)}, {P(T1+4*t+2)}"])
        s1+=two(lambda A,r,n,t:[f"v_pk_mul_f32 {P(r)}, {P(A)}, s[38:39] op_sel_hi:[1,0]",f"v_pk_mul_f32 {P(r+2)}, {P(A+2)}, s[38:39] op_sel_hi:[1,0]"])
        s1+=two(lambda A,r,n,t:[f"v_exp_f32 v{r+k}, v{r+k}" for k in range(4)])
        s1+=two(lambda A,r,n,t:[f"v_pk_mul_f32 {P(n)}, {P(n)}, {P(A)}",f"v_pk_mul_f32 {P(n+2)}, {P(n+2)}, {P(A+2)}"])
        s1+=two(lambda A,r,n,t:[f"v_pk_add_f32 {P(r)}, {P(r)}, 1.0 op_sel_hi:[1,0]",f"v_pk_add_f32 {P(r+2)}, {P(r+2)}, 1.0 op_sel_hi:[1,0]"])
        s1+=two(lambda A,r,n,t:[f"v_rcp_f32 v{r+k}, v{r+k}" for k in range(4)])
        s1+=two(lambda A,r,n,t:[f"v_pk_fma_f32 {P(n)}, {P(n)}, {P(r)}, {P(XF+4*t)}",f"v_pk_fma_f32 {P(n+2)}, {P(n+2)}, {P(r+2)}, {P(XF+4*t+2)}"])
        o=E+4*nt; n0,n1=NN+4*nt,NN+4*nt+8
        s1+=[f"v_cvt_pk_bf16_f32 v{o}, v{n0}, v{n0+1}",f"v_cvt_pk_bf16_f32 v{o+2}, v{n1}, v{n1+1}",f"v_cvt_pk_bf16_f32 v{o+1}, v{n0+2}, v{n0+3}",f"v_cvt_pk_bf16_f32 v{o+3}, v{n1+2}, v{n1+3}",
             f"v_permlane16_swap_b32 v{o}, v{o+2}",f"v_permlane16_swap_b32 v{o+1}, v{o+3}",f"buffer_store_dwordx4 {Q(o)}, v{XO}, {RC}, {('0',f's{SC16}')[nt]} offen {of}"]
        return s1
    a.extend([x for x in zt+fin(0)+fin(1) if not (OPT.get("notail") and x.startswith(("v_exp","v_rcp","v_pk")))])
    stamp(a,13)
    if OPT["stamps"]:
        a("s_waitcnt vmcnt(0)"); stamp(a,14); stamps_out(a)
    if OPT.get("probe") is not None:
        a("s_waitcnt vmcnt(0)"); stamp(a,14)
        if OPT["probe"]==0: a(f"s_mov_b32 s28, s{NONCE}")
        if OPT.get("prole")=="G": a(f"s_cmp_lt_u32 s{TID}, 216\ns_cselect_b32 s28, s28, s{NONCE}")
        if OPT.get("prole")=="X": a(f"s_sub_u32 s4, s{TID}, 216\ns_cmp_lt_u32 s4, 36\ns_cselect_b32 s28, s28, s{NONCE}")
        a("s_add_u32 s28, s28, 6000\ns_mov_b32 s5, 0\nL_spin:\ns_memrealtime s[0:1]\ns_waitcnt lgkmcnt(0)\ns_sub_u32 s4, s0, s28\ns_add_u32 s5, s5, 1\ns_cmp_gt_u32 s5, 20000\ns_cbranch_scc1 L_spe\ns_cmp_lt_i32 s4, 0\ns_cbranch_scc1 L_spin\nL_spe:")
    a("s_endpgm\nL_segE:")

def check_vcc(seg):
    last=None
    for ins in seg.L:
        if "vcc" in ins.w: assert last is None or "#" not in last, (last,ins.text); last=ins.text
        if ins.op.startswith("s_cbranch_vcc"):
            assert last is not None and ("#" not in last or last.split("#")[1]==ins.text.split()[1]), (last,ins.text); last=None
def check_m0(seg):
    cur=None
    for ins in seg.L:
        if "m0" in ins.w: cur=ins.text.split(",")[1].strip()
        if ins.kind=="vmem" and " lds" in ins.text:
            tg=ins.text.split("@")[1]; want={"w":f"s{LW}","h":f"s{LH}","k":"s9"}[tg[0]]
            assert cur==want,(ins.text,cur)
def build(**kw):
    OPT.update(kw)
    hdr=open("cdna_kernels/"+NAME+".s.ref").read().split("; Override launch")[0]
    segs=s0,sG,sDG,sD,sXA,sC,sDX,sI=[Asm() for _ in range(8)]
    p0(s0); R=roleG(sG); roleX_A(sXA); conv(sC); idle(sI); phaseD(sDG,sD,"G",R); n=nX(); phaseD(sDX,None,"X",dict(R=W2R(),slot=dict(XS),free=list(range(2,10)),issue=n,drain=n-2))
    for seg in segs:
        for ins in seg.L:
            m=re.search(r";\s*@(\S+)",ins.text)
            if OPT.get("drop"):
                if ins.kind=="vmem" and m and re.fullmatch(OPT["drop"],m.group(1)): ins.__init__("")
                elif ins.text.startswith("@W"):
                    p=ins.text.split(); tg=[t for t in p[1].split(",") if not re.fullmatch(OPT["drop"],t)]
                    ins.__init__(" ".join(["@W",",".join(tg) or "-"]+p[2:]))
            if OPT.get("dropds") and ins.kind=="ds" and m and re.fullmatch(OPT["dropds"],m.group(1)): ins.__init__("ds_nop ; @"+m.group(1))
            if OPT.get("nt") and ins.kind=="vmem" and m and re.fullmatch(OPT["nt"],m.group(1)):
                ins.__init__(ins.text.replace(" lds ;"," nt lds ;") if " lds ;" in ins.text else ins.text.replace(" ;"," nt ;"))
            if OPT.get("nosc1") and ins.kind=="vmem" and m and re.fullmatch(OPT["nosc1"],m.group(1)): ins.__init__(ins.text.replace(" sc1",""))
    for seg in segs: check_vcc(seg)
    paths=[[s0,sG,sDG,sD],[s0,sXA,sC,sDX,sD],[s0,sXA,sI,sDX,sD]]
    resolve_vm(paths)
    if not OPT.get('drop'): check_pending(paths)
    a=Asm(); a.L=flat([s.L for s in segs]); c=Asm(); c.extend(COLD)
    if OPT["iw"]:
        k=[i for i,x in enumerate(a.L) if x.text==".p2align 12"][0]; a.L=a.L[:k]+c.L+a.L[k:]
    else: a.L+=c.L
    a("L_end:"); a.fix()
    check_m0(sC)
    if OPT["iw"]:
        def disp(cnt):
            d=Asm()
            for nm in "GXD":
                d(f"L_wc_{nm}:")
                for w in range(4):
                    tgt=f"L_pl_{nm}_{w}" if w<cnt[nm] else "L_wret"
                    d(f"s_cmp_eq_u32 s3, {w}\ns_cbranch_scc1 {tgt}" if w<3 else f"s_branch {tgt}")
            d("L_wret:\ns_setpc_b64 s[82:83]")
            return d.L
        k=[i for i,x in enumerate(a.L) if x.text==".p2align 12"][0]
        L,cnt=page_landings(a.L[:k]+disp(dict(G=0,X=0,D=0))+a.L[k:],"L_org",[("G","L_segG","L_Dc"),("X","L_segX","L_idle"),("D","L_Dc","L_segE")])
        n=len(disp(cnt)); a.L=L[:k]+disp(cnt)+L[k+n:]
        print("; landings",cnt,file=sys.stderr)
    return (hdr+"; @launch grid=(256,1,1) block=(256,1,1) lds=163840\n"+'.amdgcn_target "amdgcn-amd-amdhsa--gfx950"\n.text\n'+a.text()
            +'.section .rodata,"a"\n'+kdesc(KN,256,256))
if __name__=="__main__":
    kw={}
    for x in sys.argv[2:]:
        k,v=x.split("=",1); kw[k]=int(v) if v.lstrip("-").isdigit() else v
    open(sys.argv[1],"w").write(build(**kw))
```

```python
import sys, struct, re
from asmlib import *
from layout import *
WS_XB=WS_U; WS_F4=WS_U2+144*U2_KS; WS_X4=WS_F4+1024*128; WS_HP=WS_X4+(13<<20); HG=11264; WS_KP=WS_HP+256*HG; WS_END=WS_KP+256*HG
NAME="recurrent_scan__ssm_conv_h3__mixer_token_mlp__prompt"
KN=NAME+"_kernel"
OPT=dict(stamps=0, nln=4, nkv=0, npost=10, nA=10, rate=100, lat=3, lead1=2, lead2=2, cflag=0, nin=0, spinmax=100000, sleep=0,
         fpl=2, hrot=1, ostore="sc1", cpl=5, cpr=0, w1w='3_3_4_6', rate2=100, q0=0, q1=0, bsj='31_32_33_34_35_36', g2b=1, madd=1, stg=0, rd0=7, pfw=0, pf0=10, jbf=42, jbp=49, jbl=53, jbu=57, nh=6,
         bursts='16.8_17.12_18.19_19.23', maxb=8, quiet=2, cvs=0, kp=3, bn=1, h0=4, iw=1, kvend=130, n63=2, cch=1, smove=2, je0=0, jen=20, clump=1, ramp=50, cfrac=100,
         rgm=1, w2w='14_4', wd=2, wg=0, hoist=1, pw0=1, hf=1, sg=0, al=1, hp=2, kvf=0, lne=100, ap1=0, ap2=0, jm=0, ce=0, gpf=0, fol=0, wso=0, k8=0, rbl=1, kvb=1, pub0=1, ct=0, ap='12', rep=8, ppl=0, psl=3, isl=0, ipf=0, ipc=4, rep1=8, repk=4, npre=10, n0=7, nd0=5, pp=3, nrf=0, e01=2, e2x=0, ord='h',
         nsl=4, lag=15, f0=10, ncat=2, rg=2, nC=16, nc1=2, cfirst=-1, cpos=0, c1s=0, c1e=100, cw=1, pe=3, jlat=1, jd0=0, nd=1, jiG='2_3', jiX='2_3_4', usk=0, uq='50.55',
         nX=18, cvn=8, cvb=4, cvd='m2_71_151', px=320, cvp='9.0.34_3.13.47_9.39.72_3.52.86_9.95.120_9.135.156_9.174.204_0.186.216_1.198.228_9.210.240_0.222.252_1.234.264_9.246.276_0.258.288_1.270.300_9.282.312_0.294.0_1.306.0', fold=1, g2c=1,
         gbc=73, gzp=700, gzl=730, yin=0, np='az', cpo='a8', gz2=0, go8=0, sp1=20, sp2=15, sp3=5, s2d=0, gap=445, gal=500, nal=3, gac=61, gbp=570, gbl=625, nbl=1, gyc=33, gyr=44, gyv='45_54', gx='16_24')
def f2h(x): return "0x%08x"%struct.unpack("<I",struct.pack("<f",x))[0]
S_Q,S_K,S_V,S_SK,S_SSM,S_D,S_BX,S_W1,S_B1,S_W2,S_B2,S_OUT,S_DBG,S_WS=16,18,20,22,24,26,28,30,32,34,36,38,40,42
WS="s[44:47]"; RW1="s[48:51]"; RW2="s[52:55]"; RA="s[56:59]"; RB_="s[60:63]"; RC="s[64:67]"
NONCE,N1,M1,N2,KQ,LW,LH,TID=68,69,70,71,72,73,74,75
K1,K2,KA=76,84,18
NB_SD=2048*576*2
FLAG1=WS_FLAGS; FLAG2=WS_FLAGS+32768; FLAGK=WS_FLAGS+65536
SLOT=16384; HR=7*SLOT; HS=12288
LN_STR=1216; LN_ST=144896; KV_ST=LN_ST+8*LN_STR
OOB="0x40000000"
def P(r): return f"v[{r}:{r+1}]"
def Q(r,k="v"): return f"{k}[{r}:{r+3}]"
def flat(x): return sum(x,[])
def hphys(d,o,t):
    return [f"v_lshrrev_b32 v{t}, 7, v{o}", f"v_mul_u32_u24 v{t+1}, 9363, v{t}", f"v_lshrrev_b32 v{t+1}, 16, v{t+1}", f"v_mad_i32_i24 v{t}, v{t+1}, -7, v{t}", f"v_cmp_lt_u32 vcc, 2, v{t}",
            f"v_addc_co_u32 v{t+1}, vcc, 0, v{t+1}, vcc", f"v_lshl_add_u32 v{d}, v{t+1}, 7, v{o}"]
def lines(items):
    out=[]
    for it in items:
        l=it.split("\n"); last=max([i for i,x in enumerate(l) if x.startswith(("s_cselect","s_addc","s_subb"))],default=-1); i=0
        while i<len(l):
            j=i
            if l[i].startswith(("s_cmp","s_bitcmp")):
                j=i+1
                while j+1<=last and not l[j+1].startswith(("s_cmp","s_bitcmp")): j+=1
            out.append("\n".join(l[i:j+1])); i=j+1
    return out

def stamp(a,c,fine=None):
    if OPT.get("probe") is not None:
        if fine is None and c==OPT["probe"]: a("s_memrealtime s[28:29]\ns_waitcnt lgkmcnt(0)")
        return
    if OPT.get("fine") and fine!=OPT["fine"] and c!=14: return
    if fine and not OPT.get("fine"): return
    if OPT["stamps"]:
        a(f"s_memrealtime s[28:29]\ns_memtime s[0:1]\ns_waitcnt lgkmcnt(0)\nv_writelane_b32 v254, s28, {c}\nv_writelane_b32 v254, s0, {16+c}")
def stamps_out(a):
    a(f"s_lshl_b32 s4, s{TID}, 2\ns_add_u32 s4, s4, s3\ns_lshl_b32 s4, s4, 7\ns_add_u32 s4, s4, {WS_STAMP}\nv_lshlrev_b32 v255, 2, v2\ns_mov_b64 exec, 0xffffffff")
    a(f"buffer_store_dword v254, v255, {WS}, s4 offen")

def unpack(dst,src): return [f"v_and_b32 v{dst+1}, 0xffff0000, v{src}", f"v_lshlrev_b32 v{dst}, 16, v{src}"]
def reduce32(r,t):
    L=[f"v_add_f32_dpp v{r}, v{r}, v{r} row_ror:{sh} row_mask:0xf bank_mask:0xf" for sh in (8,4,2,1)]
    return L+[f"v_mov_b32 v{t}, v{r}", f"v_permlane16_swap_b32 v{r}, v{t}", f"v_add_f32 v{r}, v{r}, v{t}"]
def rbf(r): return [f"v_cvt_pk_bf16_f32 v{r}, v{r}, v{r}", f"v_lshlrev_b32 v{r}, 16, v{r}"]
NEG1="op_sel_hi:[1,0] neg_lo:[0,1] neg_hi:[0,1]"
def ln_fused(X,T,M,RS,D,ST):
    L=[f"v_pk_add_f32 {P(T+2*i)}, {P(X+4*i)}, {P(X+4*i+2)}" for i in range(4)]
    L+=[f"v_pk_add_f32 {P(T)}, {P(T)}, {P(T+2)}", f"v_pk_add_f32 {P(T+4)}, {P(T+4)}, {P(T+6)}", f"v_pk_add_f32 {P(T)}, {P(T)}, {P(X+16)}", f"v_pk_add_f32 {P(T)}, {P(T)}, {P(T+4)}"]
    L+=[f"v_add_f32 v{M}, v{T}, v{T+1}"]+reduce32(M,M+1)+[f"v_mul_f32 v{M}, 0x3ae38e39, v{M}"]
    L+=[f"v_pk_add_f32 {P(X+2*j)}, {P(X+2*j)}, {P(M)} {NEG1}" for j in range(9)]
    L+=[f"v_pk_mul_f32 {P(T)}, {P(X)}, {P(X)}", f"v_pk_mul_f32 {P(T+2)}, {P(X+2)}, {P(X+2)}"]
    L+=[f"v_pk_fma_f32 {P(T+2*(j&1))}, {P(X+2*j)}, {P(X+2*j)}, {P(T+2*(j&1))}" for j in range(2,9)]
    L+=[f"v_pk_add_f32 {P(T)}, {P(T)}, {P(T+2)}", f"v_add_f32 v{RS}, v{T}, v{T+1}"]+reduce32(RS,RS+1)
    L+=[f"v_mul_f32 v{RS}, 0x3ae38e39, v{RS}"]
    L+=[f"v_cvt_pk_bf16_f32 v{T}, v{M}, v{RS}", f"v_lshlrev_b32 v{ST}, 16, v{T}", f"v_and_b32 v{T}, 0xffff0000, v{T}",
        f"v_add_f32 v{T}, 0x3727c5ac, v{T}", f"v_sub_f32 v{M}, v{M}, v{ST}"]+rbf(T)+[f"v_sqrt_f32 v{T}, v{T}"]+rbf(T)+[f"v_rcp_f32 v{ST+1}, v{T}"]
    L+=[f"v_mul_f32 v{M}, v{M}, v{ST+1}", f"v_mul_f32 v{RS}, v{RS}, v{ST+1}", f"v_mul_f32 v{RS}, v{RS}, v{ST+1}",
        f"v_cvt_pk_bf16_f32 v{T}, v{M}, v{RS}", f"v_lshlrev_b32 v{T+1}, 16, v{T}", f"v_and_b32 v{T}, 0xffff0000, v{T}",
        f"v_add_f32 v{T}, 0x3727c5ac, v{T}", f"v_sub_f32 v{M}, v{M}, v{T+1}"]+rbf(T)+[f"v_sqrt_f32 v{T}, v{T}"]+rbf(T)+[f"v_rcp_f32 v{T}, v{T}"]
    L+=[f"v_mul_f32 v{RS}, v{ST+1}, v{T}", f"v_mul_f32 v{M}, v{M}, v{T}"]
    L+=[f"v_pk_fma_f32 {P(X+2*j)}, {P(X+2*j)}, {P(RS)}, {P(M)} op_sel_hi:[1,0,0]" for j in range(9)]
    L+=[f"v_cvt_pk_bf16_f32 v{D+j}, v{X+2*j}, v{X+2*j+1}" for j in range(9)]
    return L

VW2,RB2,RR,VA,SA,B8,PV,XO=4,10,14,19,26,27,28,252
AF,L16,PA1,PE1,PA2,PE2,PD_,XF,NN,YP,RB8,SA8,PY,SB,RVS,WV=104,136,137,138,139,140,141,144,164,184,186,18,188,192,204,220
SYA,SZ,SR0,SR1,SMA,SM8,ST8,SY0,SC16,SST,SMB,SMZ,SYB,SY8=30,31,32,33,34,35,36,37,40,42,11,12,15,16
KU=18
ACC1,HF,BIAS,VW1,RW1B,VH,RH,GT=32,80,144,148,152,156,159,160
NT=18
MP="s_bfe_u32 s{}, s2, 0x20003"

def w2reg(t): return ("a",16*t) if t<16 else ("v",WV+16*(t-16))
def w2dma(t,slot):
    L=[f"s_add_u32 m0, s{LW}, {slot*SLOT}\ns_lshl_b32 s14, s{K2+t}, 18"]
    return L+[f"buffer_load_dwordx4 v{VW2+r}, {RW2}, s14 offen offset:{1024*r} lds ; @w2_{t}" for r in range(4)]
class W2R:
    def __init__(self): self.win=0
    def goto(self,w):
        d=(w-self.win)*65536; self.win=w
        return [f"v_add_u32 v{RB2+nt}, {d}, v{RB2+nt}" for nt in range(2)] if d else []
    def reads(self,t,slot):
        kind,r0=w2reg(t); adj=self.goto(slot>>2); L=[]
        for nt in range(2):
            for ks in range(2):
                for hf in range(2):
                    r=r0+8*ks+4*nt+2*hf
                    s=f"ds_read_b64_tr_b16 {kind}[{r}:{r+1}], v{RB2+nt} offset:{(slot&3)*SLOT+4096*ks+2048*hf} ; @r2_{t}"
                    L.append((adj[nt]+"\n" if adj and ks+hf==0 else "")+s)
        return L
def w2setup():
    L=["v_lshrrev_b32 v24, 3, v2","v_and_b32 v25, 7, v2","v_bfe_u32 v31, v2, 4, 2","v_lshlrev_b32 v31, 1, v31","v_xor_b32 v25, v25, v31","v_lshlrev_b32 v24, 12, v24","v_lshl_add_u32 v24, v25, 4, v24",
       w2base(7)+f"\ns_lshl_b32 s8, s{N2}, 7\ns_add_u32 s7, s7, s8\nv_add_u32 v{VW2}, s7, v24"]
    L+=[f"v_add_u32 v{VW2+i}, {32768-1024}, v{VW2+i-1}" for i in range(1,4)]
    L+=["v_lshrrev_b32 v24, 2, v2","v_lshlrev_b32 v24, 7, v24","v_and_b32 v25, 3, v2","v_lshl_add_u32 v24, v25, 3, v24",f"s_and_b32 s7, s{LW}, 8192\nv_add_u32 v24, s7, v24","v_bfe_u32 v31, v2, 3, 2",
        "s_and_b32 s7, s3, 1\ns_lshl_b32 s7, s7, 1\nv_xor_b32 v31, s7, v31",f"v_lshl_add_u32 v{RB2}, v31, 5, v24",f"v_xor_b32 v{RB2+1}, 32, v{RB2}"]
    return L
def w2base(d): return f"s_mul_i32 s{d}, s{KQ}, 36\ns_bitcmp1_b32 s3, 0\ns_addc_u32 s{d}, s{d}, 0\ns_lshl_b32 s{d}, s{d}, 17"
def k2table():
    q=K2+17; L=[MP.format(q)+f"\ns_mul_i32 s{q}, s{q}, 3"]
    if OPT["fol"]:
        nl=lambda j: j%9 if OPT["jm"] else j//3
        f=[[([k for k in range(4) if 4*c+k<27 and (p+nl(4*c+k))%4==1]+[7])[0] for c in range(8)] for p in range(4)]
        t=[sum(x<<(3*c) for c,x in enumerate(r)) for r in f]
        L=[f"s_mov_b32 s7, {t[0]}"]+[f"s_cmp_eq_u32 s{KQ}, {p}\ns_cselect_b32 s7, {t[p]}, s7" for p in (1,2,3)]
        L+=[f"s_lshr_b32 s8, s2, 5\ns_mul_i32 s8, s8, 3\ns_lshr_b32 s7, s7, s8\ns_and_b32 s7, s7, 7\n"+MP.format(8),
            f"s_cmp_gt_u32 s8, s7\ns_subb_u32 s{q}, s8, 0", f"s_lshl_b32 s{q}, s{q}, 2", f"s_cmp_eq_u32 s8, s7\ns_cselect_b32 s{q}, {OPT['fol']-1}, s{q}", "s_mul_i32 s8, s8, 3", f"s_cmp_eq_u32 s7, 7\ns_cselect_b32 s{q}, s8, s{q}"]
    b=0; ws=[int(x) for x in str(OPT["w2w"]).split("_")]; assert sum(ws)==18 and ws[-1]>1
    for W in ws:
        L.append(f"s_mul_i32 s{K2+b}, s{K2+17}, {W*21846}\ns_lshr_b32 s{K2+b}, s{K2+b}, 18\ns_add_u32 s{K2+b}, s{K2+b}, {b}")
        L+=[f"s_add_u32 s{K2+i}, s{K2+i-1}, 1\ns_cmp_eq_u32 s{K2+i}, {b+W}\ns_cselect_b32 s{K2+i}, {b}, s{K2+i}" for i in range(b+1,b+W)]
        b+=W
    return L
def kutable():
    return ["s_bitcmp1_b32 s3, 1\n"+"\n".join(f"s_cselect_b32 s{KU+u}, s{K2+2*u+1}, s{K2+2*u}\ns_mul_i32 s{KU+u}, s{KU+u}, {2*U2_KS}" for u in range(9))]
def eprep():
    return [f"v_and_b32 v24, 15, v2\ns_lshl_b32 s7, s{N2}, 6\nv_add_u32 v24, s7, v24\ns_and_b32 s8, s3, 1\ns_lshl_b32 s4, s8, 5\nv_add_u32 v25, s4, v24\nv_lshlrev_b32 v{SA}, 3, v25",
            f"v_mul_u32_u24 v25, 1152, v25\nv_bfe_u32 v31, v2, 4, 1\nv_lshl_add_u32 v25, v31, 5, v25\nv_lshrrev_b32 v31, 5, v2\nv_lshl_add_u32 v25, v31, 4, v25\n"+MP.format(7)+"\ns_mul_i32 s7, s7, 288",
            f"s_bfe_u32 s5, s2, 0x10003\ns_mul_i32 s5, s5, {32*OPT['al']}\ns_lshl_b32 s4, s{KQ}, 6\ns_add_u32 s4, s4, s7\ns_add_u32 s4, s4, s5\ns_lshl_b32 s5, s5, 3\ns_sub_u32 s7, s7, s5\nv_add_u32 v{XO}, s4, v25\ns_xor_b32 s8, s3, s{KQ}\ns_and_b32 s4, s{KQ}, 1\ns_lshl1_add_u32 s4, s4, s8\nv_lshl_add_u32 v24, s4, 4, v24",
            f"s_add_u32 s7, s7, 256\ns_cmp_lt_u32 s8, 2\ns_cselect_b32 s7, s7, {OOB}\nv_lshlrev_b32 v{SA8}, 3, v24\nv_mul_u32_u24 v24, 1152, v24\nv_lshrrev_b32 v31, 4, v2\nv_lshl_add_u32 v24, v31, 3, v24\nv_add_u32 v{XO+1}, s7, v24"]

COLD=[]
def flag_prep(idx_sgpr, base, v=1):
    f=OPT["fpl"]
    return [f"s_lshr_b32 s4, s{idx_sgpr}, {f}\ns_lshl_b32 s4, s4, 7\ns_and_b32 s5, s{idx_sgpr}, {(1<<f)-1}\ns_lshl2_add_u32 s4, s5, s4\ns_add_u32 s4, s4, {base}",
            f"v_min_u32 v{v}, 1, v0\nv_lshlrev_b32 v{v}, 30, v{v}\nv_add_u32 v{v}, s4, v{v}"]
def flag_store(a): a(f"v_mov_b32 v3, s{NONCE}\nbuffer_store_dword v3, v1, {WS}, 0 offen sc1 ; @fl")
def pv(tag): return PY if tag[:2]=="p3" else 15 if tag=="p2G" else PV
def poll_addr(first_expr, n, base, v=PV):
    f=OPT["fpl"]
    return [first_expr+f"\nv_min_u32 v{v}, {n-1}, v2", f"v_add_u32 v{v}, s4, v{v}", f"v_and_b32 v{v+1}, {(1<<f)-1}, v{v}", f"v_lshrrev_b32 v{v}, {f}, v{v}",
            f"v_lshlrev_b32 v{v}, 7, v{v}", f"v_lshl_add_u32 v{v}, v{v+1}, 2, v{v}", f"v_add_u32 v{v}, {base}, v{v}"]
def atom(tag): return tag[1] in str(OPT["ap"])
def pexp(tag): return f"s{NONCE}" if tag=="p1X" else {"1":"v12","2":"v13","5":"v12"}[tag[1]]
def poll_op(tag):
    v=pv(tag)
    return f"v_mov_b32 v{v+1}, 0\nbuffer_atomic_add v{v+1}, v{v}, {WS}, 0 offen sc0 sc1" if atom(tag) else f"buffer_load_dword v{v+1}, v{v}, {WS}, 0 offen sc1"
def poll_issue(tag): return poll_op(tag)+f" ; @{tag}"
def poll_check(tag):
    v=pv(tag); sl=f"s_sleep {OPT['sleep']}\n" if OPT["sleep"] else ""; ex=pexp(tag) if atom(tag) else "s83" if (tag[:2]=="p2" and OPT["pw0"]==1) else f"s{NONCE}"
    pre=""
    if tag=="p2G" and OPT["ct"]:
        pre=f"v_and_b32 v24, 31, v2\nv_lshlrev_b32 v24, 12, v24\n"+w2base(4)+f"\ns_lshl_b32 s7, s{N2}, 7\ns_add_u32 s4, s4, s7\nv_add_u32 v24, s4, v24\nv_lshrrev_b32 v25, 5, v2\n"
        for t in range(18-OPT["ct"],18,2): pre+=f"s_sub_u32 s4, s{K2+t+1}, s{K2+t}\nv_mul_i32_i24 v31, s4, v25\nv_add_u32 v31, s{K2+t}, v31\nv_lshl_add_u32 v31, v31, 18, v24\nbuffer_load_dword v255, v31, {RW2}, 0 offen\n"
    if tag[:2]=="p2" and OPT["pw0"]==2: pre+=f"s_cmp_lg_u32 s3, 0\ns_cbranch_scc1 L_rx_{tag}\n"
    n=OPT["ppl"] if (tag[:2]=="p2" and atom(tag)) else 0
    if n and not any(c.startswith(f"L_rs_{tag}:") for c in COLD):
        op=lambda k: f"v_mov_b32 v{RVS+k}, 0\nbuffer_atomic_add v{RVS+k}, v{v}, {WS}, 0 offen sc0 sc1\ns_sleep {OPT['psl']}\n"
        COLD.append(f"L_rs_{tag}:\ns_mov_b32 s5, 0\n"+"".join(op(k) for k in range(n-1))+f"L_rt_{tag}:\n"
            +"".join(op((k+n-1)%n)+f"s_waitcnt vmcnt({n-1})\nv_cmp_ne_u32 vcc, {ex}, v{RVS+k}\ns_cbranch_vccz L_ok_{tag}\n" for k in range(n))
            +f"s_add_u32 s5, s5, 1\ns_cmp_lt_u32 s5, {OPT['spinmax']}\ns_cbranch_scc1 L_rt_{tag}\ns_branch L_ok_{tag}")
    if not any(c.startswith(f"L_rs_{tag}:") for c in COLD): COLD.append(f"L_rs_{tag}:\n{pre}s_mov_b32 s5, 0\nL_rt_{tag}:\ns_mov_b64 exec, vcc\n{sl}"
            f"{poll_op(tag)}\ns_waitcnt vmcnt(0)\nv_cmp_ne_u32 vcc, {ex}, v{v+1}\ns_cbranch_vccz L_rx_{tag}\n"
            f"s_add_u32 s5, s5, 1\ns_cmp_lt_u32 s5, {OPT['spinmax']}\ns_cbranch_scc1 L_rt_{tag}\nL_rx_{tag}:\ns_mov_b64 exec, -1\ns_branch L_ok_{tag}")
    return f"@W {tag}\nv_cmp_ne_u32 vcc, {ex}, v{v+1}\ns_cbranch_vccnz L_rs_{tag}\nL_ok_{tag}:"
def split_check(c):
    l=c.split("\n"); k=[i for i,x in enumerate(l) if x.startswith("s_cbranch_vcc")]
    if not k: return l[:-2]+["\n".join(l[-2:])]
    k=k[0]; return l[:k-1]+[l[k-1]+" ; #"+l[k].split()[1], far("\n".join(l[k:]))]
def poll1_addr():
    if atom("p1"):
        return [f"s_lshr_b32 s4, s2, 1\ns_and_b32 s4, s4, {OPT['repk']-1}\ns_lshl2_add_u32 s4, s4, s3\ns_lshl_b32 s4, s4, 8\ns_add_u32 s4, s4, {FLAGK}\nv_lshl_add_u32 v{PV}, v2, 2, s4"]
    return poll_addr("s_lshl_b32 s4, s3, 6",64,FLAGK if OPT["hf"] else FLAG1)
def flag2_prep(v):
    R=OPT["rep"]; k=R.bit_length()-1
    return [f"s_mul_i32 s4, s{M1}, 43691\ns_lshr_b32 s4, s4, 16\ns_mul_i32 s5, s{M1}, 21846\ns_lshr_b32 s5, s5, 16\ns_mul_i32 s5, s5, 3\ns_sub_u32 s5, s{M1}, s5",
            f"s_lshl2_add_u32 s4, s{KQ}, s4\ns_lshl_b32 s4, s4, {7+k}\ns_mul_i32 s7, s{KQ}, 9\ns_sub_u32 s7, s{N1}, s7\ns_lshl3_add_u32 s4, s7, s4\ns_add_u32 s4, s4, {FLAG2}",
            f"s_cmp_eq_u32 s5, 1\ns_cselect_b32 s7, {2*R}, {R}", f"s_cmp_lg_u32 s5, 0\ns_cselect_b32 s5, 4, 0",
            f"v_lshlrev_b32 v{v}, 7, v0\nv_add_u32 v{v}, s4, v{v}\nv_cmp_gt_u32 vcc, {R}, v0\nv_mov_b32 v24, s5\nv_cndmask_b32 v24, 0, v24, vcc\nv_add_u32 v{v}, v{v}, v24",
            f"v_cmp_gt_u32 vcc, s7, v0\nv_mov_b32 v24, {OOB}\nv_cndmask_b32 v{v}, v24, v{v}, vcc"]
def poll2_addr(v=PV):
    if OPT["rep"]:
        R=OPT["rep"]; k=R.bit_length()-1; assert atom("p2") and OPT["pw0"]==1
        L=[MP.format(4)+f"\ns_lshl2_add_u32 s4, s{KQ}, s4\ns_lshl_b32 s4, s4, {k}"]
        if R>1: L+=[f"s_lshr_b32 s5, s2, 4\ns_and_b32 s5, s5, {R-2}\ns_add_u32 s4, s4, s5\ns_and_b32 s5, s2, 1\ns_add_u32 s4, s4, s5"]
        return L+[f"s_lshl_b32 s4, s4, 7\ns_add_u32 s4, s4, {FLAG2}\nv_lshl_add_u32 v{v}, v2, 2, s4",
                  f"s_cmp_eq_u32 s3, 0\ns_cselect_b32 s4, 18, 0\nv_cmp_gt_u32 vcc, s4, v2\nv_mov_b32 v13, {OOB}\nv_cndmask_b32 v{v}, v13, v{v}, vcc\nv_mov_b32 v13, s{NONCE}\nv_cndmask_b32 v13, 0, v13, vcc"]
    L=poll_addr(f"s_mul_i32 s4, s{KQ}, 54\n"+MP.format(5)+"\ns_mul_i32 s5, s5, 3\ns_lshr_b32 s5, s5, 1\ns_add_u32 s4, s4, s5",18,FLAG2,v)
    L=L[:1]+[f"v_lshrrev_b32 v{v+1}, 1, v{v}", f"v_lshl_add_u32 v{v}, v{v+1}, 2, v{v}"]+L[1:]
    if atom("p2"):
        assert OPT["pw0"]
        L+=[(f"s_cmp_eq_u32 s3, 0\ns_cselect_b32 s4, 18, 0" if OPT["pw0"]==1 else "s_mov_b32 s4, 18")+f"\nv_cmp_gt_u32 vcc, s4, v2\nv_mov_b32 v13, {OOB}\nv_cndmask_b32 v{v}, v13, v{v}, vcc\nv_mov_b32 v13, s{NONCE}\nv_cndmask_b32 v13, 0, v13, vcc"]
    elif OPT["pw0"]==1: L+=[f"s_cmp_eq_u32 s3, 0\ns_cselect_b32 s83, s{NONCE}, 0\ns_cselect_b32 s4, 0, {OOB}\nv_add_u32 v{v}, s4, v{v}"]
    return L

def warm(name):
    if not OPT["iw"]: return []
    return [f"s_mov_b64 exec, 0\ns_call_b64 s[82:83], L_wc_{name}\ns_mov_b64 exec, -1"]

KR,VR,TR=60,82,98
KL=HR; VL=HR+12672; KLX=8192
def p0(a):
    a(f".globl {KN}\n.p2align 8\n.type {KN},@function\n{KN}:")
    a("s_cmp_lt_u32 s2, 256\ns_cbranch_scc0 L_exit")
    a("s_load_dwordx2 s[56:57], s[0:1], 0\ns_load_dwordx2 s[48:49], s[0:1], 8\ns_load_dwordx2 s[52:53], s[0:1], 16\ns_load_dwordx2 s[60:61], s[0:1], 24")
    a("s_load_dwordx16 s[16:31], s[0:1], 0\ns_load_dwordx8 s[32:39], s[0:1], 64\ns_load_dwordx4 s[40:43], s[0:1], 96\ns_memrealtime s[12:13]")
    a("v_lshrrev_b32 v1, 6, v0\nv_and_b32 v2, 63, v0")
    nl=OPT["cpl"]; red=OPT["cpr"]
    a(f"s_getpc_b64 s[6:7]\nL_pc:\ns_lshr_b32 s4, s2, 1\ns_and_b32 s4, s4, {(128>>red)-4}\nv_add_u32 v22, s4, v1\nv_lshl_add_u32 v22, v2, {7-red}, v22\nv_lshlrev_b32 v22, 7, v22")
    a(f"v_min_u32 v22, L_end-L_pc-4, v22\ns_mov_b64 exec, {(1<<nl)-1}\nglobal_load_dword v255, v22, s[6:7] ; @code\ns_mov_b64 exec, -1\nv_readfirstlane_b32 s3, v1")
    if OPT["rgm"]: a(f"s_and_b32 s4, s2, 7\ns_lshr_b32 s5, s2, 3\ns_lshl_b32 s4, s4, 5\ns_add_u32 s{NONCE}, s4, s5")
    else: a(f"s_mov_b32 s{NONCE}, s2")
    a(f"v_lshrrev_b32 v3, 5, v0\nv_and_b32 v4, 31, v0\nv_mul_u32_u24 v5, 1152, v3\nv_mad_u32_u24 v5, v4, 12, v5\ns_mul_i32 s15, s{NONCE}, 9216")
    a(f"s_mul_i32 s4, s3, 3072\ns_add_u32 s5, s4, s15\ns_sub_u32 s5, s5, 3456\nv_lshlrev_b32 v6, 4, v2\nv_add_u32 v7, s5, v6\nv_add_u32 v58, 1024, v7")
    a(f"s_add_u32 s4, s4, {KL}\ns_lshl_b32 s5, s3, 11\ns_add_u32 s11, s5, s15\ns_add_u32 s5, s5, {VL}\ns_cmp_lt_u32 s2, 216\ns_cselect_b32 s9, 0, {KL-KLX}\ns_sub_u32 s4, s4, s9\ns_sub_u32 s5, s5, s9\ns_mov_b32 m0, s4")
    for r,nb in ((56,NB_SD),(48,NB_SD),(52,NB_SD),(60,576*8)): a(f"s_mov_b32 s{r+2}, {nb}\ns_mov_b32 s{r+3}, 0x20000")
    a("v_lshlrev_b32 v59, 3, v0\ns_movk_i32 s10, 4096\nv_lshlrev_b32 v91, 3, v2\nv_or_b32 v22, s2, v0\nv_lshlrev_b32 v22, 8, v22\ns_mov_b32 s66, 256\ns_mov_b32 s67, 0x20000")
    a("s_waitcnt lgkmcnt(0)")
    stamp(a,1,"P")
    xld=[f"buffer_load_dwordx3 v[{8+4*j}:{10+4*j}], v5, {RA}, s15 offen offset:{384*j} ; @x" for j in range(3)]
    if not OPT["kvf"]: a.extend(xld)
    pub=f"s_or_b32 s12, s12, 1\nv_mov_b32 v23, s12\nbuffer_store_dword v23, v22, {RC}, 0 offen sc1 ; @pub"
    if OPT["pub0"]: a("s_mov_b32 s64, s40\ns_and_b32 s65, s41, 0xffff\n"+pub)
    a("buffer_load_dwordx4 v7, s[48:51], 0 offen lds ; @kv\ns_add_u32 m0, s4, 1024\ns_cmp_eq_u32 s3, 3")
    a("buffer_load_dwordx4 v58, s[48:51], 0 offen lds ; @kv\nbuffer_load_dwordx4 v58, s[48:51], 0 offen offset:1024 lds ; @kv\ns_cbranch_scc1 L_xld\nL_nox:\ns_mov_b32 m0, s5")
    COLD.insert(0,"L_xld:\ns_mov_b64 exec, 0xffffff\nbuffer_load_dwordx4 v58, s[48:51], 0 offen offset:2048 lds\ns_mov_b64 exec, -1\ns_mov_b32 m0, s5\nbuffer_load_dwordx4 v6, s[52:55], s11 offen offset:2048 lds\ns_branch L_nox")
    a(f"buffer_load_dwordx2 {P(TR)}, v59, {RB_}, 0 offen ; @kv")
    a("buffer_load_dwordx4 v6, s[52:55], s11 offen lds ; @kv\nbuffer_load_dwordx4 v6, s[52:55], s11 offen offset:1024 lds ; @kv")
    a(f"buffer_load_dwordx2 {P(TR+2)}, v59, {RB_}, 0 offen offset:2048 ; @kv\nbuffer_load_dwordx2 {P(TR+4)}, v{91 if OPT['k8'] else 59}, {RB_}, s10 offen ; @kv")
    if OPT["kvf"]: a.extend(xld)
    if OPT["stamps"]: a("v_writelane_b32 v254, s12, 0")
    if not OPT["pub0"]: a("s_mov_b32 s64, s40\ns_and_b32 s65, s41, 0xffff\n"+pub)
    stamp(a,2,"P")
    if OPT["wso"]: a(f"s_add_u32 s{S_WS}, s{S_WS}, {OPT['wso']<<20}\ns_addc_u32 s{S_WS+1}, s{S_WS+1}, 0"); assert (OPT["wso"]<<20)+WS_END<=256<<20
    srd(a,44,S_WS,WS_END)
    a("s_and_b32 s5, s2, 7\ns_lshr_b32 s6, s2, 3")
    a("s_lshr_b32 s7, s6, 2\ns_lshr_b32 s8, s3, 1\ns_lshl1_add_u32 s9, s7, s8\ns_cmp_ge_u32 s9, 10\ns_addc_u32 s14, s9, 0\ns_cmp_ge_u32 s9, 3\ns_addc_u32 s14, s14, 0")
    a(f"s_lshl3_add_u32 s8, s8, 3\ns_cmp_eq_u32 s7, 7\ns_cselect_b32 s14, s8, s14\ns_and_b32 s4, s5, 1\ns_lshl4_add_u32 s{N2}, s4, s14")
    a(f"s_lshr_b32 s13, s5, 1\ns_mov_b32 s{KQ}, s13\ns_lshl_b32 s{LW}, s3, 12")
    srd(a,52,S_W2,4608*4096)
    if OPT["smove"]<2: a.extend(k2table())
    a("s_cmp_lt_u32 s6, 27\ns_cbranch_scc0 L_aux")
    if OPT["iw"]==1: a("s_branch L_org\nL_exit:\ns_endpgm\n.p2align 12\nL_org:")
    else: COLD.append("L_exit:\ns_endpgm")

def phaseA(a, tag, fill_ln, fill_kv, fill_post):
    X,T,M,RS,D=20,38,56,18,8
    L=flat([unpack(X+2*j,8+4*(j//3)+j%3) for j in range(9)])+ln_fused(X,T,M,RS,D,106)
    AW,AS,AH,AK,AO,AV,AZ,AK2,AV2=48,49,50,51,52,53,54,55,90; hf=OPT["hf"]; assert hf and atom("p1")
    a(f"s_mov_b32 s9, {LN_ST}\ns_mov_b32 s11, {KL if tag=='G' else KLX}")
    a(f"v_mul_u32_u24 v{AW}, {LN_STR}, v3\nv_mad_u32_u24 v{AW}, v4, 12, v{AW}\nv_add_u32 v{AW}, s9, v{AW}\nv_mov_b32 v47, {OOB}")
    a(f"v_lshlrev_b32 v3, 3, v3\ns_lshl_b32 s5, s{NONCE}, 6\ns_add_u32 s5, s5, {WS_STATS}\nv_cmp_eq_u32 vcc, 0, v4\nv_cndmask_b32 v{AS}, v47, v3, vcc")
    a(f"v_lshrrev_b32 v5, 4, v0\nv_and_b32 v4, 3, v2\nv_lshlrev_b32 v4, 3, v4\nv_lshl_add_u32 v5, v5, 5, v4\nv_bfe_u32 v6, v2, 2, 2\nv_mul_u32_u24 v4, {LN_STR}, v6\nv_mul_u32_u24 v6, 1152, v6")
    a(f"v_add3_u32 v{AH}, v4, v5, s9\nv_add3_u32 v{AK}, v6, v5, s11\ns_mul_i32 s4, s3, {2304-128}\nv_add_u32 v{AK2}, s4, v{AK}")
    a(f"v_lshlrev_b32 v{AO}, 4, v0\ns_add_u32 s7, s15, 4096\ns_add_u32 s8, s15, 8192\ns_cmp_eq_u32 s3, 0\ns_cselect_b32 s8, s8, {OOB}\nv_add_u32 v{AV}, {WS_KVT}, v{AO}\nv_mov_b32 v{AZ}, 0")
    if OPT["sg"]:
        a(f"v_add_u32 v96, {KV_ST}, v3\nv_add_u32 v4, 64, v96\nv_cndmask_b32 v96, v4, v96, vcc".replace("v_cndmask","v_and_b32 v5, 31, v0\nv_cmp_eq_u32 vcc, 0, v5\nv_cndmask"))
        a(f"v_lshlrev_b32 v4, 3, v0\nv_cmp_gt_u32 vcc, 8, v0\nv_cndmask_b32 v{AS}, v47, v4, vcc\nv_and_b32 v4, 63, v4\nv_add_u32 v97, {KV_ST}, v4")
    hp=OPT["hp"]; AP=93
    if hp:
        for i in range(3): a(f"v_add_u32 v4, {4096*i}, v{AO}"); a.extend(hphys(AP+i,4,5))
        a(f"s_mul_i32 s10, s{NONCE}, {HG}\ns_add_u32 s10, s10, {WS_HP}\ns_cmp_eq_u32 s3, 0\ns_cselect_b32 s83, s10, {OOB}")
    if hp>1: assert not OPT["k8"]; a(f"s_add_u32 s7, s10, {WS_KP-WS_HP}\ns_add_u32 s8, s83, {WS_KP-WS_HP}")
    a(f"s_mul_i32 s4, s3, 1028\ns_sub_u32 s4, {8192+12}, s4\nv_add_u32 v{AV2}, s4, v{AV}")
    a(f"s_bfe_u32 s6, s{NONCE}, 0x20001\ns_lshl_b32 s6, s6, 6\ns_lshr_b32 s9, s{NONCE}, 3\ns_lshl1_add_u32 s6, s9, s6\ns_and_b32 s9, s{NONCE}, 1\ns_add_u32 s6, s6, s9")
    a(f"s_lshl_b32 s4, s6, 2\ns_add_u32 s4, s4, {FLAG1}\nv_lshl_add_u32 v1, v0, 10, s4\ns_lshl_b32 s4, s{NONCE}, 2\ns_add_u32 s4, s4, {FLAGK}\nv_lshl_add_u32 v46, v0, 10, s4")
    a(f"v_cmp_gt_u32 vcc, {OPT['rep1']}, v0\nv_cndmask_b32 v1, v47, v1, vcc\nv_cmp_gt_u32 vcc, {OPT['repk']}, v0\nv_cndmask_b32 v46, v47, v46, vcc")
    stamp(a,3,"P")
    if OPT.get("fine")=="P":
        a("s_waitcnt vmcnt(12)"); stamp(a,4,"P")
        a("s_waitcnt vmcnt(9)"); stamp(a,5,"P")
        a("s_waitcnt vmcnt(6)"); stamp(a,6,"P")
        a("s_waitcnt vmcnt(4)"); stamp(a,7,"P")
        a("s_waitcnt vmcnt(1)"); stamp(a,8,"P")
        a("s_waitcnt vmcnt(0)"); stamp(a,9,"P")
    kvf=OPT["kvf"]
    ln=["@W x"]+(interleave(L,fill_ln,0,(len(L)-4)*OPT["lne"]//100) if fill_ln else L)+[f"ds_write_b32 v{AW}, v{D+j} offset:{384*(j//3)+4*(j%3)}" for j in range(9)]
    sg=OPT["sg"]
    ln+=[f"ds_write_b64 v96, v[106:107]"] if sg else [f"buffer_store_dwordx2 v[106:107], v{AS}, {WS}, s5 offen sc1 ; @sts"]
    hrd=[[f"ds_read_b64_tr_b16 {P(20+4*i)}, v{AH} offset:{512*i} ; @ht{i}", f"ds_read_b64_tr_b16 {P(22+4*i)}, v{AH} offset:{512*i+4*LN_STR} ; @ht{i}"] for i in range(3)]
    so=("s15","s7","s8")
    if sg: hrd[0]=["ds_read_b64 v[106:107], v97 ; @ht0"]+hrd[0]
    hst=[f"@W - ht{i}\nbuffer_store_dwordx4 {Q(20+4*i)}, v{AP+i if hp else AO}, {WS}, {('s10','s10','s83')[i] if hp else so[i]} offen sc1 ; @st" for i in range(3)]
    if sg: hst[0]+=f"\nbuffer_store_dwordx2 v[106:107], v{AS}, {WS}, s5 offen sc1 ; @st"
    krd=[[f"ds_read_b64_tr_b16 {P(KR+10*i+2*q)}, v{AK} offset:{512*i+1152*(0,4,8,11,15)[q]} ; @kr{i}" for q in range(5)] for i in range(3)]
    k8=OPT["k8"]
    if k8: krd[2]=[f"ds_read_b64_tr_b16 {P(KR+20+2*q)}, v{AK2} offset:{1024+1152*(0,4,11)[q]} ; @kr2" for q in range(3)]
    nonce=f"buffer_load_dword v45, v{AZ}, {RC}, 0 offen sc1 ; @nonce"
    def kvc(i):
        K=KR+10*i; V_=K+6; J=108; T=114; RE=116+8*(i&1); VU=132; O=160+4*i
        L=[f"v_alignbit_b32 v{T}, v{TR+2*i+1}, v{TR+2*i+1}, 16", f"v_alignbit_b32 v{T+1}, v{TR+2*i}, v{TR+2*i}, 16", f"@W - kr{i}"]
        if i==2 and k8:
            L+=[f"v_alignbit_b32 v{J+m}, v{K+m+1}, v{K+m}, 16" for m in range(2)]+[f"v_dot2_f32_bf16 v{RE+r}, v{(K,J)[r]}, v{T}, 0" for r in range(2)]+unpack(VU,K+4)
            L+=[f"v_dot2_f32_bf16 v{RE+r}, v{(K,J)[r]+1}, v{T+1}, v{RE+r}" for r in range(2)]+[f"v_pk_mul_f32 {P(RE)}, {P(RE)}, {P(VU)}", f"v_cvt_pk_bf16_f32 v{O}, v{RE+1}, v{RE}"]
            return L+[f"buffer_store_dword v{O}, v{AV2}, {WS}, s15 offen sc1 ; @stk"]
        L+=[f"v_alignbit_b32 v{J+m}, v{K+m+1}, v{K+m}, 16" for m in range(5)]
        L+=[f"v_dot2_f32_bf16 v{RE+r}, v{(J if r&1 else K)+(r>>1)}, v{T}, 0" for r in range(8)]
        L+=[f"v_dot2_f32_bf16 v{RE+r}, v{(J if r&1 else K)+(r>>1)+1}, v{T+1}, v{RE+r}" for r in range(8)]
        L+=flat([unpack(VU+2*m,V_+m) for m in range(4)])
        L+=[f"v_pk_mul_f32 {P(RE+2*m)}, {P(RE+2*m)}, {P(VU+2*m)}" for m in range(4)]
        L+=[f"v_cvt_pk_bf16_f32 v{O+p}, v{RE+7-2*p}, v{RE+6-2*p}" for p in range(4)]
        return L+[f"buffer_store_dwordx4 {Q(O)}, v{AP+i if hp>1 else AV}, {WS}, {('s7','s7','s8')[i] if hp>1 else so[i]} offen sc1 ; @stk"]
    c0=kvc(0)
    pub=f"@W nonce\nv_readfirstlane_b32 s{NONCE}, v45\ns_cmp_eq_u32 s{NONCE}, 0\ns_cbranch_scc1 L_nw_{tag}\nL_ng_{tag}:\ns_barrier\nv_mov_b32 v3, s{NONCE}\nbuffer_store_dword v3, v1, {WS}, 0 offen sc1 ; @fl"
    L=c0[:8]+interleave(c0[8:],krd[2],0,24)+(kvc(2)+kvc(1) if k8==2 else kvc(1)+kvc(2))
    kv=["@W kv\ns_barrier"]+krd[0]+krd[1]+(interleave(L,fill_kv,10,OPT['kvend']) if fill_kv else L); k=OPT["npre"]
    if kvf:
        a(kv[0]); stamp(a,1); a.extend(kv[1:]+[nonce.replace("v45","v92")]); stamp(a,2)
        a.extend(ln); a(pub.replace("@W nonce","@W nonce 0").replace("v45","v92").replace("v3, v1,","v3, v46,")); stamp(a,15)
        a.extend(flat(hrd)+hst); stamp(a,3)
        a.extend(fill_post); a(f"@W st\ns_barrier\nbuffer_store_dword v3, v1, {WS}, 0 offen sc1 ; @fl")
    else:
        a(ln[0]); stamp(a,1); a.extend(ln[1:]+["@W - 0\ns_barrier"]+flat(hrd)+hst+[nonce]); stamp(a,2)
        a.extend(kv); stamp(a,3)
        a.extend(fill_post[:k]); a(pub); stamp(a,15); a.extend(fill_post[k:])
        a(f"@W stk\ns_barrier\nbuffer_store_dword v3, v46, {WS}, 0 offen sc1 ; @fl")
    COLD.append(f"L_nw_{tag}:\ns_mov_b32 s5, 0\nL_nl_{tag}:\nbuffer_load_dword v45, v{AZ}, {RC}, 0 offen sc1\ns_waitcnt vmcnt(0)\nv_readfirstlane_b32 s{NONCE}, v45\n"
                f"s_cmp_lg_u32 s{NONCE}, 0\ns_cbranch_scc1 L_ng_{tag}\ns_add_u32 s5, s5, 1\ns_cmp_lt_u32 s5, {OPT['spinmax']}\ns_cbranch_scc1 L_nl_{tag}\ns_branch L_ng_{tag}")
    stamp(a,4)

def w2steps(S, n_issue, n_drain, pick):
    steps=[]; R=S["R"]
    def issue():
        t=S["issue"]; s=pick(t,S["free"]) if t<n_issue else None
        if s is None: return []
        S["free"].remove(s); S["slot"][t]=s; S["issue"]+=1
        return w2dma(t,s)
    while True:
        d=issue()
        if not d: break
        steps.append(d)
    prev=None
    while S["drain"]<n_drain:
        t=S["drain"]; S["drain"]+=1; dm=[]
        st=[f"@W w2_{t} "+(f"r2_{prev}" if prev is not None else "-")+"\ns_barrier"]
        if prev is not None: S["free"].append(S["slot"].pop(prev)); dm=issue()
        steps.append(st+interleave(R.reads(t,S["slot"][t]),dm)); prev=t
    if prev is not None:
        S["free"].append(S["slot"].pop(prev)); steps.append([f"@W - r2_{prev}\ns_barrier"]+issue())
    while S["issue"]<n_issue:
        d=issue(); assert d; steps.append(d)
    return steps

def roleG(a):
    if OPT["jm"]: a("s_mul_i32 s12, s6, 7282\ns_lshr_b32 s12, s12, 16\ns_mul_i32 s8, s12, 9\ns_sub_u32 s7, s6, s8")
    else: a("s_mul_i32 s7, s6, 21846\ns_lshr_b32 s7, s7, 16\ns_mul_i32 s8, s7, 3\ns_sub_u32 s12, s6, s8")
    if OPT["ce"]:
        pm=[sorted(range(9),key=lambda n:(p+n)%4!=1) for p in range(4)]; t=[sum(x<<(4*i) for i,x in enumerate(r[:8])) for r in pm]
        a(f"s_mov_b32 s8, {t[0]:#x}"+"".join(f"\ns_cmp_eq_u32 s13, {p}\ns_cselect_b32 s8, {t[p]:#x}, s8" for p in (3,2,1))+"\ns_cselect_b32 s9, 7, 8\ns_lshl_b32 s5, s7, 2\ns_lshr_b32 s8, s8, s5\ns_and_b32 s8, s8, 15\ns_cmp_eq_u32 s7, 8\ns_cselect_b32 s7, s9, s8")
        assert [r[8] for r in pm]==[8,7,8,8]
    a(f"s_mul_i32 s8, s13, 9\ns_add_u32 s{N1}, s8, s7\ns_lshl1_add_u32 s{M1}, s12, s4")
    a(f"s_mul_i32 s8, s{N1}, 6\ns_add_u32 s{TID}, s8, s{M1}")
    srd(a,48,S_W1,2048*4608*2)
    if OPT["hrot"]: a("s_add_u32 s12, s12, s7\ns_mul_i32 s8, s12, 21846\ns_lshr_b32 s8, s8, 16\ns_mul_i32 s8, s8, 3\ns_sub_u32 s12, s12, s8")
    KT=list(range(18,28))+list(range(76,82)); b=0
    KQ_=1 if OPT["hp"] else 73728
    a(f"s_mul_i32 s4, s4, {16*KQ_}")
    for W in [int(x) for x in str(OPT["w1w"]).split("_")]:
        a(f"s_mul_i32 s7, s12, {W*21846}\ns_lshr_b32 s7, s7, 16\ns_mul_i32 s7, s7, {KQ_}\ns_add_u32 s5, s4, {b*KQ_}\ns_add_u32 s{KT[b]}, s7, s5\ns_add_u32 s8, s5, {W*KQ_}")
        for i in range(b+1,b+W): a(f"s_add_u32 s{KT[i]}, s{KT[i-1]}, {KQ_}\ns_cmp_eq_u32 s{KT[i]}, s8\ns_cselect_b32 s{KT[i]}, s5, s{KT[i]}")
        b+=W
    assert b==16
    NW1=16
    a("v_lshrrev_b32 v24, 4, v2\nv_and_b32 v25, 15, v2\nv_lshlrev_b32 v26, 1, v24\nv_xor_b32 v25, v25, v26\nv_mul_u32_u24 v24, 9216, v24\nv_lshl_add_u32 v24, v25, 4, v24")
    a(f"s_mul_i32 s7, s3, {16*9216}\ns_lshl_b32 s8, s{N1}, 8\ns_add_u32 s7, s7, s8\nv_add_u32 v{VW1}, s7, v24\nv_add_u32 v{VW1+1}, {36864-1024}, v{VW1}")
    a(f"v_xor_b32 v24, 128, v{VW1}\nv_add_u32 v{VW1+2}, {2*(36864-1024)}, v24\nv_add_u32 v{VW1+3}, {36864-1024}, v{VW1+2}")
    def w1dma(q,slot):
        L=[f"s_add_u32 m0, s{LW}, {slot*SLOT}\ns_mul_i32 s14, s{KT[q]}, {8*73728//KQ_}"]
        return L+[f"buffer_load_dwordx4 v{VW1+r}, {RW1}, s14 offen offset:{1024*r} lds ; @w1_{q}" for r in range(4)]
    def w1reads(q,slot):
        L=[]
        for ks in range(2):
            for ft in range(2):
                for hf in range(2):
                    r0=16*(q&15)+8*ks+4*ft+2*hf
                    L.append(f"ds_read_b64_tr_b16 a[{r0}:{r0+1}], v{RW1B+2*(slot>>2)+ft} offset:{(slot&3)*SLOT+ks*8192+hf*1024} ; @r1_{q}")
        return L
    rb=["v_bfe_u32 v140, v2, 2, 2","v_lshrrev_b32 v141, 4, v2","v_lshl_add_u32 v142, v141, 3, v140","v_lshlrev_b32 v142, 8, v142","v_and_b32 v143, 3, v2","v_lshl_add_u32 v142, v143, 3, v142",
        "v_and_b32 v141, 1, v141","v_lshl_add_u32 v140, v141, 2, v140","s_lshl_b32 s7, s3, 1","v_xor_b32 v140, s7, v140",f"v_lshl_add_u32 v{RW1B}, v140, 5, v142",f"v_xor_b32 v{RW1B+1}, 32, v{RW1B}",
        f"v_add_u32 v{RW1B+2}, 0x10000, v{RW1B}",f"v_add_u32 v{RW1B+3}, 0x10000, v{RW1B+1}"]
    UA=240; BU=128; ACCF=192; XA=246; RH2=250
    NH=OPT['nh']; NWB=(163840-NH*HS)//SLOT; HB=NWB*SLOT
    rb.append(f"v_and_b32 v24, 15, v2\nv_lshrrev_b32 v25, 4, v2\nv_mul_u32_u24 v26, {U2_PL}, v25\nv_lshl_add_u32 v26, v24, 4, v26")
    rb.append(f"v_mul_u32_u24 v25, 1536, v25\nv_lshl_add_u32 v25, v24, 4, v25\nv_add_u32 v{RH}, {HB}, v25\nv_add_u32 v{RH2}, {3*HS}, v{RH}")
    rb.append(f"s_mul_i32 s7, s3, 18432\ns_xor_b32 s8, s{M1}, 1\ns_mul_i32 s8, s8, 1536\ns_add_u32 s7, s7, s8\nv_lshlrev_b32 v{XA}, 4, v2\nv_add_u32 v{VH}, s7, v{XA}")
    rb.append(f"v_lshrrev_b32 v25, 5, v2\nv_mul_u32_u24 v25, {9216-1536}, v25\nv_add_u32 v{VH+1}, v{VH}, v25\nv_add_u32 v{VH+2}, {9216-1536}, v{VH}\ns_mul_i32 s{LH}, s3, 3072\ns_add_u32 s{LH}, s{LH}, {HB}")
    VH2=(8,9,3); hs=[]
    if OPT["hp"]:
        for hf_,dst in ((1,(VH,VH+1,VH+2)),(0,VH2)):
            hs.append(f"s_xor_b32 s8, s{M1}, {hf_}\ns_mul_i32 s8, s8, 1536\ns_mul_i32 s7, s3, {2*HG}\ns_add_u32 s7, s7, {WS_HP}")
            for r in range(3):
                hs.append(f"v_add_u32 v24, {1024*r}, v{XA}\nv_cmp_lt_u32 vcc, 1535, v24\nv_cndmask_b32 v25, 0, 1, vcc\nv_mad_i32_i24 v24, v25, -1536, v24\nv_add_u32 v24, s8, v24".replace("v_mad_i32_i24 v24, v25, -1536, v24","v_mul_u32_u24 v30, 1536, v25\nv_sub_u32 v24, v24, v30"))
                hs+=hphys(24,24,30)+[f"v_mul_u32_u24 v25, {HG}, v25\nv_add3_u32 v24, v24, v25, s7\nv_subrev_u32 v{dst[r]}, {1024*r}, v24"]
    uset=[f"s_mul_i32 s7, s{M1}, 6\ns_add_u32 s7, s7, {dt}\ns_mul_i32 s8, s7, 7282\ns_lshr_b32 s8, s8, 16\ns_mul_i32 s5, s8, 9\ns_sub_u32 s7, s7, s5\ns_lshl_b32 s7, s7, 2\n"
          +"s_mov_b32 s4, 0xeca86420\n"+(f"s_bitcmp1_b32 s8, 0\ns_cselect_b32 s4, 0xca864203, s4\ns_cselect_b32 s5, 14, 3\n" if OPT["al"] else "s_mov_b32 s5, 3\n")+f"s_lshr_b64 s[4:5], s[4:5], s7\ns_and_b32 s4, s4, 15\ns_lshl4_add_u32 s4, s8, s4\nv_lshl_add_u32 v{UA+dt}, s4, 8, v{UA+5}" for dt in range(6)]
    rb.append(f"v_mov_b32 v{UA+5}, v26")
    if not OPT["rbl"]: a.extend(rb); rb=[]
    first=[]
    slot={q:s_ for q,s_ in enumerate(list(range(NWB,7))+list(range(NWB)))}
    for q in range(7):
        d=w1dma(q,slot[q]); first+=[d[0]+"\n"+d[1]]+d[2:]
    nln,nkv,npost=OPT["nln"],OPT["nkv"],OPT["npost"]
    phaseA(a,"G",*((first[nkv:nln+nkv],first[:nkv]) if OPT["kvf"] else (first[:nln],first[nln:nln+nkv])),first[nln+nkv:nln+nkv+npost]+(warm("G") if OPT["wg"]==0 else [])+(warm("D") if OPT["wd"]==1 else []))
    if OPT["iw"]==2: a("s_branch L_org\n.p2align 12\nL_org:")
    a("L_segG:")
    n0=OPT["n0"]
    a.extend(first[nln+nkv+npost:4*n0 if n0 else 28]); assert not n0 or nln+nkv+npost<=4*n0
    a.extend(rb)
    if OPT["wg"]==1: a.extend(warm("G"))
    if OPT["wd"]==2: a.extend(warm("D"))
    srd(a,56,S_B1,4608*2); srd(a,60,S_B2,4096)
    p1=poll_addr(f"s_and_b32 s4, s{M1}, 1\ns_lshl1_add_u32 s4, s3, s4\ns_lshl_b32 s4, s4, 5",32,FLAG1)
    if atom("p1"):
        assert OPT["hf"]; R1=OPT["rep1"]
        p1=[f"s_and_b32 s4, s{M1}, 1\ns_lshl1_add_u32 s4, s3, s4\ns_lshl_b32 s4, s4, 7\ns_bfe_u32 s5, s2, 0x10003\ns_lshl1_add_u32 s5, s{KQ}, s5\ns_lshr_b32 s5, s5, {3-(R1.bit_length()-1)}"]
        p1+=[f"s_lshl_b32 s5, s5, 10\ns_add_u32 s4, s4, s5\ns_add_u32 s4, s4, {FLAG1}", f"v_lshl_add_u32 v{PV}, v2, 2, s4", "v_cmp_gt_u32 vcc, 32, v2", f"v_mov_b32 v12, {OOB}", f"v_cndmask_b32 v{PV}, v12, v{PV}, vcc", f"v_mov_b32 v12, s{NONCE}\nv_cndmask_b32 v12, 0, v12, vcc"]
    setup=p1+[f"v_lshrrev_b32 v24, 4, v2\nv_lshlrev_b32 v25, 3, v24\ns_lshl_b32 s7, s{N1}, 8\ns_lshl_b32 s8, s3, 6\ns_add_u32 s7, s7, s8\n"
           f"buffer_load_dwordx2 {P(BIAS)}, v25, {RA}, s7 offen ; @bias\nbuffer_load_dwordx2 {P(BIAS+2)}, v25, {RA}, s7 offen offset:32 ; @bias"]+eprep()+w2setup()
    moved=[]
    if OPT["smove"]: moved=setup[8:]; setup=setup[:8]
    nA=OPT["nA"]; nd=max(2,nA-NWB+1)
    per=max(7,(len(setup)+nd-2)//(nd-1))
    assert nd-OPT["lead1"]>=1 and per*(nd-OPT["lead1"])>=7
    nq=7; freeq=[]
    if n0:
        nA,nd=n0,OPT["nd0"]; a.extend(setup); freeq=[(slot[q],-1) for q in range(n0,7)]; del first[4*n0:]
        if OPT["pp"]==0: a(poll_issue("p1G"))
        a("@W w1_1\ns_barrier"); a.extend(w1reads(0,slot[0])+w1reads(1,slot[1]))
        if OPT["pp"]==1: a(poll_issue("p1G"))
        for d in range(2,nd):
            a(f"@W w1_{d}\ns_barrier"); a.extend(w1reads(d,slot[d])); freeq.append((slot[d],-1))
            if OPT["pp"]==d: a(poll_issue("p1G"))
        PRE=Asm(); a.L.append(PRE); a("@W - 0\ns_barrier"); assert nd<=n0 and OPT["pp"]<nd
        for _ in range(OPT["nrf"]):
            slot[nA]=freeq.pop(0)[0]; d=w1dma(nA,slot[nA]); first+=d; first[-5:]=[d[0]+"\n"+d[1]]+d[2:]; nA+=1
    for d in range(0 if not n0 else nd,nd):
        if d%2==0: stamp(a,1+d//2,"A")
        if d==nd-OPT["lead1"]: a(poll_issue("p1G"))
        a(f"@W w1_{d} 0\ns_barrier")
        dm=[]
        if freeq and nq<nA: slot[nq]=freeq.pop(0)[0]; dm=w1dma(nq,slot[nq]); nq+=1
        a.extend(interleave(w1reads(d,slot[d]),dm)); a.extend(setup[d*per:(d+1)*per])
        if slot[d]<NWB: freeq.append((slot[d],-1))
    assert n0 or (nq==nA and nd>7-NWB)
    if OPT["lead1"]==0 and not n0: a(poll_issue("p1G"))
    a.extend(hs)
    PRE1=Asm(); a.L.append(PRE1)
    stamp(a,5)
    a(poll_check("p1G"))
    stamp(a,6); stamp(a,1,"B")
    R=W2R()
    stg=OPT["stg"]; seq=[divmod(j,2) for j in range(64)]
    seq[32-2*stg:32]=[(p,g_) for g_ in range(2) for p in range(16-stg,16)]
    juse=lambda p,f: f(j for j in range(64) if seq[j][0]==p)
    need={p:(juse(p,min)-2)//2 for p in range(1,32)}; avail={p:juse(p-NH,max)//2 for p in range(NH,32)}
    issued_at={q:-9 for q in range(nA)}
    nxt_issue,nxt_drain,acc=nA,nd,OPT.get("acc0",50)
    ep_dma={};ep_rd={};ep_wait={};ep_h={}
    bl=[[int(y) for y in x.split(".")] for x in str(OPT["bursts"]).split("_") if "." in x]
    bursts={x[0]:x[1] for x in bl}; bnn={x[0]:(x[2] if len(x)>2 else OPT["bn"]) for x in bl}
    bq={x[0]:(x[3] if len(x)>3 else OPT["quiet"]) for x in bl}
    quiet=-1; qfrom=-1; nh=OPT['h0']; lim=NW1+OPT['maxb']
    def issue(e):
        nonlocal nxt_issue
        s=freeq.pop(0)[0]; t=nxt_issue; slot[t]=s; issued_at[t]=e; nxt_issue+=1
        ep_dma.setdefault(e,[]).extend(w1dma(t,s) if t<NW1 else w2dma(t-NW1,s))
    for e in range(0,31):
        t=nxt_drain
        if t in issued_at and issued_at[t]+OPT["lat"]+(OPT["quiet"] if (t in bursts or t-1 in bursts) else 0)<=e and (t<NW1 or t<e):
            ep_rd[e]=w1reads(t,slot[t]) if t<NW1 else R.reads(t-NW1,slot[t])
            ep_wait[e]=f"w1_{t}" if t<NW1 else f"w2_{t-NW1}"
            assert t>=NW1 or 2*e+2<juse(t,min), (t,e)
            freeq.append((slot[t],e+2)); nxt_drain+=1
        if qfrom<e<=quiet: continue
        k=len([p for p in (nh,nh+1) if p<32 and avail.get(p,-1)<=e and (p==nh or avail.get(nh,-1)<=e)])
        ep_h[e]=list(range(nh,nh+k)); nh+=k
        assert all(need[p]>=e+2 for p in ep_h[e]), (e,ep_h[e])
        if (k==2 and e>=OPT["e01"]) or e<=quiet: continue
        ok=len([1 for s_,f in freeq if f<=e])
        if nxt_issue in bursts:
            if e>=bursts[nxt_issue] and ok>=bnn[nxt_issue] and nxt_issue<lim:
                qn=bq[nxt_issue]
                for _ in range(bnn[nxt_issue]): issue(e)
                quiet=e+qn+OPT.get("qlag",0); qfrom=e+OPT.get("qlag",0); acc=100
            continue
        acc+=OPT["rate"] if nxt_issue<NW1 else OPT["rate2"]
        if acc>=100 and ok and nxt_issue<lim and not (OPT["q0"]<=e<OPT["q1"]):
            issue(e); acc-=100
            if e<OPT["e2x"] and ok>1 and nxt_issue<NW1: issue(e)
        acc=min(acc,150)
    assert nh==32
    assert nxt_drain>=NW1
    print(f"; B schedule: issue epochs {[issued_at[t] for t in range(nA,nxt_issue)]}; w2 issued {nxt_issue-NW1}, drained {nxt_drain-NW1}; h {''.join(str(len(ep_h.get(e,[]))) for e in range(31))}", file=sys.stderr)
    def hdma(p):
        L=[f"s_add_u32 m0, s{LH}, {(p%NH)*HS}"]
        if OPT["hp"]: return [L[0]+f"\ns_mul_i32 s13, s{KT[p&15]}, {8*HG}"]+[f"buffer_load_dwordx4 v{VH+r if p<16 else VH2[r]}, {WS}, s13 offen offset:{1024*r} sc1 lds ; @h{p}" for r in range(3)]
        if p==16: L=[f"s_and_b32 s13, s{M1}, 1\ns_mul_i32 s13, s13, 3072", "s_sub_u32 s13, s13, 1536"]+[f"v_add_u32 v{VH+r}, s13, v{VH+r}" for r in range(3)]+L
        return L+[f"buffer_load_dwordx4 v{VH+r}, {WS}, s{KT[p&15]} offen offset:{1024*r} sc1 lds ; @h{p}" for r in range(3)]
    def hreads(j):
        p,ks=seq[j]
        pos=[(3*ks+(i>>1),i&1) for i in range(6)]
        return [f"ds_read_b128 {Q(HF+24*(j&1)+4*i)}, v{RH if p%NH<3 else RH2} offset:{(p%NH%3 if p%NH<6 else p%NH-3)*HS+k*6144+dt*256} ; @H{j}" for i,(dt,k) in enumerate(pos)]
    S=dict(R=R, slot={t-NW1:slot[t] for t in range(nxt_drain,nxt_issue)}, free=list(range(NWB,10))+[s for s,_ in freeq], issue=nxt_issue-NW1, drain=nxt_drain-NW1)
    RS0=10-OPT["nsl"]
    def tile(ring):
        fr=[s for s in ((8,9,7,6,5) if ring else range(RS0)) if s in S["free"] and (s>=RS0)==ring]
        if not fr or S["issue"]>=OPT["nC"]: return []
        t=S["issue"]; S["issue"]+=1
        if not ring:
            if "ord" not in S:
                S["ord"]=list(range(t,OPT["nC"])); c=OPT["cfirst"]
                if c in S["ord"]: S["ord"].remove(c); S["ord"].insert(OPT["cpos"],c)
            t=S["ord"].pop(0)
        S["free"].remove(fr[0]); S["slot"][t]=fr[0]; return w2dma(t,fr[0])
    pack=[]
    if OPT["gpf"]:
        assert OPT["ce"] and not OPT["jm"]; np_=OPT["gpf"]
        pack=[f"s_cmp_eq_u32 s{KQ}, 1\ns_cselect_b32 s5, 9, 6\ns_lshr_b32 s4, s2, 3\ns_sub_u32 s4, s4, s5\ns_mul_i32 s7, s4, {(65536+np_-1)//np_}\ns_lshr_b32 s7, s7, 16\ns_mul_i32 s8, s7, {np_}\ns_sub_u32 s8, s4, s8",
              f"s_mul_i32 s8, s8, {64*(2 if np_<=3 else 1)}\ns_lshl4_add_u32 s8, s3, s8\ns_and_b32 s5, s2, 1\ns_lshl_b32 s5, s5, 10\ns_add_u32 s8, s8, s5\ns_add_u32 s8, s8, {64*OPT['pf0']}\ns_mul_i32 s8, s8, 9216",
              f"s_sub_u32 s5, 1, s{KQ}\ns_and_b32 s5, s5, 3\ns_lshl2_add_u32 s7, s7, s5\ns_mul_i32 s5, s{KQ}, 9\ns_add_u32 s5, s5, s7\ns_lshl_b32 s5, s5, 8\ns_add_u32 s8, s8, s5",
              f"s_cmp_lt_u32 s7, 9\ns_cselect_b32 s8, s8, {OOB}\ns_cmp_lt_u32 s4, 27\ns_cselect_b32 s15, s8, {OOB}",
              "v_min_u32 v30, 31, v2\nv_lshrrev_b32 v31, 1, v30\nv_mul_u32_u24 v31, 9216, v31\nv_and_b32 v30, 1, v30\nv_lshl_add_u32 v30, v30, 7, v31",
              f"buffer_load_dword v255, v30, {RW1}, s15 offen ; @pf"]
        PRE.extend(pack[:-1])
    hq=[hdma(p) for p in range(OPT['h0'])]; wq=[first[4*q:4*q+4] for q in range(n0,nA)] if n0 else []
    for c in str(OPT["ord"]):
        q_=hq if c=="h" else wq if c=="w" else [pack[-1:]]
        if c=="p": pack=[]
        if q_: a.extend(q_.pop(0))
    a.extend(flat(hq)+flat(wq)+pack[-1:])
    PRE2=Asm(); a.L.append(PRE2)
    a("@W h0 0\ns_barrier")
    a.extend(hreads(0))
    xs=[f"s_xor_b32 s7, s{TID}, 1\ns_lshl2_add_u32 s7, s7, s3", f"s_mul_i32 s9, s7, 6144\ns_add_u32 s9, s9, {WS_XB}", f"s_lshl_b32 s7, s7, 7\ns_add_u32 s6, s7, {WS_F4}",
        f"s_lshl2_add_u32 s7, s{TID}, s3\ns_mul_i32 s10, s7, 6144", f"s_add_u32 s10, s10, {WS_XB}\ns_lshl_b32 s7, s7, 7", f"s_add_u32 s7, s7, {WS_F4}\nv_mov_b32 v{PV}, s7",
        f"v_add_u32 v{XA+1}, 3072, v{XA}", "v_cmp_eq_u32 vcc, 0, v2", f"v_mov_b32 v{XA+2}, {OOB}", f"v_cndmask_b32 v{XA+2}, v{XA+2}, 0, vcc", f"v_mov_b32 v{XA+3}, s{NONCE}"]
    if atom("p5"): xs+=[f"v_add_u32 v{PV}, v{PV}, v{XA+2}", f"v_cndmask_b32 v12, 0, v{XA+3}, vcc"]
    snd=[[f"v_cvt_pk_bf16_f32 v{ACCF+8*dt+k}, v{ACCF+8*dt+2*k}, v{ACCF+8*dt+2*k+1}" for k in range(4)]+[f"buffer_store_dwordx4 {Q(ACCF+8*dt)}, v{XA+dt//3}, {WS}, s9 offen offset:{1024*(dt%3)} sc1 ; @bs"] for dt in range(6)]
    RV=160
    rcv=[poll_check("p5")]+[f"buffer_load_dwordx4 {Q(RV+4*dt)}, v{XA+dt//3}, {WS}, s10 offen offset:{1024*(dt%3)} sc1 ; @bl" for dt in range(6)]
    EX={}
    early=lines(uset)+xs+["@W bias"]+flat([unpack(BU+2*q,BIAS+q) for q in range(4)])
    if OPT["smove"]: early=lines(moved)+(k2table() if OPT["smove"]>=2 else [])+early
    early+=lines((flag2_prep(17) if OPT["rep"] else flag_prep(TID,FLAG2,17))+poll2_addr(15)+dsetA()+dsetE()+(dsetB() if OPT["hoist"] else []))
    k1,k2=OPT["ap1"],OPT["ap2"]
    kx=[i for i,x in enumerate(early) if f"v{PV}, s7" in x][0]; k1=min(k1,kx)
    PRE1.extend(early[:k1]); PRE2.extend(early[k1:k1+k2]); early=early[k1+k2:]
    a.L=flat([x.L if isinstance(x,Asm) else [x] for x in a.L])
    e0,ne=OPT["je0"],OPT["jen"]; CL={}
    nc=len(early)*OPT["cfrac"]//100; restl=early[nc:]; early=early[:nc]; nr_=29-e0-ne
    for k in range(nr_): EX[e0+ne+k]=restl[k*len(restl)//nr_:(k+1)*len(restl)//nr_]
    print("; early instrs",nc,len(restl),file=sys.stderr)
    wts=[1+OPT["ramp"]*(ne-1-k)/max(1,ne-1)/10 for k in range(ne)]; cs=[int(round(len(early)*sum(wts[:k])/sum(wts))) for k in range(ne+1)]
    for k in range(ne): (CL if OPT["clump"] else EX)[e0+k]=early[cs[k]:cs[k+1]]
    g2=OPT["g2b"]
    for dt,j in enumerate(str(OPT["bsj"]).split("_")): assert int(j)>max(x for x in range(32) if seq[x][1]==dt//3) ; EX[int(j)]=EX.get(int(j),[])+snd[dt]
    EX[OPT["jbf"]]=[f"@W bs\nbuffer_store_dword v{XA+3}, v{XA+2}, {WS}, s6 offen sc1 ; @bf"]
    EX[OPT["jbp"]]=poll_issue("p5").split("\n")
    EX[OPT["jbl"]]=(split_check(rcv[0]) if g2 else rcv[:1])+rcv[1:4]; EX[OPT["jbl"]+1]=rcv[4:]
    ju=OPT["jbu"]; assert ju==57
    BC=[]; ma=OPT["madd"]; SEL=BU
    if not ma: EX[ju]=["@W bl"]
    if ma:
        assert 38 not in EX and 39 not in EX
        EX[38]=["v_bfe_u32 v24, v2, 2, 2","v_lshrrev_b32 v25, 4, v2","v_cmp_eq_u32 vcc, v24, v25","v_and_b32 v24, 1, v2","v_lshlrev_b32 v24, 4, v24","v_mov_b32 v25, 0x3f80","v_lshlrev_b32 v24, v24, v25","v_cndmask_b32 v24, 0, v24, vcc"]
        EX[39]=["v_and_b32 v25, 2, v2","v_cmp_eq_u32 vcc, 0, v25",f"v_cndmask_b32 v{SEL+2}, 0, v24, vcc",f"v_cndmask_b32 v{SEL+3}, v24, 0, vcc"]+[f"v_mov_b32 v{SEL+k}, 0" for k in (0,1,4,5)]
    for j in range(64):
        p,ks=seq[j]; e=(j-1)//2; half=(j-1)%2
        mf=[]
        for d in range(3):
            dt=3*ks+d
            for f in range(2):
                ft=f^(dt&1); acc_=Q((ACCF if j<32 else ACC1)+8*dt+4*ft)
                for n_,k in enumerate((1,0) if f else (0,1)):
                    mf.append(f"v_mfma_f32_16x16x32_bf16 {acc_}, {Q(16*(p&15)+8*k+4*ft,'a')}, {Q(HF+24*(j&1)+8*d+4*k)}, "+(acc_ if (n_ or p%16) else "0" if p==0 else Q(BU+4*ft)))
        if ma and j>=62:
            for k in range(6): dt=3*ks+k//2; ft=(k&1)^(dt&1); acc_=Q(ACC1+8*dt+4*ft); mf.insert(3*k+2,f"v_mfma_f32_16x16x32_bf16 {acc_}, {Q(SEL+2-2*ft)}, {Q(RV+4*dt)}, {acc_}")
        g=(Gaps2 if g2 else Gaps)(mf)
        if ma and j==62: g.before(2,"@W bl")
        if j%8==0: stamp(a,2+j//8,"B")
        if j%4==0 and j<48: stamp(a,1+j//4,"B1")
        if j%4==0 and j>=16: stamp(a,1+(j-16)//4,"B2")
        g.before(0,f"@W - H{j}")
        ks=j&1
        if ks==1:
            tg=[f"h{x}" for x in need if need[x]==e][-1:]+([ep_wait[e]] if e in ep_wait else [])
            g.put([(f"@W {','.join(tg)}\n" if tg else "")+"s_barrier"],0,1)
        hh=ep_h.get(e,[])
        dm=(hdma(hh[0]) if hh else []) if ks==1 else (hdma(hh[1]) if len(hh)>1 else ep_dma.get(e,[]))
        if len(hh)>1 and e in ep_dma:
            allv=hdma(hh[0])+hdma(hh[1])+ep_dma[e]; dm=allv[:len(allv)//2] if ks==1 else allv[len(allv)//2:]
        if j==63:
            dm=flat([tile(True) for _ in range(OPT['n63'])])
        if j<63: g.put(hreads(j+1),1,7)
        if e in ep_rd:
            if g2: g.fit(flat([x.split("\n") for x in ep_rd[e][4*half:4*half+4]]),OPT["rd0"],12)
            else: g.put(ep_rd[e][4*half:4*half+4],7,11)
        if dm:
            if g2>1: g.fit([far(x,1) if (k and "m0," in dm[k-1]) else x for k,x in enumerate(dm)],ks,12,spread=0.3)
            else: g.put(dm,1 if ks==1 else 0,12)
        if j>ju and not ma:
            dt=3*(1-ks)+(j-58)//2; L_=[]
            for ft in range(2):
                q=2*dt+ft; A=ACC1+4*q; t=ACCF+4*ft
                L_+=unpack(t,RV+2*q)+unpack(t+2,RV+2*q+1)+[f"v_add_f32 v{A+r}, v{A+r}, v{t+r}" for r in range(4)]
            g.fit(L_,2,11)
        if EX.get(j): g.fit(EX[j],4 if j in (31,32,32-stg) else 0,12)
        if CL.get(j):
            c_=OPT["clump"]; n_=len(CL[j])
            for i in range(c_): g.g[(2*i+1)*12//(2*c_)]+=CL[j][i*n_//c_:(i+1)*n_//c_]
        if OPT.get("gnop") and OPT.get("gn0",0)<=j<OPT["gnop"]:
            for i in range(0,12,OPT.get("gns",3)): g.g[i].append("s_nop 7")
        if OPT.get("gcut") and j<OPT.get("gcj",64): g.mf=[m if (i%OPT["gcut"]) else "s_nop 0" for i,m in enumerate(g.mf)]
        if g2: BC.append(g.over())
        g.emit(a)
    if g2: print("; B cost/kstep"," ".join(f"{x:.0f}" for x in BC),file=sys.stderr)
    stamp(a,7); stamp(a,10,"B"); stamp(a,13,"B2")
    c=0.7978845608028654*2*1.4426950408889634
    BU=HF
    V=[f"v_mov_b32 v{BU+8}, {f2h(-c)}", f"s_mov_b32 s10, {f2h(-c*0.044715)}", f"s_lshl_b32 s9, s{N1}, 2\ns_add_u32 s9, s9, s3\ns_mul_i32 s9, s9, {U2_KS}\ns_add_u32 s9, s9, {WS_U2}"]
    for g in range(3):
        A=ACC1+16*g; T=GT; O=HF+16+8*g
        V+=[f"v_pk_mul_f32 {P(T+2*j)}, {P(A+2*j)}, {P(A+2*j)}" for j in range(8)]
        V+=[f"v_pk_fma_f32 {P(T+2*j)}, {P(T+2*j)}, s[10:11], {P(BU+8)} op_sel_hi:[1,0,0]" for j in range(8)]
        V+=[f"v_pk_mul_f32 {P(T+2*j)}, {P(T+2*j)}, {P(A+2*j)}" for j in range(8)]
        V+=[f"v_exp_f32 v{T+j}, v{T+j}" for j in range(16)]
        V+=[f"v_pk_add_f32 {P(T+2*j)}, {P(T+2*j)}, 1.0 op_sel_hi:[1,0]" for j in range(8)]
        V+=[f"v_rcp_f32 v{T+j}, v{T+j}" for j in range(16)]
        V+=[f"v_pk_mul_f32 {P(A+2*j)}, {P(A+2*j)}, {P(T+2*j)}" for j in range(8)]
        V+=[f"v_cvt_pk_bf16_f32 v{O+j}, v{A+2*j}, v{A+2*j+1}" for j in range(8)]
        V+=[f"buffer_store_dwordx4 {Q(O+4*h)}, v{UA+2*g+h}, {WS}, s9 offen sc1 ; @ust" for h in range(2)]
    a("@W - 0")
    fill=flat([tile(True) for _ in range(OPT["nin"])])
    if OPT.get("nogelu"): V=[x for x in V if not x.startswith(("v_exp","v_rcp","v_pk"))]
    a.extend(interleave(V,fill,0,len(V)-40) if fill else V)
    stamp(a,8)
    if OPT["wd"]==0: a.extend(warm("D"))
    old=sorted(S["slot"]); pe=OPT["pe"]; flag=f"buffer_store_dword v{XA+3}, v17, {WS}, 0 offen sc1 ; @fl"
    if OPT["cw"]: a(f"@W w2_{old[-1]}\ns_barrier")
    else:
        a("@W ust\ns_barrier\n"+flag); stamp(a,9)
        if pe==0: a(poll_issue("p2G"))
    stamp(a,1,"C")
    new=flat([tile(False) for _ in range(OPT["nc1"])])
    rd=flat([R.reads(t,S["slot"][t]) for t in old])
    a.extend(interleave(rd,new,len(rd)*OPT["c1s"]//100,len(rd)*OPT["c1e"]//100) if new else rd); stamp(a,2,"C")
    a.extend(kutable())
    if OPT["cw"]: a(f"@W ust r2_{old[-1]}\ns_barrier\n"+flag); stamp(a,9)
    else: a(f"@W - r2_{old[-1]}\ns_barrier")
    stamp(a,3,"C")
    for t in old: S["free"].append(S["slot"].pop(t))
    S["drain"]=old[-1]+1
    k=0
    while True:
        if pe==k+1: a(poll_issue("p2G"))
        d=tile(False)
        if not d: break
        a.extend(d); k+=1; stamp(a,3+k,"C")
    if pe>k+1: a(poll_issue("p2G"))
    assert S["issue"]==OPT["nC"]
    print("; C: drained",old,"resident",S["slot"], file=sys.stderr)
    stamp(a,13,"C")
    return S

CV_IMG=36864; CV_H0=2*CV_IMG; CV_COPY=4160; CV_BUF=2*CV_COPY
def roleX_A(a):
    if OPT["iw"]==1: a(".p2align 12")
    a("L_aux:")
    if OPT["smove"]>=2: a.extend(k2table())
    a(f"s_lshl2_add_u32 s7, s5, s6\ns_add_u32 s7, s7, 188\ns_add_u32 s8, s5, 248\ns_cmp_eq_u32 s6, 27\ns_cselect_b32 s{TID}, s8, s7")
    srd(a,48,S_SSM,576*4096)
    a(f"v_lshlrev_b32 v240, 4, v2\ns_mul_i32 s{LH}, s3, {2*CV_BUF}\ns_add_u32 s{LH}, s{LH}, {CV_H0}\ns_sub_u32 s{N1}, s{TID}, 216")
    a(f"s_lshl_b32 s{M1}, s{N1}, 4\ns_add_u32 s{M1}, s{M1}, s3\ns_lshl_b32 s12, s{M1}, 12\ns_lshl_b32 s{M1}, s{M1}, 1")
    d=cv_hdma(0); d=[d[0]+"\n"+d[1]]+d[2:]; k=OPT["cvs"]
    phaseA(a,"X",d[:k],[],d[k:]+(cv_hdma(1) if str(OPT["cvd"]).startswith("m2") else [])+warm("X"))
    a("L_segX:")
    if str(OPT["cvd"]).startswith("m3"): a.extend(cv_hdma(1))
    if OPT["pfw"]:
        srd(a,64,S_W1,2048*4608*2)
        a(f"s_lshr_b32 s4, s2, 3\ns_sub_u32 s4, s4, 27\ns_lshl2_add_u32 s4, s4, s3\ns_lshr_b32 s5, s4, 1\ns_mul_i32 s7, s5, 21846\ns_lshr_b32 s7, s7, 16\ns_mul_i32 s8, s7, 3\ns_sub_u32 s5, s5, s8")
        a(f"s_sub_u32 s8, 1, s{KQ}\ns_and_b32 s8, s8, 3\ns_lshl2_add_u32 s7, s7, s8\ns_and_b32 s4, s4, 1\ns_lshl_b32 s4, s4, 5\ns_lshl_b32 s5, s5, 7\ns_add_u32 s4, s4, s5\ns_and_b32 s5, s2, 1\ns_lshl_b32 s5, s5, 10\ns_add_u32 s4, s4, s5")
        a(f"s_add_u32 s4, s4, {64*OPT['pf0']}\ns_mul_i32 s4, s4, 9216\ns_mul_i32 s5, s{KQ}, 9\ns_add_u32 s5, s5, s7\ns_lshl_b32 s5, s5, 8\ns_add_u32 s4, s4, s5\ns_cmp_lt_u32 s7, 9\ns_cselect_b32 s4, s4, {OOB}")
        a("v_lshrrev_b32 v24, 1, v2\nv_mul_u32_u24 v24, 9216, v24\nv_and_b32 v25, 1, v2\nv_lshl_add_u32 v24, v25, 7, v24")
        for i in range(OPT["pfw"]): a(f"buffer_load_dword v255, v24, {RC}, s4 offen ; @pf\ns_add_u32 s4, s4, {64*9216}")
    a(f"s_cmp_lt_u32 s{TID}, 252\ns_cbranch_scc0 L_idle")
def xsetup():
    t=Asm(); srd(t,60,S_B2,4096)
    return warm("D")+[i.text for i in t.L]+eprep()+w2setup()+dsetA()+kutable()
def nX(): return OPT["nX"]
XS={}
def cv_hdma(c):
    L=[f"s_add_u32 m0, s{LH}, {(c&1)*CV_BUF+32}\ns_add_u32 s13, s12, {16384*c}"]
    return L+[f"buffer_load_dwordx4 v240, {RW1}, s13 offen offset:{1024*i} lds ; @hc{c}" for i in range(4)]
def conv(a):
    ACC=32; S0=64; T=192; U=208; BT=212
    VHD,BA,FX,EB,YO,DR,AB,BB,DV,VK=240,241,242,243,8,9,236,244,248,15
    R=W2R(); kp_=OPT["hp"]>1; GS_=HG if kp_ else 9216
    srd(a,56,S_D,576*2)
    def dload(c): return f"v_mov_b32 v{DR}, {8*c}\nbuffer_load_ushort v{DR}, v{DR}, {RA}, s{M1} offen ; @hd{c}"
    a(dload(0))
    fold=OPT["fold"]
    def dbuild(): return [] if fold else [f"v_lshl_or_b32 v{DR}, v{DR}, 16, v{DR}"]+[f"v_and_b32 v{DV+k}, v{DR}, v{U+k}" for k in range(4)]
    if not fold:
        a(f"v_and_b32 v196, 15, v2\nv_lshrrev_b32 v197, 4, v2\nv_lshlrev_b32 v197, 3, v197\nv_add_u32 v196, v196, v197\nv_sub_u32 v196, 15, v196")
        a("v_and_b32 v197, 1, v196\nv_lshlrev_b32 v197, 4, v197\nv_mov_b32 v198, 0xffff\nv_lshlrev_b32 v197, v197, v198\nv_ashrrev_i32 v196, 1, v196")
        for k in range(4): a(f"v_cmp_eq_u32 vcc, {k}, v196\nv_cndmask_b32 v{U+k}, 0, v197, vcc")
    a.extend(poll1_addr())
    a(f"v_add_u32 v{BA}, s{LH}, v{VHD}\nv_cmp_eq_u32 vcc, 0, v2\nv_mov_b32 v196, 4136\nv_cndmask_b32 v196, v196, 30, vcc\nv_add_u32 v{FX}, s{LH}, v196")
    a(f"v_bfe_u32 v196, v2, 3, 2\nv_mul_u32_u24 v196, {CV_COPY}, v196\nv_and_b32 v197, 7, v2\nv_lshl_add_u32 v196, v197, 2, v196\nv_add_u32 v200, s{LH}, v196")
    a("v_mov_b32 v196, 0\nv_mov_b32 v197, 0\nv_mov_b32 v198, 0\nv_mov_b32 v199, 0\nds_write_b32 v200, v196\nv_lshlrev_b32 v201, 4, v0")
    a(f"ds_write_b128 v201, v[196:199]\nds_write_b128 v201, v[196:199] offset:{CV_IMG}")
    def brd(c):
        o=(c&1)*CV_BUF+32
        return flat([[f"ds_read_b128 {Q(BT+6*i)}, v{BA} offset:{o+1024*i} ; @b{c}", f"ds_read_b32 v{BT+6*i+4}, v{BA} offset:{o+1024*i+16} ; @b{c}"] for i in range(4)])
    def bwr(c):
        o=(c&1)*CV_BUF+CV_COPY; L=[f"ds_write_b16 v{FX}, v{BT} offset:{o}"]
        if fold: L=[f"@W hd{c}", f"v_lshlrev_b32 v{DR}, 16, v{DR}", f"v_lshlrev_b32 v{U}, 16, v{BT}", f"v_add_f32 v{DR}, v{DR}, v{U}", f"v_cvt_pk_bf16_f32 v{DR}, v{DR}, v{DR}",
                    f"ds_write_b16 v{FX}, v{DR} offset:{o}", f"ds_write_b16 v{FX}, v{DR} offset:{o-CV_COPY+2}"]
        for i in range(4):
            t=BT+6*i
            L+=[f"v_alignbit_b32 v{t+k}, v{t+k+1}, v{t+k}, 16" for k in range(4)]+[f"ds_write_b128 v{BA}, {Q(t)} offset:{o+32+1024*i} ; @bw"]
        return L
    if OPT["kp"]==0: a(poll_issue("p1X"))
    a("@W hc0"); a.extend(brd(0))
    a(f"v_lshrrev_b32 v202, 3, v2\nv_and_b32 v203, 7, v2\nv_lshrrev_b32 v204, 1, v202\nv_xor_b32 v203, v203, v204\nv_mul_u32_u24 v202, {GS_}, v202")
    a(f"v_lshl_add_u32 v{VK}, v203, 4, v202\nv_xor_b32 v{VK+1}, 64, v{VK}")
    a(f"v_and_b32 v202, 15, v2\nv_add_u32 v202, 1, v202\nv_and_b32 v203, 1, v202\nv_mul_u32_u24 v203, {CV_COPY}, v203\nv_lshrrev_b32 v202, 1, v202\nv_lshl_add_u32 v203, v202, 2, v203")
    a(f"v_lshrrev_b32 v204, 4, v2\nv_lshl_add_u32 v203, v204, 4, v203\nv_add_u32 v{AB}, s{LH}, v203")
    for p in range(1,4): a(f"v_add_u32 v{AB+p}, 1024, v{AB+p-1}")
    if OPT["kp"]==1: a(poll_issue("p1X"))
    a("@W - b0"); a.extend(bwr(0))
    if OPT["kp"]==2: a(poll_issue("p1X"))
    for v in range(4):
        a(f"v_and_b32 v202, 15, v2\nv_lshlrev_b32 v202, 1, v202\nv_sub_u32 v202, v202, v204\nv_add_u32 v202, {17-4*v}, v202")
        a(f"v_bfe_u32 v203, v202, 1, 3\nv_xor_b32 v203, s3, v203\nv_lshlrev_b32 v203, 4, v203\nv_lshl_add_u32 v{BB+v}, v202, 7, v203")
    a(f"v_and_b32 v202, 15, v2\nv_lshlrev_b32 v202, 5, v202\nv_lshl_add_u32 v{YO}, v204, 3, v202")
    a(f"s_mul_i32 s7, s3, {64*9216}\ns_lshl_b32 s8, s{N1}, 8\ns_add_u32 s7, s7, s8\ns_add_u32 s10, s7, {WS_KVT}\ns_lshl_b32 s9, s3, 13\ns_add_u32 s9, s9, 4096")
    if kp_:
        for d,o in ((10,0),(11,1)):
            a(f"s_lshl1_add_u32 s4, s{N1}, {o}\ns_mul_i32 s5, s4, 9363\ns_lshr_b32 s5, s5, 16\ns_mul_i32 s7, s5, 7\ns_sub_u32 s7, s4, s7\ns_cmp_gt_u32 s7, 2\ns_addc_u32 s4, s4, s5\ns_lshl_b32 s4, s4, 7\ns_mul_i32 s7, s3, {64*HG}\ns_add_u32 s4, s4, s7\ns_add_u32 s{d}, s4, {WS_KP}")
    def rdA(G,c):
        g0=G&7; r=S0+64*(G&1)+4*c; o=(64*g0+512*(c&1))//4; tg=f"f{G}" if c==0 else f"g{G}"
        return [f"ds_read2_b32 {P(r)}, v{AB+(c>>1)} offset0:{o} offset1:{o+1} ; @{tg}", f"ds_read2_b32 {P(r+2)}, v{AB+(c>>1)} offset0:{o+2} offset1:{o+3} ; @{tg}"]
    def rdB(G):
        g0=G&7
        return [f"ds_read_b128 {Q(S0+64*(G&1)+32+4*c)}, v{BB+(g0&3)} offset:{4096*c+(0 if g0>>2 else 2048)} ; @f{G}" for c in range(8)]
    def reads(G):
        if OPT["cch"]:
            L=flat([[rdB(G)[c]]+rdA(G,c) for c in range(8)])
            return [re.sub(r"@[fg]","@f" if i<12 else "@g",x) for i,x in enumerate(L)]
        return rdA(G,0)+rdB(G)+flat([rdA(G,c) for c in range(1,8)])
    a.extend(flat([rdA(0,c) for c in range(8)]))
    if OPT["kp"]==3: a(poll_issue("p1X"))
    if not fold: a("@W hd0"); a.extend(dbuild())
    stamp(a,5)
    a(poll_check("p1X"))
    if not (atom("p1") and OPT["kvb"]): a("s_barrier")
    stamp(a,6); stamp(a,1,"B")
    def kvdma(img):
        return [f"s_add_u32 m0, s9, {img*CV_IMG+i*1024}\ns_add_u32 s13, s{10+img*kp_}, {i*8*GS_+img*128*(not kp_)}\nbuffer_load_dwordx4 v{VK+(i&1)}, {WS}, s13 offen sc1 lds ; @kvi{img}" for i in range(8)]
    cvd=[int(x) for x in str(OPT["cvd"]).replace("m","-").split("_")]
    a.extend(kvdma(0)+xsetup()+R.goto(2)+(cv_hdma(1) if cvd[0]==-1 else []))
    a("@W kvi0 0\ns_barrier")
    a.extend(rdB(0))
    def epi(ch,q):
        A=ACC+4*q; k=T+2*q
        return [f"v_cvt_pk_bf16_f32 v{k}, v{A}, v{A+1}", f"v_cvt_pk_bf16_f32 v{k+1}, v{A+2}, v{A+3}",
                f"buffer_store_dwordx2 {P(k)}, v{YO}, {WS}, s6 offen offset:{512*q} sc1 ; @yst"]
    GS=[]
    for G in range(32):
        ch,rho=divmod(G,8); s=S0+64*(G&1)
        def M(c,q):
            if c<0: return f"v_mfma_f32_16x16x32_bf16 {Q(ACC+4*q)}, {Q(DV)}, {Q(s+32+4*q)}, 0"
            z=fold and rho==0 and q not in seen; seen.add(q)
            return f"v_mfma_f32_16x16x32_bf16 {Q(ACC+4*q)}, {Q(s+4*c)}, {Q(s+32+4*(q-c))}, "+("0" if z else Q(ACC+4*q))
        qmaj = rho==7 or (rho==0 and ch>0); c0=-1 if (rho==0 and not fold) else 0; seen=set(); GP=Gaps2 if OPT["g2c"] else Gaps
        g=GP([M(c,q) for q in range(7,-1,-1) for c in range(c0,q+1)] if qmaj else [M(c,q) for c in range(c0,8) for q in range(max(c,0),8)])
        if OPT["cch"] and not qmaj: seen=set(); g=GP([M(c,q) for q in range(8) for c in ([-1] if c0 else [])+(list(range(q+1)) if q&1==0 else list(range(q,-1,-1)))])
        n=len(g.mf); GS.append(g)
        if qmaj: g.before(0,f"@W - g{G}")
        elif OPT["cch"]: g.before(0,f"@W - f{G}"); g.before(10-4*c0,f"@W - g{G}")
        else: g.before(0,f"@W - f{G}"); g.before(n-28,f"@W - g{G}")
    def late():
      for G,g in enumerate(GS):
        ch,rho=divmod(G,8); n=len(g.mf)
        if ch<3:
            r=[f"@W - b{ch+1}"]+bwr(ch+1)
            rb=OPT["cvb"]
            if rho==rb: g.fit([f"@W hc{ch+1}"]+brd(ch+1),16,36)
            k=len(r)-10
            if rho==rb+1: g.fit(r[:k],4,36)
            if rho==rb+2: g.fit(r[k:]+([] if fold else [f"@W hd{ch+1}"])+dbuild(),0,36)
            if rho==6:
                g.fit([f"v_xor_b32 v{BB+v}, 64, v{BB+v}" for v in range(4)]+([f"v_add_u32 v{BB+v}, {CV_IMG}, v{BB+v}" for v in range(4)] if ch==1 else []),18,36)
                g.fit([f"v_add_u32 v{AB+p}, {CV_BUF if ch%2==0 else -CV_BUF}, v{AB+p}" for p in range(4)],29,36)
        if rho==6: g.fit([f"s_add_u32 s6, s12, {WS_YC+16384*ch}"],0,36)
        if rho==7: g.fit(epi(ch,7),12,20); g.fit(epi(ch,6),20,28); g.fit(epi(ch,5),28,36)
        if rho==0 and ch>0:
            e1,e2=(20,32) if fold else (23,38)
            g.fit(epi(ch-1,4)+epi(ch-1,3)+epi(ch-1,2),0,e1); g.fit(epi(ch-1,1)+epi(ch-1,0),e1,e2)
        if G<31:
            rr=reads(G+1)
            if rho==6:
                if OPT["cch"]:
                    rr=[x for x in rr if "b128" in x]+[x for x in rr if "b128" not in x]; rr=[re.sub(r"@f","@g",x) for x in rr]
                g.fit(rr[:10],0,14); g.fit(rr[10:],14,29)
            else: g.fit(rr,0,n-7 if rho==7 else n-1)
    def place(items, start, length):
        for k,it in enumerate(items):
            x=start+length*k/len(items); G=int(x); g=GS[G]; g.g[int((x-G)*len(g.mf))].append(it)
    flatg=[(G,i) for G,g in enumerate(GS) for i in range(len(g.mf))]; used=set()
    def nextgap(pre, item, start):
        G=int(start); p=flatg.index((G,int((start-G)*len(GS[G].mf))))
        while p in used or p+1 in used: p+=1
        used.update((p,p+1))
        GS[flatg[p][0]].g[flatg[p][1]].append(pre); GS[flatg[p+1][0]].g[flatg[p+1][1]].append(item)
    plan=[[int(y) for y in x.split(".")] for x in str(OPT["cvp"]).split("_")]; assert len(plan)==nX()
    B={102:[[],[],[]],149:[["kvi1"],[],[]],171:[[],[],[]]}; last={}
    for t,(sl,st,dr) in enumerate(plan):
        if dr: B.setdefault(dr,[[],[],[]])[0].append(f"w2_{t}")
        else: XS[t]=sl; assert sl<2 and t>=nX()-2
        assert (sl!=3 or dr<=97) and (sl>1 or st>171) and (not dr or t==0 or dr>=plan[t-1][2]+4)
    for t,(sl,st,dr) in enumerate(plan):
        if sl in last:
            d0=plan[last[sl]][2]+4; assert d0<=st-1,(t,sl); c=[b for b in B if d0<=b<=st-1]
            B.setdefault(max(c) if c else st-1,[[],[],[]])[1].append(last[sl])
        last[sl]=t
    if 3 in last: B[102][1].append(last[3])
    for t,(sl,st,dr) in enumerate(plan):
        if dr: B[dr][2]=flat([x.split("\n") for x in R.reads(t,sl)])
    for b,(vt,lt,rd) in sorted(B.items()): place([f"@W {','.join(vt) or '-'} {f'r2_{max(lt)}' if lt else '-'}\ns_barrier"]+rd,b/10,0.36)
    for t,(sl,st,dr) in enumerate(plan):
        d=w2dma(t,sl); m0,so=d[0].split("\n",1); place([so],st/10,1); ln=min(OPT["cvn"],(plan[t+1][1] if t+1<len(plan) else 319)-st)/10
        for r in range(4): nextgap(m0,d[1+r],st/10+0.03+ln*r/4)
    print("; conv barriers",len(B),file=sys.stderr)
    for ch in range(3):
        d=cv_hdma(ch+1); m0,so=d[0].split("\n",1); st=cvd[ch]/10; assert st>=8*ch-1
        place([dload(ch+1)],8*ch+1.35,1)
        if st<0: continue
        place([so],st+0.1,1)
        for r in range(4): nextgap(m0,d[1+r],st+0.15+0.22*r)
    for i,it in enumerate(kvdma(1)):
        pre,ld=it.rsplit("\n",1); nextgap(pre,ld,11.2+0.25*i)
    px=OPT["px"]/10; place(lines(poll2_addr()),min(30.05,px-1),0.9)
    if px<32: place(poll_issue("p2X").split("\n"),px,0.1)
    late()
    print("; conv overload", " ".join(f"{g.over():.0f}" for g in GS), file=sys.stderr)
    for G,g in enumerate(GS):
        if G%4==0: stamp(a,2+G//4,"B")
        if 8<=G<=20: stamp(a,G-7,"V")
        if 20<=G: stamp(a,G-19,"W")
        if OPT.get("cvcut"): g.mf=[m if (i%OPT["cvcut"]) else "s_nop 0" for i,m in enumerate(g.mf)]
        g.emit(a)
    if px>=32: a(poll_issue("p2X"))
    for q in range(4,-1,-1): a.extend(epi(3,q))
    stamp(a,7); stamp(a,10,"B"); stamp(a,13,"W")
    a.extend(R.goto(0))
    a("@W - 0\ns_barrier")
    stamp(a,9)
def idle(a):
    a("L_idle:")
    a("s_waitcnt vmcnt(0)\ns_barrier")
    a.extend(xsetup())
    R=W2R()
    if OPT["ipc"]:
        n=OPT["ipc"]*16
        a(f"s_sub_u32 s4, s{TID}, 252\ns_mul_i32 s4, s4, 1152\ns_mul_i32 s5, s3, {n}\ns_add_u32 s4, s4, s5\ns_add_u32 s4, s4, {1152-4*n}\ns_lshl_b32 s4, s4, 12\ns_add_u32 s4, s4, 384\nv_lshlrev_b32 v24, 10, v2")
        for i in range(n//16): a(f"buffer_load_dword v255, v24, {RW2}, s4 offen ; @pf\ns_add_u32 s4, s4, 65536")
    if OPT["ipf"]:
        n=OPT["ipf"]*16
        a(f"s_sub_u32 s4, s{TID}, 252\ns_mul_i32 s4, s4, 1152\ns_mul_i32 s5, s3, {n}\ns_add_u32 s4, s4, s5\ns_add_u32 s4, s4, {1152-4*n}\ns_lshl_b32 s4, s4, 12\nv_and_b32 v25, 7, v2\nv_cmp_eq_u32 vcc, 3, v25\nv_subbrev_co_u32 v24, vcc, 0, v2, vcc\nv_lshlrev_b32 v24, 7, v24")
        for i in range(n//2): a(f"buffer_load_dword v255, v24, {RW2}, s4 offen ; @pf\ns_add_u32 s4, s4, 8192"+("\ns_waitcnt vmcnt(24)" if i>24 else ""))
    n=nX(); S=dict(R=R,slot={},free=list(range(10)),issue=0,drain=0)
    for s in w2steps(S,n,n-2,lambda t,free: (XS[t] if t>=n-2 else ([s for s in free if s>1] or [None])[0])): a.extend(s)
    a.extend(R.goto(0))
    a.extend(warm("D"))
    a.extend(poll2_addr())
    if OPT["isl"]:
        a(f"s_mov_b32 s5, 0\nL_iw:\ns_sleep {OPT['isl']}\n{poll_op('p2X')}\ns_waitcnt vmcnt(0)\nv_cmp_eq_u32 vcc, 0, v13\ns_mov_b64 s[6:7], vcc\nv_cmp_ne_u32 vcc, v13, v{PV+1}\ns_andn2_b64 s[8:9], exec, vcc\ns_andn2_b64 s[8:9], s[8:9], s[6:7]"
          f"\ns_cbranch_scc1 L_ix\ns_cmp_eq_u64 s[6:7], exec\ns_cbranch_scc1 L_ix\ns_add_u32 s5, s5, 1\ns_cmp_lt_u32 s5, {OPT['spinmax']}\ns_cbranch_scc1 L_iw\nL_ix:")
    a(poll_issue("p2X"))
    a("s_branch L_DX")

def dsetA():
    L=[f"v_and_b32 v24, 15, v2\nv_lshrrev_b32 v25, 4, v2\nv_mul_u32_u24 v25, {U2_PL}, v25\nv_lshl_add_u32 v24, v24, 4, v25",
       f"s_mul_i32 s7, s{KQ}, 36\ns_and_b32 s8, s3, 1\ns_add_u32 s7, s7, s8\ns_mul_i32 s7, s7, {U2_KS}\n"+MP.format(8)+f"\ns_lshl_b32 s8, s8, 12\ns_add_u32 s7, s7, s8\ns_add_u32 s7, s7, {WS_U2}\nv_add_u32 v{VA+4}, s7, v24"]
    L+=[f"s_xor_b32 s7, s{KQ}, {b}\nv_lshl_add_u32 v{VA+b}, s7, 10, v{VA+4}" for b in range(4)]
    L.append(f"v_lshlrev_b32 v{RR}, 4, v2\nv_add_u32 v{RR}, {(10-OPT['nsl'])*SLOT}, v{RR}\nv_add_u32 v1, 0x10000, v{RR}")
    return L
def dsetE():
    t=Asm(); srd(t,56,S_Q,NB_SD)
    return [i.text for i in t.L]+[f"s_mov_b32 s{SC16}, {16*1152}\ns_mov_b32 s{SST}, {WS_STATS}"]
def dsetB():
    t=Asm(); srd(t,64,S_OUT,NB_SD); L=[i.text for i in t.L]
    L+=[f"v_lshlrev_b32 v{L16}, 4, v2", w2base(7)+f"\nv_subrev_u32 v{YP}, s7, v{VW2}\nv_subrev_u32 v{YP+1}, s7, v{VW2+1}"]
    L+=[MP.format(4)+f"\ns_mul_i32 s4, s4, 9\ns_lshl1_add_u32 s7, s{KQ}, s4\ns_and_b32 s8, s3, 1\ns_add_u32 s7, s7, s8\ns_bfe_u32 s8, s2, {0x10003 if OPT['al'] else 3}\ns_add_u32 s7, s7, s8\ns_lshl_b32 s8, s8, 3\ns_sub_u32 s4, s4, s8\ns_lshl_b32 s{SY0}, s7, 16\ns_add_u32 s{SY0}, s{SY0}, {WS_YC}\ns_add_u32 s4, s4, 8\ns_lshl_b32 s{SY8}, s4, 16\ns_add_u32 s{SY8}, s{SY8}, {WS_YC}",
        f"s_sub_u32 s4, s4, s7\ns_lshl_b32 s4, s4, 7\ns_lshl_b32 s7, s7, 7\ns_add_u32 s7, s7, {FLAGY}\nv_bfe_u32 v24, v2, 2, 1\nv_mul_i32_i24 v24, s4, v24\nv_and_b32 v25, 3, v2\nv_lshl_add_u32 v24, v25, 2, v24\nv_add_u32 v{PY}, s7, v24"]
    XA,XB,XZ,X8=(WS_X4+k*(3<<20) for k in range(4))
    L+=[f"s_lshl2_add_u32 s7, s2, s3\ns_mul_i32 s8, s7, 3072\ns_add_u32 s{SMA}, s8, {XA}\ns_add_u32 s{SMB}, s8, {XB}\ns_add_u32 s{SMZ}, s8, {XZ}\ns_lshl_b32 s{SM8}, s7, 12\ns_add_u32 s{SM8}, s{SM8}, {X8}"]
    L+=[f"s_xor_b32 s8, s7, {8*b}\ns_mul_i32 s8, s8, 3072\ns_add_u32 s{d}, s8, {x}" for b,d,x in ((1,SYA,XA),(2,SYB,XB),(3,SZ,XZ))]
    L+=[f"s_andn2_b32 s7, s7, 24\ns_lshl3_add_u32 s7, s3, s7\ns_lshl2_add_u32 s8, s7, s{KQ}\ns_lshl_b32 s8, s8, 10\ns_add_u32 s{SR0}, s8, {X8}\ns_xor_b32 s8, s8, 4096\ns_add_u32 s{SR1}, s8, {X8}",
        f"s_xor_b32 s8, s3, s{KQ}\ns_cmp_lt_u32 s8, 2\ns_cselect_b32 s{SM8}, s{SM8}, {OOB}\ns_cselect_b32 s{SY8}, s{SY8}, {OOB}\ns_cselect_b32 s{ST8}, s{NONCE}, 0",
        f"s_mov_b32 s38, {f2h(-1.4426950408889634)}"]
    L+=[f"s_and_b32 s8, s8, 1\ns_mul_i32 s41, s8, 96\ns_and_b32 s43, s{LW}, 4096"]
    if len(OPT["np"])<3 or OPT["cpo"]: L+=[f"v_lshlrev_b32 v24, 10, v2\nv_add_u32 v24, s{SM8}, v24\ns_add_u32 s7, s{SMA}, 2048\nv_mov_b32 v25, s{ST8}\nv_cmp_gt_u32 vcc, 4, v2\nv_cndmask_b32 v{PE1}, 0, v25, vcc\nv_mov_b32 v25, {OOB}\nv_cndmask_b32 v{PA1}, v25, v24, vcc",
        f"v_writelane_b32 v{PA1}, s7, 4\nv_writelane_b32 v{PE1}, s{NONCE}, 4\nv_min_u32 v{PA2}, 1, v2\nv_lshlrev_b32 v{PA2}, 30, v{PA2}\nv_mov_b32 v{PE2}, 0\nv_writelane_b32 v{PE2}, s{NONCE}, 0"]
    return L
FLAGY=FLAG2+16384
A8,AB=32,(88,40,56,72)
XP,STT,B2,X8=88,96,102,142
def eloads():
    L=[f"v_lshrrev_b32 v30, 2, v{SA}", f"v_lshrrev_b32 v31, 2, v{SA8}"]
    L+=[f"buffer_load_dwordx4 {Q(XP+4*j)}, v{XO}, {RA}, {('0',f's{SC16}')[j]} offen ; @ex" for j in range(2)]+[f"buffer_load_dwordx2 {P(X8)}, v{XO+1}, {RA}, 0 offen ; @ex"]
    L+=[f"buffer_load_dwordx2 {P(STT+2*n)}, v{SA if n<2 else SA8}, {WS}, s{SST} offen offset:{128*(n&1)} sc1 ; @ex" for n in range(3)]
    L+=[f"buffer_load_ushort v{B2+n if n<2 else B8}, v{30+(n>>1)}, {RB_}, 0 offen offset:{32*(n&1)} ; @eb" for n in range(3)]
    return L
def phaseD(a, ac, role, S):
    R=S["R"]; NSL=OPT["nsl"]; RS0=10-NSL; YSL=RS0-1; assert YSL>=4 and OPT["fpl"]==2
    a(f"L_D{role}:")
    us=OPT["usk"]; r1=[("R",0),(1,0),(1,1)]; blk=lambda b:[(b,0),(b,1)]
    groups=[(b,r,u) for rows,ur in ((r1+blk(2),range(us)),(r1,range(us,9)),(blk(2),range(us,9)),(blk(3),range(9)),(blk(0),range(9))) for u in ur for b,r in rows]
    need=[min(i for i,x in enumerate(groups) if x[2]==u) for u in range(9)]
    GS=need[8]//4*4; end={b:max(i for i,x in enumerate(groups) if x[0]==b)+1 for b in ("R",0,1,2,3)}; beg={b:min(i for i,x in enumerate(groups) if x[0]==b) for b in (0,3)}
    def acc(b,r): return A8 if b=="R" else AB[b]+8*r
    mf=[]
    for g_,(b,r,u) in enumerate(groups):
        for n_,nt in enumerate((1,0) if g_&1 else (0,1)):
            c=Q(acc(b,r)+4*nt)
            for i,k in enumerate((3,2,1,0) if n_ else (0,1,2,3)):
                kind,r0=w2reg(2*u+(k>>1))
                mf.append(f"v_mfma_f32_16x16x32_bf16 {c}, {Q(AF+16*(g_&1)+4*k)}, {Q(r0+8*(k&1)+4*nt,kind)}, "+("0" if (i==0 and u==0 and b in ("R",1,2)) else c))
    g=Gaps2(mf); fit0=g.fit
    def fit(L,s_,e_):
        assert not s_<8*GS<e_, ("list crosses the role boundary",L[:2])
        if OPT.get("skipv"): L=[x for x in L if not (x.startswith("v_") and "cmp" not in x and "add_u32" not in x and "xor" not in x and "v_mov" not in x and "lshrrev" not in x and "v_min" not in x and f"v{PV}," not in x)]
        if L: fit0(L,s_,e_)
    g.fit=fit
    def G(x): return int(round(8*x))
    def udma(g_):
        b,r,u=groups[g_]; e=g_//4; o=768 if b=="R" else 512*r
        return [f"s_add_u32 m0, s{LW}, {(RS0+e%NSL)*SLOT+1024*(g_%4)-o}", f"buffer_load_dwordx4 v{VA+(4 if b=='R' else b)}, {WS}, s{KU+u} offen offset:{o} sc1 lds ; @u{e}"]
    def urd(g_): return [f"ds_read_b128 {Q(AF+16*(g_&1)+4*k)}, v{RR if g_//4%NSL<4 else 1} offset:{(g_//4%NSL%4)*SLOT+4096*k+1024*(g_%4)} ; @f{g_}{'ab'[k>>1]}" for k in range(4)]
    PD=(0,1,2,4,5,6,8,9)
    def send(b,so):
        L=[]
        for d in range(8):
            L.append(f"v_cvt_pk_bf16_f32 v{SB+PD[d]}, v{AB[b]+2*d}, v{AB[b]+2*d+1}")
            if d in (2,5,7): L.append(far(f"buffer_store_dwordx4 {Q(SB+PD[d]//4*4)}, v{L16}, {WS}, s{so} offen offset:{PD[d]//4*1024} sc1 ; @xs{b}",1))
        return L
    def rld(h,dst,so,n,tg=True): return [far(f"buffer_load_dwordx4 {Q(dst+4*p)}, v{L16}, {WS}, s{so} offen offset:{1024*p} sc1"+(f" ; @r{h}" if tg else ""),1) for p in range(n)]
    def rchk(h,dst,so,n,tag):
        t=[f"v_bitop3_b32 v{dst+3}, v{dst+3}, v{dst+7}, s{tag} bitop3:0x7e"]+[f"v_bitop3_b32 v{dst+3}, v{dst+3}, v{dst+4*p+3}, s{tag} bitop3:0xf6" for p in range(2,n)]+[f"v_cmp_ne_u32 vcc, 0, v{dst+3}"]
        va,ps,off,ve={"a":(PA1,"0",12,PE1),"8":(PA1,"0",12,PE1),"b":(PA2,f"s{SMB}",2060,PE2),"z":(PA2,f"s{SMZ}",2060,PE2)}[h]
        look="" if h not in OPT["cpo"] else (f"v_mov_b32 v{PD_+46}, 0\nbuffer_atomic_add v{PD_+46}, v{va}, {WS}, {ps} offen offset:{off} sc0 sc1\ns_waitcnt vmcnt(0)\nv_cmp_ne_u32 vcc, v{ve}, v{PD_+46}\ns_cbranch_vccz L_xr_{h}\n"
            f"s_add_u32 s5, s5, 1\ns_cmp_lt_u32 s5, {OPT['spinmax']}\ns_cbranch_scc1 L_xt_{h}\nL_xr_{h}:\n")
        if ac is not None: COLD.append(f"L_xs_{h}:\ns_mov_b32 s5, 0\nL_xt_{h}:\n"+look+"\n".join(rld(h,dst,so,n,False))+"\ns_waitcnt vmcnt(0)\n"+"\n".join(t)
            +f"\ns_cbranch_vccz L_xo_{h}\ns_add_u32 s5, s5, 1\ns_cmp_lt_u32 s5, {OPT['spinmax']}\ns_cbranch_scc1 L_xt_{h}\ns_branch L_xo_{h}")
        return [f"@W r{h}"]+t[:-1]+split_check(t[-1]+("" if OPT.get("nochk") else f"\ns_cbranch_vccnz L_xs_{h}")+f"\nL_xo_{h}:")
    def apoll(h,va,so,off,tg=True): return [f"v_mov_b32 v{PD_}, 0", far(f"buffer_atomic_add v{PD_}, v{va}, {WS}, {so} offen offset:{off} sc0 sc1"+(f" ; @q{h}" if tg else ""),1)]
    def achk(h,va,so,off,ve):
        t=f"v_cmp_ne_u32 vcc, v{ve}, v{PD_}"
        if ac is not None: COLD.append(f"L_as_{h}:\ns_mov_b32 s5, 0\nL_at_{h}:\n"+"\n".join(apoll(h,va,so,off,False))+f"\ns_waitcnt vmcnt(0)\n{t}"
            +f"\ns_cbranch_vccz L_ao_{h}\ns_add_u32 s5, s5, 1\ns_cmp_lt_u32 s5, {OPT['spinmax']}\ns_cbranch_scc1 L_at_{h}\ns_branch L_ao_{h}")
        return [f"@W q{h}"]+split_check(t+("" if OPT.get("nochk") else f"\ns_cbranch_vccnz L_as_{h}")+f"\nL_ao_{h}:")
    def unp(dst,src,ds=range(8)): return flat([unpack(dst+2*d,src+PD[d]) for d in ds])
    late=(dsetE() if role=="X" else [])+(dsetB() if (role=="X" or not OPT["hoist"]) else [])
    stamp(a,10)
    a(poll_check("p2"+role))
    if OPT["pw0"]: a("s_barrier")
    stamp(a,11); stamp(a,1,"D"); stamp(a,1,"D1")
    F0=OPT["f0"]
    for x in range(F0): a.extend(udma(x))
    a.extend(late)
    a.extend([f"v_mov_b32 v{SB+k}, s{NONCE}" for k in (3,7,10,11)])
    a("@W u0\ns_barrier"); a.extend(urd(0))
    nxt=F0; m0busy=set(); quiet=set(flat([list(range(*[int(y) for y in x.split(".")])) for x in str(OPT["uq"]).split("_") if "." in x]))
    for g_ in range(81):
        g.before(8*g_,f"@W - f{g_}a"); g.before(8*g_+2,f"@W - f{g_}b")
        bar=(g_+1)%4==0
        if bar: g.g[8*g_+2].append(f"@W u{(g_+1)//4} -\ns_barrier")
        if g_<80:
            for k,x in enumerate(urd(g_+1)): g.g[8*g_+(3 if bar else OPT["rg"])+k].append(x)
        k=0
        while nxt<81 and k<OPT["ncat"] and nxt//4<=g_//4+NSL-1 and nxt<=g_+OPT["lag"] and g_ not in quiet:
            d=udma(nxt); p=8*g_+(0,6)[k]; assert nxt//4*4-1-g_>=5, (nxt,g_)
            g.g[p].append(d[0]); g.g[p+1].append(d[1]); m0busy.update((p,p+1)); nxt+=1; k+=1
    assert nxt==81
    def addw(e,tag):
        f=g.g[8*(4*e-1)+2]; i=[k for k,x in enumerate(f) if x.startswith(f"@W u{e}") or x.startswith(f"@W w")][0]; w,rest=f[i].split("\n",1); p=w.split()
        if tag[0]=="r": p[2]=tag if p[2]=="-" else p[2]+","+tag
        else: p[1]+=","+tag
        f[i]=" ".join(p)+"\n"+rest
    free=[(s_,0) for s_ in sorted(S["free"]) if s_<YSL+(not OPT["yin"])]; slot=S["slot"]; assert all(s_<RS0 for s_ in slot.values()), slot
    at={t:1+OPT["jd0"] for t in slot}; ti,td=S["issue"],S["drain"]; log=[[],[]]; yfree=0
    ji=[int(x) for x in str(OPT["ji"+role]).split("_") if x!=""]
    def due(t): return min((need[t//2]-3)//4,GS//4-1)
    for e in range(GS//4):
        L=[]; k=0
        while td<NT and at.get(td,99)<=e and (k<OPT["nd"] or any(due(t)-e<t-td+1 for t in range(td,NT))) and k<2:
            assert e<=due(td), (td,e); k+=1
            addw(e,f"w2_{td}"); L+=flat([x.split("\n") for x in R.reads(td,slot[td])]); log[1].append(e)
            addw(e+1,f"r2_{td}")
            if slot[td]!=YSL or not OPT["yin"]: free.append((slot[td],e+1))
            else: yfree=4*e+4
            td+=1
        if L: g.fit(L,32*e-5,32*e+26)
        if ti<NT and e>=ji[len(log[0])] and free and free[0][1]<=e:
            s_,_=free.pop(0); slot[ti]=s_; d=w2dma(ti,s_); m0,so=d[0].split("\n"); n_=1
            ps=[p for p in range(max(0,32*e-5),32*(e+n_)-7) if p not in m0busy and p+1 not in m0busy]
            g.g[ps[0]].append(so)
            for r in range(4):
                want=ps[0]+r*(ps[-1]-ps[0])//4; p=[x for x in ps if x>=want and x not in m0busy and x+1 not in m0busy][0]
                g.g[p].append(m0); g.g[p+1].append(d[1+r]); m0busy.update((p,p+1))
            at[ti]=e+n_+OPT["jlat"]; log[0].append(e); ti+=1
    assert td==NT,(td,ti,log)
    print(f"; D {role}: issue {log[0]} drain {log[1]}",file=sys.stderr)
    for u in range(9):
        if 2*u+1>=S["drain"] and need[u]<GS: g.pre[8*need[u]][0]+=f",r2_{2*u+1}"
    if R.win!=YSL>>2: g.fit(R.goto(YSL>>2),G(GS)-5,G(GS))
    if role=="X":
        g.fit([f"s_sub_u32 s4, s{TID}, 216\ns_lshl_b32 s7, s4, 7", f"s_lshl2_add_u32 s7, s3, s7\ns_add_u32 s7, s7, {FLAGY}", f"s_cmp_lt_u32 s4, 36\ns_cselect_b32 s7, s7, {OOB}",
           f"v_min_u32 v{PV}, 1, v2", f"v_lshlrev_b32 v{PV}, 30, v{PV}", f"v_mov_b32 v{PV+1}, s{NONCE}", f"buffer_store_dword v{PV+1}, v{PV}, {WS}, s7 offen sc1 ; @yf"],0,12)
    E1=end[1]; ga=min(E1+9,45)
    AUTO=dict(gb2=f"{GS-16}_{GS-12}", gbv=f"{GS-6}_{GS}", gx=f"{GS-12}_{GS}", gxv=f"{E1+5}_{E1+15}", gy=GS, gyc=GS+7 if E1-GS>8 else E1+13, gyr=56, gyv="57_64",
              gap=10*ga, gal=10*(ga+7), nal=5, gac=max(56,ga+15), g8c=64, g8f=76, gbp=540 if ga<43 else 570, gbl=600 if ga<43 else 622, nbl=2 if ga<43 else 1)
    O=lambda k: OPT[k] if OPT.get(k,-1)!=-1 else AUTO[k]
    def rng(k): return [G(int(x)) for x in str(O(k)).split("_")]
    def at_(k,L,n=1): g.fit(L,G(O(k)/10),G(O(k)/10+n))
    rs=flat([[f"v_cvt_pk_bf16_f32 v{SB+4*q+h}, v{A8+4*q+2*h}, v{A8+4*q+2*h+1}" for h in range(2)]+[far(f"buffer_store_dwordx4 {Q(SB+4*q)}, v{L16}, {WS}, s{so} offen sc1 ; @xsR",1)] for q,so in enumerate((SR0,SR1))])
    sent={}
    for bs,L,sp in ((("R",1),rs+send(1,SYA),O("sp1")/10),((2,),send(2,SYB),O("sp2")/10),((3,),send(3,SZ),O("sp3")/10)):
        t=end[bs[-1]]+0.5+O("s2d")*(bs==(2,)); assert GS<=t; pc=[]
        for x in L:
            pc.append(x)
            if "store" in x: g.fit(pc,G(t),G(t+min(sp,1.5))); pc=[]; t+=sp
        for b in bs: sent[b]=t-sp+min(sp,1.5)
    p1,p2,p3=("a",PA1,"0",12),("b",PA2,f"s{SMB}",2060),("z",PA2,f"s{SMZ}",2060)
    E=AB[0]; T1,T2,T3=AB[1:]
    def get(p,ve,kp,kl,n,L,t):
        if p[0] not in OPT["np"]: at_(kp,apoll(*p),0.5); L=achk(*p,ve)+L; assert O(kp)>=10*t
        at_(kl,L,n); assert O(kl)>=10*t
    get(p1,PE1,"gap","gal",O("nal"),rld("a",T1,SMA,3)+rld("8",RVS,SM8,4),max(sent[1],sent["R"]))
    g.fit(rchk("a",T1,SMA,3,NONCE)+unp(E,T1),G(O("gac")),G(beg[0])-1)
    get(p2,PE2,"gbp","gbl",O("nbl"),rld("b",T2,SMB,3),sent[2])
    get(p3,PE2,"gzp","gzl",1,rld("z",T3,SMZ,3),sent[3])
    assert O("gbp")>=O("gal")+5 and O("gzp")>=O("gbl")+5
    gb=O("gbc"); assert gb>=beg[0] and gb>=O("gac")+4
    g.fit(rchk("b",T2,SMB,3,NONCE)+unp(T1,T2),G(gb),G(gb+3))
    for r in range(2):
        g_=[x for x in range(gb+3,80) if groups[x-1][:2]==(0,r) and groups[x][:2]==(0,1-r)][0]
        g.fit([f"v_add_f32 v{E+8*r+k}, v{E+8*r+k}, v{T1+8*r+k}" for k in ((0,1,2,3,4,5,6,7) if g_&1 else (4,5,6,7,0,1,2,3))],G(g_)+2,G(g_)+7)
    zt=[str(x) for x in rchk("z",T3,SMZ,3,NONCE)]+unp(T1,T3)
    if O("gz2"):
        at_("gz2",rld("y",RVS,SMZ,3),1); assert O("gz2")>=O("gzl")+10 and O("gz2")>=10*O("g8f")
        zt=[x.replace("L_xs_z","L_z2") for x in zt]+["L_zj:"]
        if ac is not None: COLD.append(f"L_z2:\ns_waitcnt vmcnt(1)\nv_bitop3_b32 v{RVS+3}, v{RVS+3}, v{RVS+7}, s{NONCE} bitop3:0x7e\nv_bitop3_b32 v{RVS+3}, v{RVS+3}, v{RVS+11}, s{NONCE} bitop3:0xf6\n"
            f"v_cmp_ne_u32 vcc, 0, v{RVS+3}\ns_cbranch_vccnz L_xs_z\n"+"\n".join(unp(T1,RVS))+"\ns_branch L_zj")
    of=OPT["ostore"]
    assert (O("gy")>=GS)==(O("gyc")>=GS)==(not OPT["yin"])
    g.fit([poll_issue("p3" if O("gy")>=GS else "p3"+role)],G(O("gy")),G(O("gy")+1))
    g.fit(split_check(poll_check("p3" if O("gyc")>=GS else "p3"+role)),G(O("gyc")),G(O("gyc")+1))
    p=G(O("gyc")+1); assert O("gyc")+1>=yfree
    for q,so in enumerate((SY0,SY8)):
        while any(x in m0busy for x in (p,p+1,p+2)): p+=1
        g.g[p].append(f"s_add_u32 m0, s{LW}, {YSL*SLOT+2048*q}"); m0busy.update((p,p+1,p+2))
        assert (p+2<8*GS)==(O("gyc")<GS)
        for r in range(2): g.g[p+1+r].append(f"buffer_load_dwordx4 v{YP+r}, {WS}, s{so} offen offset:{1024*r} sc1 lds ; @ey")
    assert O("gyr")%4==0 and O("gyr")>=GS and p+3<G(O("gyr")-1); addw(O("gyr")//4,"ey")
    def xq(q,h): return XP+4*(q&1)+2*(q>>1)+h if q<4 else X8+h
    def st(q): return STT+2*(q&1 if q<4 else 2)
    def yq(q,h): return (12,24,28,190,X8)[q]+h
    assert rng("gxv")[1]<=G(O("gyr")) and G(O("gyr")+1)<=rng("gyv")[0] and rng("gyv")[1]<=G(O("g8c")) and rng("gxv")[1]<=G(O("gac"))
    el=eloads(); g.fit(el[:2]+el[-3:],*rng("gb2")); g.fit(el[2:-3],*rng("gx")); assert rng("gx")[1]<=rng("gxv")[0]
    g.fit(["@W eb"]+[f"v_lshlrev_b32 v{T3+k}, 16, v{B2+(k>>2&1)}" for k in range(16)]+[f"v_lshlrev_b32 v{B8}, 16, v{B8}"],*rng("gbv")); assert rng("gb2")[1]<=rng("gbv")[0] and rng("gbv")[1]<G(beg[3])
    xv=["@W ex"]+[f"v_mul_f32 v{STT+2*n}, v{STT+2*n}, v{STT+2*n+1}" for n in range(3)]+[f"v_permlane16_swap_b32 v{XP+4*j+h}, v{XP+4*j+2+h}" for j in range(2) for h in range(2)]
    xv+=flat([unpack(XF+4*q+2*h,xq(q,h)) for q in range(5) for h in range(2)])+[f"v_fma_f32 v{NN+j}, v{XF+j}, v{st(j//4)+1}, -v{st(j//4)}" for j in range(20)]
    g.fit(xv,*rng("gxv"))
    yr=[f"v_xor_b32 v{RB8}, s41, v{RB2}",f"v_add_u32 v{RB8}, s43, v{RB8}"]+[f"ds_read_b64_tr_b16 {P(yq(q,0))}, v{RB2+(q&1) if q<4 else RB8} offset:{(YSL&3)*SLOT+(4096*(q>>1) if q<4 else 2048)} ; @ry" for q in range(5)]
    g.fit(yr,G(O("gyr")),G(O("gyr")+1))
    tv=(8,30)
    yv=["@W - ry"]+flat([unpack(tv[h],yq(q,h))+[f"v_mul_f32 v{NN+4*q+2*h+k}, v{NN+4*q+2*h+k}, v{tv[h]+k}" for k in (1,0)] for q in range(5) for h in range(2)])
    g.fit(yv,*rng("gyv"))
    A=A8; r=A8+4; n=NN+16
    e8=rchk("8",RVS,SM8,4,ST8)+unpack(A,RVS)+unpack(A+2,RVS+1)+[f"v_add_f32 v{A+k}, v{A+k}, v{B8}" for k in range(4)]
    for q in range(1,4): e8+=unpack(r,RVS+4*q)+unpack(r+2,RVS+4*q+1)+[f"v_add_f32 v{A+k}, v{A+k}, v{r+k}" for k in range(4)]
    e8+=[f"v_mul_f32 v{r+k}, s38, v{A+k}" for k in range(4)]+[f"v_exp_f32 v{r+k}, v{r+k}" for k in range(4)]+[f"v_mul_f32 v{n+k}, v{n+k}, v{A+k}" for k in range(4)]
    e8+=[f"v_add_f32 v{r+k}, 1.0, v{r+k}" for k in range(4)]+[f"v_rcp_f32 v{r+k}, v{r+k}" for k in range(4)]+[f"v_fma_f32 v{n+k}, v{n+k}, v{r+k}, v{XF+16+k}" for k in range(4)]
    e8+=[f"v_cvt_pk_bf16_f32 v{X8}, v{n}, v{n+1}",f"v_cvt_pk_bf16_f32 v{X8+1}, v{n+2}, v{n+3}",f"buffer_store_dwordx2 {P(X8)}, v{XO+1}, {RC}, 0 offen {of} ; @o8"]
    g.fit(e8[:-1],G(O("g8c")),G(O("g8f")))
    go=O("go8") or max(O("g8f"),O("gzl")//10+2,O("gz2")//10+2); assert go>=O("g8f") and not (O("go8") and O("gz2"))
    g.fit(e8[-1:],G(go),G(go+1 if O("go8") else 81))
    g.finish()
    if ac is not None: print("; D cost/group"," ".join(f"{sum(g.load(i) for i in range(8*k,8*k+8)):.0f}" for k in range(81)),file=sys.stderr)
    for i,(m,p_,f) in enumerate(zip(g.mf,g.pre,g.g)):
        if i==8*GS:
            if ac is None: a("s_branch L_Dc"); return
            a=ac; a("L_Dc:")
        if i and i%72==0: stamp(a,1+i//72,"D")
        if i%32==0 and i<12*32: stamp(a,2+i//32,"D1")
        if i%32==0 and i>=9*32: stamp(a,1+i//32-9,"D2")
        a.extend(p_); a(m); a.extend(f)
    stamp(a,12); stamp(a,10,"D"); stamp(a,13,"D2")
    def fin(nt):
        two=lambda f: flat([f(E+4*q,T2+4*q,NN+4*q,q) for q in (nt,nt+2)])
        s1=two(lambda A,r,n,t:[f"v_pk_add_f32 {P(A)}, {P(A)}, {P(T1+4*t)}",f"v_pk_add_f32 {P(A+2)}, {P(A+2)}, {P(T1+4*t+2)}"])
        s1+=two(lambda A,r,n,t:[f"v_pk_mul_f32 {P(r)}, {P(A)}, s[38:39] op_sel_hi:[1,0]",f"v_pk_mul_f32 {P(r+2)}, {P(A+2)}, s[38:39] op_sel_hi:[1,0]"])
        s1+=two(lambda A,r,n,t:[f"v_exp_f32 v{r+k}, v{r+k}" for k in range(4)])
        s1+=two(lambda A,r,n,t:[f"v_pk_mul_f32 {P(n)}, {P(n)}, {P(A)}",f"v_pk_mul_f32 {P(n+2)}, {P(n+2)}, {P(A+2)}"])
        s1+=two(lambda A,r,n,t:[f"v_pk_add_f32 {P(r)}, {P(r)}, 1.0 op_sel_hi:[1,0]",f"v_pk_add_f32 {P(r+2)}, {P(r+2)}, 1.0 op_sel_hi:[1,0]"])
        s1+=two(lambda A,r,n,t:[f"v_rcp_f32 v{r+k}, v{r+k}" for k in range(4)])
        s1+=two(lambda A,r,n,t:[f"v_pk_fma_f32 {P(n)}, {P(n)}, {P(r)}, {P(XF+4*t)}",f"v_pk_fma_f32 {P(n+2)}, {P(n+2)}, {P(r+2)}, {P(XF+4*t+2)}"])
        o=E+4*nt; n0,n1=NN+4*nt,NN+4*nt+8
        s1+=[f"v_cvt_pk_bf16_f32 v{o}, v{n0}, v{n0+1}",f"v_cvt_pk_bf16_f32 v{o+2}, v{n1}, v{n1+1}",f"v_cvt_pk_bf16_f32 v{o+1}, v{n0+2}, v{n0+3}",f"v_cvt_pk_bf16_f32 v{o+3}, v{n1+2}, v{n1+3}",
             f"v_permlane16_swap_b32 v{o}, v{o+2}",f"v_permlane16_swap_b32 v{o+1}, v{o+3}",f"buffer_store_dwordx4 {Q(o)}, v{XO}, {RC}, {('0',f's{SC16}')[nt]} offen {of}"]
        return s1
    a.extend([x for x in zt+fin(0)+fin(1) if not (OPT.get("notail") and x.startswith(("v_exp","v_rcp","v_pk")))])
    stamp(a,13)
    if OPT["stamps"]:
        a("s_waitcnt vmcnt(0)"); stamp(a,14); stamps_out(a)
    if OPT.get("probe") is not None:
        a("s_waitcnt vmcnt(0)"); stamp(a,14)
        if OPT["probe"]==0: a(f"s_mov_b32 s28, s{NONCE}")
        if OPT.get("prole")=="G": a(f"s_cmp_lt_u32 s{TID}, 216\ns_cselect_b32 s28, s28, s{NONCE}")
        if OPT.get("prole")=="X": a(f"s_sub_u32 s4, s{TID}, 216\ns_cmp_lt_u32 s4, 36\ns_cselect_b32 s28, s28, s{NONCE}")
        a("s_add_u32 s28, s28, 6000\ns_mov_b32 s5, 0\nL_spin:\ns_memrealtime s[0:1]\ns_waitcnt lgkmcnt(0)\ns_sub_u32 s4, s0, s28\ns_add_u32 s5, s5, 1\ns_cmp_gt_u32 s5, 20000\ns_cbranch_scc1 L_spe\ns_cmp_lt_i32 s4, 0\ns_cbranch_scc1 L_spin\nL_spe:")
    a("s_endpgm\nL_segE:")

def check_vcc(seg):
    last=None
    for ins in seg.L:
        if "vcc" in ins.w: assert last is None or "#" not in last, (last,ins.text); last=ins.text
        if ins.op.startswith("s_cbranch_vcc"):
            assert last is not None and ("#" not in last or last.split("#")[1]==ins.text.split()[1]), (last,ins.text); last=None
def check_m0(seg):
    cur=None
    for ins in seg.L:
        if "m0" in ins.w: cur=ins.text.split(",")[1].strip()
        if ins.kind=="vmem" and " lds" in ins.text:
            tg=ins.text.split("@")[1]; want={"w":f"s{LW}","h":f"s{LH}","k":"s9"}[tg[0]]
            assert cur==want,(ins.text,cur)
def build(**kw):
    OPT.update(kw)
    hdr=open("cdna_kernels/"+NAME+".s.ref").read().split("; Override launch")[0]
    segs=s0,sG,sDG,sD,sXA,sC,sDX,sI=[Asm() for _ in range(8)]
    p0(s0); R=roleG(sG); roleX_A(sXA); conv(sC); idle(sI); phaseD(sDG,sD,"G",R); n=nX(); phaseD(sDX,None,"X",dict(R=W2R(),slot=dict(XS),free=list(range(2,10)),issue=n,drain=n-2))
    for seg in segs:
        for ins in seg.L:
            m=re.search(r";\s*@(\S+)",ins.text)
            if OPT.get("drop"):
                if ins.kind=="vmem" and m and re.fullmatch(OPT["drop"],m.group(1)): ins.__init__("")
                elif ins.text.startswith("@W"):
                    p=ins.text.split(); tg=[t for t in p[1].split(",") if not re.fullmatch(OPT["drop"],t)]
                    ins.__init__(" ".join(["@W",",".join(tg) or "-"]+p[2:]))
            if OPT.get("dropds") and ins.kind=="ds" and m and re.fullmatch(OPT["dropds"],m.group(1)): ins.__init__("ds_nop ; @"+m.group(1))
            if OPT.get("nt") and ins.kind=="vmem" and m and re.fullmatch(OPT["nt"],m.group(1)):
                ins.__init__(ins.text.replace(" lds ;"," nt lds ;") if " lds ;" in ins.text else ins.text.replace(" ;"," nt ;"))
            if OPT.get("nosc1") and ins.kind=="vmem" and m and re.fullmatch(OPT["nosc1"],m.group(1)): ins.__init__(ins.text.replace(" sc1",""))
    for seg in segs: check_vcc(seg)
    paths=[[s0,sG,sDG,sD],[s0,sXA,sC,sDX,sD],[s0,sXA,sI,sDX,sD]]
    resolve_vm(paths)
    if not OPT.get('drop'): check_pending(paths)
    a=Asm(); a.L=flat([s.L for s in segs]); c=Asm(); c.extend(COLD)
    if OPT["iw"]:
        k=[i for i,x in enumerate(a.L) if x.text==".p2align 12"][0]; a.L=a.L[:k]+c.L+a.L[k:]
    else: a.L+=c.L
    a("L_end:"); a.fix()
    check_m0(sC)
    if OPT["iw"]:
        def disp(cnt):
            d=Asm()
            for nm in "GXD":
                d(f"L_wc_{nm}:")
                for w in range(4):
                    tgt=f"L_pl_{nm}_{w}" if w<cnt[nm] else "L_wret"
                    d(f"s_cmp_eq_u32 s3, {w}\ns_cbranch_scc1 {tgt}" if w<3 else f"s_branch {tgt}")
            d("L_wret:\ns_setpc_b64 s[82:83]")
            return d.L
        k=[i for i,x in enumerate(a.L) if x.text==".p2align 12"][0]
        L,cnt=page_landings(a.L[:k]+disp(dict(G=0,X=0,D=0))+a.L[k:],"L_org",[("G","L_segG","L_Dc"),("X","L_segX","L_idle"),("D","L_Dc","L_segE")])
        n=len(disp(cnt)); a.L=L[:k]+disp(cnt)+L[k+n:]
        print("; landings",cnt,file=sys.stderr)
    return (hdr+"; @launch grid=(256,1,1) block=(256,1,1) lds=163840\n"+'.amdgcn_target "amdgcn-amd-amdhsa--gfx950"\n.text\n'+a.text()
            +'.section .rodata,"a"\n'+kdesc(KN,256,256))
if __name__=="__main__":
    kw={}
    for x in sys.argv[2:]:
        k,v=x.split("=",1); kw[k]=int(v) if v.lstrip("-").isdigit() else v
    open(sys.argv[1],"w").write(build(**kw))
```
